```python
import torch

def _softmax(x, axis=-1):
    return torch.softmax(x, dim=axis)
def _gelu(x):
    return torch.nn.functional.gelu(x, approximate="tanh")
def _silu(x):
    return torch.nn.functional.silu(x)
def _sigmoid(x):
    return torch.sigmoid(x)
def _layernorm(x, axis=-1, eps=1e-5):
    m = x.mean(dim=axis, keepdim=True)
    v = x.var(dim=axis, keepdim=True, unbiased=False)
    return (x - m) / torch.sqrt(v + eps)
def _scatter_add(tgt, idx, src, axis=0):
    return tgt.clone().index_add_(axis, idx, src)
def _segment_sum(src, seg, n):
    out = torch.zeros((n,) + src.shape[1:], dtype=src.dtype)
    return out.index_add_(0, seg, src)
def _pad(x, pw):
    flat = tuple(v for pair in reversed(pw) for v in pair)
    return torch.nn.functional.pad(x, flat)

kernel_name = 'concat_heads__sliding_block_cached__compressed_kv_cla__decode'

def setup_inputs():

    _w = (lambda a: (lambda t: t.to(torch.bfloat16) if t.is_floating_point() else t)(torch.as_tensor(a)))
    def _A_setup():
        B, Sq, D = 4, 1, 512
        Hq, Hkv, Sk, Dh = 32, 32, 4096, 128
        assert Hq % Hkv == 0, (Hq, Hkv)
        return {
            "x": _w((lambda *s: torch.randn(*s, dtype=torch.bfloat16) * 0.8)(B, Sq, D)),
            "k_cache": _w((lambda *s: torch.randn(*s, dtype=torch.bfloat16) * 0.8)(B, Hkv, Sk, Dh)),
            "v_cache": _w((lambda *s: torch.randn(*s, dtype=torch.bfloat16) * 0.05)(B, Hkv, Sk, Dh)),
            "wq": _w((lambda *s: torch.randn(*s, dtype=torch.bfloat16) * 0.8)(D, Hq * Dh) * (D ** -0.5)),
            "wo": _w((lambda *s: torch.randn(*s, dtype=torch.bfloat16) * 0.05)(Hq * Dh, D) * ((Hq * Dh) ** -0.5)),
        }
    _A_in = _A_setup()

    def _B_setup():
        B, H, Sq, Sk, D, M = 4, 32, 1, 4096, 128, 512
        Dc = 4 * D
        return {
            "x": _w((lambda *s: torch.randn(*s, dtype=torch.bfloat16) * 1.6)(B, Sq, M)),
            "c_kv": _w((lambda *s: torch.randn(*s, dtype=torch.bfloat16) * 0.1)(B, Sk, Dc)),
            "w_q": _w((lambda *s: torch.randn(*s, dtype=torch.bfloat16) * 3.2)(M, H, D) * (M ** -0.5)),
            "w_uk": _w((lambda *s: torch.randn(*s, dtype=torch.bfloat16) * 3.2)(Dc, H, D) * (Dc ** -0.5)),
            "w_uv": _w((lambda *s: torch.randn(*s, dtype=torch.bfloat16) * 0.1)(Dc, H, D) * (Dc ** -0.5)),
            "w_o": _w((lambda *s: torch.randn(*s, dtype=torch.bfloat16) * 0.1)(H, D, M) * ((H * D) ** -0.5)),
        }
    _B_in = _B_setup()

    return {
        "A_x": _A_in["x"],
        "A_k_cache": _A_in["k_cache"],
        "A_v_cache": _A_in["v_cache"],
        "A_wq": _A_in["wq"],
        "A_wo": _A_in["wo"],
        "B_x": _B_in["x"],
        "B_c_kv": _B_in["c_kv"],
        "B_w_q": _B_in["w_q"],
        "B_w_uk": _B_in["w_uk"],
        "B_w_uv": _B_in["w_uv"],
        "B_w_o": _B_in["w_o"],
    }

def reference(A_x, A_k_cache, A_v_cache, A_wq, A_wo, B_x, B_c_kv, B_w_q, B_w_uk, B_w_uv, B_w_o):
    def _A_ref(x, k_cache, v_cache, wq, wo):
        B, Sq, D = x.shape
        Hq, Dh = 32, 128
        Hkv, Sk = k_cache.shape[1], k_cache.shape[2]
        W = min(4096, max(256, Sk // 4))
        rep = Hq // Hkv
        q = (lambda x, *d: x.permute(*d))((x @ wq).reshape(B, Sq, Hq, Dh), 0, 2, 1, 3)
        k = (lambda x, n, axis: torch.repeat_interleave(x, n, dim=axis))(k_cache[:, :, Sk - W:, :], rep, axis=1)
        v = (lambda x, n, axis: torch.repeat_interleave(x, n, dim=axis))(v_cache[:, :, Sk - W:, :], rep, axis=1)
        scores = torch.einsum("bhqd,bhkd->bhqk", q, k) * (Dh ** -0.5)
        p = _softmax(scores, axis=-1)
        o = torch.einsum("bhqk,bhkd->bhqd", p, v)
        return (lambda x, *d: x.permute(*d))(o, 0, 2, 1, 3).reshape(B, Sq, Hq * Dh) @ wo

    def _B_ref(x, c_kv, w_q, w_uk, w_uv, w_o):
        B, Sq, M = x.shape[0], x.shape[1], x.shape[2]
        Sk = c_kv.shape[1]
        H, D = w_q.shape[1], w_q.shape[2]
        q = torch.einsum("bqm,mhd->bhqd", x, w_q)
        k = torch.einsum("bkc,chd->bhkd", c_kv, w_uk)
        v = torch.einsum("bkc,chd->bhkd", c_kv, w_uv)
        scores = torch.einsum("bhqd,bhkd->bhqk", q, k) * (D ** -0.5)
        off = Sk - Sq
        qi = torch.arange(Sq)[:, None]
        kj = torch.arange(Sk)[None, :]
        cmask = kj <= (qi + off)
        scores = torch.where(cmask[None, None], scores, -1e9)
        p = _softmax(scores, axis=-1)
        ctx = torch.einsum("bhqk,bhkd->bhqd", p, v)
        return torch.einsum("bhqd,hdm->bqm", ctx, w_o)

    a = _A_ref(A_x, A_k_cache, A_v_cache, A_wq, A_wo)
    b = _B_ref(B_x, B_c_kv, B_w_q, B_w_uk, B_w_uv, B_w_o)
    return torch.concatenate([a, b], axis=-1)
```

```python
import re

_REG = re.compile(r'^(v|s|a)(\d+)$|^(v|s|a)\[(\d+):(\d+)\]$')

TRANS = ('v_exp_f32', 'v_log_f32', 'v_rcp_f32', 'v_rsq_f32', 'v_sqrt_f32', 'v_sin_f32', 'v_cos_f32',
         'v_rcp_iflag_f32')


def regs_of(tok):
    tok = tok.strip()
    neg = tok.lstrip('-')
    if neg.startswith('abs(') or neg.startswith('|'):
        neg = neg.strip('abs()|')
    tok = neg
    if tok == 'vcc':
        return {('s', 106), ('s', 107)}
    if tok == 'vcc_lo':
        return {('s', 106)}
    if tok == 'vcc_hi':
        return {('s', 107)}
    if tok == 'exec':
        return {('s', 126), ('s', 127)}
    if tok == 'm0':
        return {('s', 124)}
    m = _REG.match(tok)
    if not m:
        return set()
    if m.group(1):
        return {(m.group(1), int(m.group(2)))}
    return {(m.group(3), i) for i in range(int(m.group(4)), int(m.group(5)) + 1)}


def split_ops(s):
    ops, depth, cur = [], 0, ''
    for ch in s:
        if ch in '[(':
            depth += 1
        if ch in '])':
            depth -= 1
        if ch == ',' and depth == 0:
            ops.append(cur.strip())
            cur = ''
        else:
            cur += ch
    if cur.strip():
        ops.append(cur.strip())
    return ops


class Ins:
    __slots__ = ('op', 'w', 'r', 'kind', 'passes', 'srcc', 'srcab', 'dpp_src', 'states', 'text', 'store_data',
                 'is_lds_dma', 'sreads')


def mfma_passes(op):
    if '32x32x16' in op or '32x32x8' in op:
        return 8
    if '16x16x32' in op or '16x16x16' in op:
        return 4
    raise ValueError(op)


def parse(text):
    t = text.split(';')[0].strip()
    parts = t.split(None, 1)
    op = parts[0]
    rest = parts[1] if len(parts) > 1 else ''
    ops = split_ops(rest)
    mods = ''
    if ops:
        last = ops[-1].split()
        if len(last) > 1:
            ops[-1] = last[0]
            mods = ' '.join(last[1:])
    i = Ins()
    i.op, i.text = op, text
    i.w, i.r = set(), set()
    i.kind = 'other'
    i.passes = 0
    i.srcc, i.srcab, i.dpp_src, i.store_data = set(), set(), set(), set()
    i.is_lds_dma = False
    i.states = 1
    base = op
    for suf in ('_e32', '_e64', '_dpp', '_sdwa'):
        if base.endswith(suf):
            base = base[:-len(suf)]
    if op == 's_nop':
        i.states = int(ops[0], 0) + 1
        i.kind = 'salu'
        return i
    if op.startswith('s_'):
        i.kind = 'salu'
        nodst = ('s_cmp', 's_waitcnt', 's_branch', 's_cbranch', 's_barrier', 's_sleep', 's_setprio', 's_endpgm',
                 's_bitcmp', 's_setreg', 's_sendmsg')
        if op.startswith(nodst):
            for o in ops:
                i.r |= regs_of(o)
        else:
            if ops:
                i.w |= regs_of(ops[0])
            for o in ops[1:]:
                i.r |= regs_of(o)
            if 'saveexec' in op:
                i.w |= regs_of('exec')
        if op.startswith('s_load') or op.startswith('s_buffer_load') or op.startswith('s_mem'):
            i.kind = 'smem'
        return i
    if op.startswith('v_mfma'):
        i.kind = 'mfma'
        i.passes = mfma_passes(op)
        i.w = regs_of(ops[0])
        i.srcab = regs_of(ops[1]) | regs_of(ops[2])
        i.srcc = regs_of(ops[3])
        i.r = i.srcab | i.srcc
        return i
    if op.startswith('v_'):
        i.kind = 'valu'
        if base in TRANS:
            i.kind = 'trans'
        if base.startswith('v_dot'):
            i.kind = 'dot'
        if base.startswith('v_permlane') and 'swap' in base:
            i.kind = 'perm'
            i.w = regs_of(ops[0]) | regs_of(ops[1])
            i.r = set(i.w)
            return i
        i.w = regs_of(ops[0])
        srcs = ops[1:]
        if base in ('v_add_co_u32', 'v_sub_co_u32', 'v_addc_co_u32', 'v_subb_co_u32', 'v_mad_u64_u32',
                    'v_div_scale_f32'):
            i.w |= regs_of(ops[1])
            srcs = ops[2:]
        for o in srcs:
            i.r |= regs_of(o)
        if base in ('v_fmac_f32', 'v_dot2c_f32_bf16', 'v_pk_fmac_f16', 'v_writelane_b32'):
            i.r |= i.w
        if base == 'v_dot2_f32_bf16':
            i.srcc = regs_of(ops[3])
            i.srcab = regs_of(ops[1]) | regs_of(ops[2])
        if base == 'v_dot2c_f32_bf16':
            i.srcc = set(i.w)
            i.srcab = regs_of(ops[1]) | regs_of(ops[2])
        if op.endswith('_dpp') or 'row_' in mods or 'quad_perm' in mods:
            i.dpp_src = regs_of(ops[1])
            i.r |= i.w
        if base == 'v_cndmask_b32' and len(ops) == 3:
            i.r |= regs_of('vcc')
        return i
    if op.startswith('buffer_') or op.startswith('global_'):
        i.kind = 'vmem'
        if op in ('buffer_wbl2', 'buffer_inv'):
            return i
        ml = mods.split()
        if 'lds' in ml or 'load_lds' in op:
            i.is_lds_dma = True
            for o in ops:
                i.r |= regs_of(o)
            i.r |= regs_of('m0')
            return i
        if 'store' in op:
            for o in ops:
                i.r |= regs_of(o)
            if 'x4' in op or 'x3' in op:
                i.store_data = regs_of(ops[0]) if op.startswith('buffer_') else regs_of(ops[1])
            return i
        if 'atomic' in op:
            for o in ops:
                i.r |= regs_of(o)
            if 'sc0' in ml:
                i.w = regs_of(ops[0])
            return i
        i.w = regs_of(ops[0])
        for o in ops[1:]:
            i.r |= regs_of(o)
        return i
    if op.startswith('ds_'):
        i.kind = 'ds'
        if op.startswith('ds_write') or (('add' in op or 'max' in op or 'min' in op or 'or_' in op)
                                         and 'rtn' not in op):
            for o in ops:
                i.r |= regs_of(o)
            return i
        i.w = regs_of(ops[0])
        for o in ops[1:]:
            i.r |= regs_of(o)
        return i
    raise ValueError('unknown instruction: ' + text)


def vonly(s):
    return {x for x in s if x[0] in 'va'}


def sonly(s):
    return {x for x in s if x[0] == 's'}


def need(p, c):
    n = 0
    pv, ps = vonly(p.w), sonly(p.w)
    valu_like = p.kind in ('valu', 'trans', 'dot', 'perm')
    cvalu = c.kind in ('valu', 'trans', 'dot', 'perm')
    if valu_like:
        if pv & c.dpp_src:
            n = max(n, 2)
        if c.op.startswith(('v_readlane', 'v_readfirstlane')) and pv & c.r:
            n = max(n, 1)
        if c.kind == 'perm' and pv & c.r:
            n = max(n, 2)
        if c.kind == 'mfma' and pv & c.r:
            n = max(n, 2)
        if p.kind == 'trans' and c.kind != 'trans' and pv & (c.r | c.w):
            n = max(n, 1)
        if ps:
            if cvalu and ps & c.r:
                n = max(n, 4 if c.op.startswith(('v_readlane', 'v_writelane')) else 2)
            if c.kind == 'vmem' and ps & c.r:
                n = max(n, 5)
            if c.kind == 'mfma' and ps & c.r:
                n = max(n, 4)
        if p.kind == 'dot' and pv & (c.r | c.w):
            same = c.kind == 'dot' and c.op.split('_e')[0] == p.op.split('_e')[0]
            if same and not (pv & c.srcab):
                pass
            else:
                n = max(n, 3)
    if p.kind == 'mfma':
        big = {4: 8, 8: 12}[p.passes]
        if c.kind == 'mfma':
            if pv & c.srcab:
                n = max(n, big)
            if pv & c.srcc:
                if c.srcc == pv and c.passes == p.passes:
                    pass
                else:
                    n = max(n, p.passes + 2)
            if pv & c.w and not (c.srcc == pv and c.w == pv):
                n = max(n, p.passes + 2)
        elif pv & (c.r | c.w):
            n = max(n, big)
        if cvalu and p.srcc & c.w:
            n = max(n, {4: 3, 8: 7}[p.passes])
    if p.kind == 'salu' and ('s', 124) in p.w and c.is_lds_dma:
        n = max(n, 1)
    if p.store_data and (p.store_data & c.w):
        n = max(n, 2 if cvalu else 1)
    return n


class Asm:
    def __init__(self):
        self.lines = []
        self.hist = []
        self.nuniq = 0
        self.nops = 0

    def comment(self, s):
        self.lines.append('    ; ' + s)

    def raw(self, s):
        self.lines.append(s)

    def label(self, name):
        self.lines.append(name + ':')

    def uniq(self, base='L'):
        self.nuniq += 1
        return '%s_%d' % (base, self.nuniq)

    def fence(self, n=16):
        while n > 0:
            k = min(n, 16)
            self('s_nop %d' % (k - 1))
            n -= k

    def __call__(self, text):
        for t in text.strip().split('\n'):
            t = t.strip()
            if not t or t.startswith(';'):
                continue
            self._one(t)

    def _one(self, t):
        c = parse(t)
        dist = 0
        pad = 0
        for p in reversed(self.hist):
            n = need(p, c)
            if n - dist > pad:
                pad = n - dist
            dist += p.states
            if dist >= 24:
                break
        while pad > 0:
            k = min(pad, 16)
            nop = parse('s_nop %d' % (k - 1))
            self.lines.append('    s_nop %d' % (k - 1))
            self.hist.append(nop)
            self.nops += 1
            pad -= k
        self.lines.append('    ' + t)
        self.hist.append(c)
        if len(self.hist) > 40:
            self.hist = self.hist[-40:]

    def text(self):
        return '\n'.join(self.lines) + '\n'


def vr(base, n=1):
    return 'v%d' % base if n == 1 else 'v[%d:%d]' % (base, base + n - 1)


def sr(base, n=1):
    return 's%d' % base if n == 1 else 's[%d:%d]' % (base, base + n - 1)
```

```python
from asmlib import vr
import gen as G
from gen import (VM, mk_srd, srd, f32bits, S_T, S_H, S_R, S_WAVE, S_SPIN, S_MK, S_MK2, S_MK3, S_MK4,
                 SRD_WS, SRD_DBG, SRD_A, SRD_B, SRD_C, P_CKV, P_WUV, P_OUT)


def b_att(g):
    a, o = g.a, g.o
    vm = VM(a)
    a.label('L_BATT')
    (sBi, sBq, sJ, sCh, sKt, sHh, sOff, sC, sM0, sX, sBase) = [S_T + i for i in range(11)]
    Q, ST2, ACC = 32, 96, 128
    ST1 = ACC
    VB8, VB4 = 2, 3
    T = 160
    nsync = [0]

    def sync():
        nsync[0] += 1
        g.lds_signal(G.C_ATT, T + 6, T + 7)
        g.lds_wait(G.C_ATT, 8 * nsync[0], T + 6, T + 7, sleep=0)

    mk_srd(a, SRD_A, P_CKV, 16777216)
    mk_srd(a, SRD_B, P_WUV, 4194304)
    mk_srd(a, SRD_C, P_OUT, 8192)
    a('s_sub_u32 s%d, s%d, 6' % (sCh, S_R))
    a('s_lshl_b32 s%d, s%d, 1' % (sBi, S_H))
    a('s_add_u32 s%d, s%d, s%d' % (sBi, sBi, sCh))
    a('s_lshr_b32 s%d, s%d, 4' % (sBq, sBi))
    a('s_and_b32 s%d, s%d, 15' % (sJ, sBi))
    a('s_lshr_b32 s%d, s%d, 1' % (sKt, S_WAVE))
    a('s_and_b32 s%d, s%d, 1' % (sHh, S_WAVE))
    a('s_mov_b32 s%d, 0x%x' % (sC, f32bits(G.SCALE_LOG2E)))
    a('v_lshlrev_b32 v%d, 4, v1' % T)
    a('s_lshl_b32 s7, s%d, 5' % sHh)
    a('v_xor_b32 v%d, s7, v%d' % (VB8, T))
    a('s_and_b32 s7, s%d, 3' % S_WAVE)
    a('s_lshl_b32 s7, s7, 4')
    a('v_xor_b32 v%d, s7, v%d' % (VB4, T))
    a('s_lshl_b32 s%d, s%d, 18' % (sBase, sBi))
    if o.nob:
        a('s_mov_b32 s%d, 0x40000000' % sBase)

    def thr():
        vm.wait_n(o.bd - 1)

    def row_voff(i, eight, vt):
        if o.noswz:
            a('v_lshlrev_b32 v%d, 4, v1' % vt)
        elif eight:
            fs = ((i & 3) << 2) | (i >> 2)
            a('v_xor_b32 v%d, 0x%x, v%d' % (vt, fs << 4, VB8))
        else:
            a('v_xor_b32 v%d, 0x%x, v%d' % (vt, (i << 2) << 4, VB4))

    def ctx_row_base():
        a('s_lshl_b32 s%d, s%d, 18' % (sX, S_WAVE))
        a('s_lshl_b32 s7, s%d, 10' % sBi)
        a('s_add_u32 s%d, s%d, s7' % (sX, sX))
        a('s_add_u32 s%d, s%d, 0x%x' % (sX, sX, G.WS_CTX))

    def mlb_addr(V):
        a('s_lshl_b32 s7, s%d, 8' % sBi)
        a('s_add_u32 s7, s7, 0x%x' % G.WS_MLB)
        a('v_and_b32 v%d, 31, v1' % V)
        a('v_lshl_add_u32 v%d, v%d, 3, s7' % (V, V))

    a('s_lshl_b32 s7, s%d, 13' % S_WAVE)
    a('s_add_u32 s%d, s%d, s7' % (sOff, sBase))
    a('s_add_u32 s%d, s7, %d' % (sM0, G.RING0))
    for i in range(8):
        vt = T + (i & 1)
        row_voff(i, True, vt)
        a('s_mov_b32 m0, s%d' % sM0)
        thr()
        vm.issue('buffer_load_dwordx4 v%d, %s, s%d offen nt lds' % (vt, srd(SRD_A), sOff), 'q0')
        if i == 2:
            a('s_barrier')
        a('s_add_u32 s%d, s%d, 1024' % (sOff, sOff))
        a('s_add_u32 s%d, s%d, 1024' % (sM0, sM0))
    a('s_lshl_b32 s7, s%d, 12' % S_WAVE)
    a('s_add_u32 s%d, s%d, s7' % (sOff, sBase))
    a('s_add_u32 s%d, s%d, 65536' % (sOff, sOff))
    a('s_add_u32 s%d, s7, %d' % (sM0, G.RING1))
    for i in range(4):
        vt = T + (i & 1)
        row_voff(i, False, vt)
        a('s_mov_b32 m0, s%d' % sM0)
        thr()
        vm.issue('buffer_load_dwordx4 v%d, %s, s%d offen nt lds' % (vt, srd(SRD_A), sOff), 'q1')
        a('s_add_u32 s%d, s%d, 1024' % (sOff, sOff))
        a('s_add_u32 s%d, s%d, 1024' % (sM0, sM0))
    a('s_add_u32 s%d, s%d, %d' % (sOff, sOff, 32768 - 4096))
    for i in range(4):
        vt = T + (i & 1)
        row_voff(i, False, vt)
        thr()
        vm.issue('buffer_load_dwordx4 %s, v%d, %s, s%d offen nt' % (vr(ST1 + 4 * i, 4), vt, srd(SRD_A), sOff), 'st1')
        a('s_add_u32 s%d, s%d, 1024' % (sOff, sOff))
    a('s_lshl_b32 s7, s%d, 13' % S_WAVE)
    a('s_add_u32 s%d, s%d, s7' % (sOff, sBase))
    a('s_add_u32 s%d, s%d, %d' % (sOff, sOff, 2 * 65536))
    for i in range(8):
        vt = T + (i & 1)
        row_voff(i, True, vt)
        thr()
        vm.issue('buffer_load_dwordx4 %s, v%d, %s, s%d offen nt' % (vr(ST2 + 4 * i, 4), vt, srd(SRD_A), sOff), 'st2')
        a('s_add_u32 s%d, s%d, 1024' % (sOff, sOff))
    g.stamp(vm, 0, T)
    ctx_row_base()
    a('v_lshlrev_b32 v4, 4, v1')
    for k in range(4):
        a('v_mov_b32 v%d, -1' % (8 + k))
    for k in range(0 if o.noclr & 2 else 4):
        vm.issue('buffer_store_dwordx4 v[8:11], v4, %s, s%d offen sc1' % (srd(SRD_WS), sX), 'clr')
        a('s_add_u32 s%d, s%d, 65536' % (sX, sX))
    mlb_addr(5)
    a('s_cmp_eq_u32 s%d, 0' % S_WAVE)
    a('s_cselect_b32 s%d, -1, 0' % S_MK)
    a('s_mov_b32 s%d, 0' % (S_MK + 1))
    a('s_mov_b64 exec, s[%d:%d]' % (S_MK, S_MK + 1))
    a('buffer_store_dwordx2 v[8:9], v5, %s, 0 offen sc1' % srd(SRD_WS))
    a('s_mov_b64 exec, -1')

    nfl = [0]

    def poll_flags(level, which, sleep=2):
        Lp, Lpd = a.uniq('AF'), a.uniq('AFD')
        F = 16
        if which == 'B':
            a('v_lshrrev_b32 v%d, 1, v1' % T)
            a('v_lshlrev_b32 v%d, 3, v%d' % (T, T))
            a('v_and_b32 v%d, 1, v1' % (T + 1))
            a('v_add3_u32 v%d, v%d, v%d, 6' % (T, T, T + 1))
            a('v_lshlrev_b32 v%d, 3, v%d' % (T, T))
            n = 1
        else:
            a('v_lshlrev_b32 v%d, 3, v1' % T)
            n = 4
        a('v_add_u32 v%d, 0x%x, v%d' % (T, G.WS_FLAG, T))
        if which == 'A':
            a('s_mov_b32 s%d, 0xc0c0c0c0' % S_MK4)
            a('s_mov_b32 s%d, 0xc0c0c0c0' % (S_MK4 + 1))
        else:
            a('s_mov_b64 s[%d:%d], 0' % (S_MK4, S_MK4 + 1))
        a('s_mov_b32 s%d, %d' % (S_SPIN, o.spin))
        a.label(Lp)
        a('s_mov_b32 s7, 0')
        for k in range(n):
            a('buffer_load_dwordx2 v[%d:%d], v%d, %s, s7 offen sc1' % (F + 2 * k, F + 2 * k + 1, T, srd(SRD_WS)))
            if k < n - 1:
                a('s_add_u32 s7, s7, 512')
        a('s_waitcnt vmcnt(0)')
        vm.q = []
        a('s_mov_b64 s[%d:%d], -1' % (S_T + 12, S_T + 13))
        for k in range(n):
            g.flag_ok(F + 2 * k, level, S_T + 14)
            a('s_and_b64 s[%d:%d], s[%d:%d], s[%d:%d]' % (S_T + 12, S_T + 13, S_T + 12, S_T + 13, S_T + 14, S_T + 15))
        a('s_or_b64 s[%d:%d], s[%d:%d], s[%d:%d]' % (S_T + 12, S_T + 13, S_T + 12, S_T + 13, S_MK4, S_MK4 + 1))
        a('s_cmp_eq_u64 s[%d:%d], -1' % (S_T + 12, S_T + 13))
        a('s_cbranch_scc1 %s' % Lpd)
        a('s_sleep %d' % sleep)
        a('s_sub_u32 s%d, s%d, 1' % (S_SPIN, S_SPIN))
        a('s_cmp_lg_u32 s%d, 0' % S_SPIN)
        a('s_cbranch_scc1 %s' % Lp)
        a.label(Lpd)

    VA, VA1, VTM, VP, VPB, VAL, VQ = 4, 2, 5, 6, 7, 8, 3
    VTR = 9
    MRUN, LRUN = 13, 14
    S8 = 16
    a('v_and_b32 v%d, 15, v1' % T)
    a('v_lshlrev_b32 v%d, 10, v%d' % (VA, T))
    a('v_lshrrev_b32 v%d, 4, v1' % (T + 1))
    a('v_lshl_add_u32 v%d, v%d, 8, v%d' % (VA, T + 1, VA))
    a('v_lshl_add_u32 v%d, v%d, 4, v%d' % (VQ, T, VA))
    a('s_lshl_b32 s7, s%d, 14' % sHh)
    a('s_add_u32 s7, s7, 0x%x' % G.QST)
    a('v_add_u32 v%d, s7, v%d' % (VQ, VQ))
    a('v_and_b32 v%d, 3, v1' % (T + 2))
    a('v_lshl_add_u32 v%d, v%d, 6, v%d' % (VA, T + 2, VA))
    a('v_bfe_u32 v%d, v1, 2, 2' % (T + 2))
    a('v_lshl_add_u32 v%d, v%d, 4, v%d' % (VA, T + 2, VA))
    a('s_lshl_b32 s7, s%d, 14' % sKt)
    a('v_add_u32 v%d, s7, v%d' % (VA, VA))
    a('v_add_u32 v%d, 0x10000, v%d' % (VA1, VA))
    a('s_lshl_b32 s7, s%d, 6' % sHh)
    a('s_add_u32 s7, s7, 0x%x' % G.TMAX)
    a('v_lshl_add_u32 v%d, v%d, 2, s7' % (VTM, T))
    a('s_lshl_b32 s7, s%d, 10' % sKt)
    a('s_lshl_b32 s%d, s%d, 9' % (sOff, sHh))
    a('s_add_u32 s7, s7, s%d' % sOff)
    a('s_add_u32 s7, s7, 0x%x' % G.PBUF)
    a('v_lshl_add_u32 v%d, v%d, 5, s7' % (VP, T))
    a('v_lshl_add_u32 v%d, v%d, 3, v%d' % (VP, T + 1, VP))
    a('v_and_b32 v%d, 31, v1' % (T + 2))
    a('v_lshlrev_b32 v%d, 5, v%d' % (VPB, T + 2))
    a('v_lshrrev_b32 v%d, 5, v1' % (T + 3))
    a('v_lshl_add_u32 v%d, v%d, 4, v%d' % (VPB, T + 3, VPB))
    a('v_add_u32 v%d, 0x%x, v%d' % (VPB, G.PBUF, VPB))
    a('v_lshlrev_b32 v%d, 2, v%d' % (VAL, T + 2))
    a('v_add_u32 v%d, 0x%x, v%d' % (VAL, G.ALPHA, VAL))
    a('v_bfe_u32 v%d, v1, 2, 2' % (T + 2))
    a('v_lshl_add_u32 v%d, v%d, 3, v%d' % (T + 4, T + 3, T + 2))
    a('v_lshlrev_b32 v%d, 10, v%d' % (T + 4, T + 4))
    a('v_and_b32 v%d, 1, v1' % (T + 5))
    a('v_lshl_add_u32 v%d, v%d, 3, v%d' % (T + 4, T + 5, T + 4))
    a('s_lshl_b32 s7, s%d, 8' % sKt)
    a('v_add_u32 v%d, s7, v%d' % (T + 4, T + 4))
    a('v_bfe_u32 v%d, v1, 4, 1' % (T + 5))
    a('v_lshlrev_b32 v%d, 1, v%d' % (T + 5, T + 5))
    a('v_bfe_u32 v%d, v1, 1, 1' % T)
    a('v_or_b32 v%d, v%d, v%d' % (T + 5, T + 5, T))
    a('s_lshl_b32 s7, s%d, 3' % sHh)
    a('v_or_b32 v%d, s7, v%d' % (T + 5, T + 5))
    a('v_lshlrev_b32 v%d, 2, v%d' % (T + 2, T + 2))
    a('v_xor_b32 v%d, v%d, v%d' % (T + 5, T + 5, T + 2))
    a('v_lshlrev_b32 v%d, 1, v%d' % (T + 3, T + 3))
    a('v_xor_b32 v%d, v%d, v%d' % (T + 5, T + 5, T + 3))
    for hf in range(2):
        for ct in range(2):
            a('v_xor_b32 v%d, %d, v%d' % (T, (4 * ct) ^ hf, T + 5))
            a('v_lshl_add_u32 v%d, v%d, 4, v%d' % (VTR + 2 * hf + ct, T, T + 4))
            if hf:
                a('v_add_u32 v%d, 0x1000, v%d' % (VTR + 2 * hf + ct, VTR + 2 * hf + ct))
    a('v_mov_b32 v%d, 0xff800000' % MRUN)
    a('v_mov_b32 v%d, 0' % LRUN)
    a('v_cmp_gt_u32 s[%d:%d], 16, v1' % (S_MK, S_MK + 1))
    a('s_cmp_eq_u32 s%d, 0' % sKt)
    a('s_cselect_b32 s%d, 0xffff, 0' % S_MK2)
    a('s_mov_b32 s%d, 0' % (S_MK2 + 1))
    g.get_nonce(T, T + 1)
    vm.wait('st1')
    g.stamp(vm, 1, T)
    if o.apoll:
        LW0 = a.uniq('WF')
        a('s_cmp_lg_u32 s%d, 0' % S_WAVE)
        a('s_cbranch_scc1 %s' % LW0)
        keep = list(vm.q)
        a('s_setprio 3')
        poll_flags(2, 'A', sleep=2)
        vm.q = keep
        g.lds_signal(G.C_FL, T, T + 1)
        a('s_setprio 0')
        a.label(LW0)
    g.lds_wait(G.C_QST, 4, T, T + 1, sleep=1)
    g.stamp(vm, 2, T)
    for ks in range(16):
        a('v_xor_b32 v%d, 0x%x, v%d' % (T + (ks & 1), ks << 4, VQ))
        a('ds_read_b128 %s, v%d' % (vr(Q + 4 * ks, 4), T + (ks & 1)))
    a('s_lshl_b32 s7, s%d, 12' % S_WAVE)
    a('s_add_u32 s7, s7, 0x%x' % G.QST)
    a('v_lshl_add_u32 v%d, v1, 4, s7' % VQ)
    sync()
    for i in range(4):
        a('ds_write_b128 v%d, %s offset:%d' % (VQ, vr(ST1 + 4 * i, 4), i * 1024))
    g.lds_signal(G.C_X1, T + 6, T + 7)
    g.stamp(vm, 3, T)
    a('s_setprio %d' % o.bap)

    AOB = [24, 28, T + 4]

    def scores2(wait0, wait1):
        for t in range(2):
            w = (wait0, wait1)[t]
            if w:
                g.lds_wait(w[0], w[1], T + 2, T + 3, sleep=0)

            def rd(n):
                vt = T + (n % 3)
                a('v_xor_b32 v%d, 0x%x, v%d' % (vt, n << 4, VA1 if t else VA))
                a('ds_read_b128 %s, v%d' % (vr(AOB[n % 3], 4), vt))
            rd(0)
            rd(1)
            for ks in range(16):
                if ks + 2 < 16:
                    rd(ks + 2)
                    a('s_waitcnt lgkmcnt(2)')
                else:
                    a('s_waitcnt lgkmcnt(%d)' % (15 - ks))
                a('v_mfma_f32_16x16x32_bf16 %s, %s, %s, %s' % (
                    vr(S8 + 4 * t, 4), vr(AOB[ks % 3], 4), vr(Q + 4 * ks, 4), '0' if ks == 0 else vr(S8 + 4 * t, 4)))
        a('v_max3_f32 v%d, v%d, v%d, v%d' % (T, S8, S8 + 1, S8 + 2))
        a('v_max3_f32 v%d, v%d, v%d, v%d' % (T, T, S8 + 3, S8 + 4))
        a('v_max3_f32 v%d, v%d, v%d, v%d' % (T, T, S8 + 5, S8 + 6))
        a('v_max_f32 v%d, v%d, v%d' % (T, T, S8 + 7))
        a('v_mov_b32 v%d, v%d' % (T + 1, T))
        a('v_permlane32_swap_b32 v%d, v%d' % (T, T + 1))
        a('v_max_f32 v%d, v%d, v%d' % (T, T, T + 1))
        a('v_mov_b32 v%d, v%d' % (T + 1, T))
        a('v_permlane16_swap_b32 v%d, v%d' % (T, T + 1))
        a('v_max_f32 v%d, v%d, v%d' % (T, T, T + 1))
        a('s_lshl_b32 s7, s%d, 7' % sKt)
        a('v_add_u32 v%d, s7, v%d' % (T + 1, VTM))
        a('s_mov_b64 exec, s[%d:%d]' % (S_MK, S_MK + 1))
        a('ds_write_b32 v%d, v%d' % (T + 1, T))
        a('s_mov_b64 exec, -1')

    def softmax(last):
        for k in range(4):
            a('ds_read_b32 v%d, v%d offset:%d' % (T + k, VTM, k * 128))
        a('s_waitcnt lgkmcnt(0)')
        a('v_max3_f32 v%d, v%d, v%d, v%d' % (T, T, T + 1, T + 2))
        a('v_max_f32 v%d, v%d, v%d' % (T, T, T + 3))
        a('v_mul_f32 v%d, s%d, v%d' % (T, sC, T))
        a('v_max_f32 v%d, v%d, v%d' % (T, T, MRUN))
        a('v_sub_f32 v%d, v%d, v%d' % (T + 1, MRUN, T))
        a('v_exp_f32 v%d, v%d' % (T + 1, T + 1))
        a('v_mov_b32 v%d, v%d' % (MRUN, T))
        for k in range(8):
            a('v_fma_f32 v%d, v%d, s%d, -v%d' % (S8 + k, S8 + k, sC, T))
        for k in range(8):
            a('v_exp_f32 v%d, v%d' % (S8 + k, S8 + k))
        for k in range(4):
            a('v_cvt_pk_bf16_f32 v%d, v%d, v%d' % (24 + k, S8 + 2 * k, S8 + 2 * k + 1))
        a('ds_write_b64 v%d, v[24:25]' % VP)
        a('ds_write_b64 v%d, v[26:27] offset:4096' % VP)
        a('v_add_u32 v%d, 0x%x, v%d' % (T + 2, (G.ALPHA - G.TMAX) & 0xffffffff, VTM))
        a('s_mov_b64 exec, s[%d:%d]' % (S_MK2, S_MK2 + 1))
        a('ds_write_b32 v%d, v%d' % (T + 2, T + 1))
        a('s_mov_b64 exec, -1')
        a('v_mul_f32 v%d, v%d, v%d' % (LRUN, LRUN, T + 1))
        for st in (4, 2, 1):
            for k in range(st):
                a('v_add_f32 v%d, v%d, v%d' % (S8 + k, S8 + k, S8 + k + st))
        a('v_add_f32 v%d, v%d, v%d' % (LRUN, LRUN, S8))
        if last:
            a('v_mov_b32 v%d, v%d' % (T, LRUN))
            a('v_permlane32_swap_b32 v%d, v%d' % (LRUN, T))
            a('v_add_f32 v%d, v%d, v%d' % (LRUN, LRUN, T))
            a('v_mov_b32 v%d, v%d' % (T, LRUN))
            a('v_permlane16_swap_b32 v%d, v%d' % (LRUN, T))
            a('v_add_f32 v%d, v%d, v%d' % (LRUN, LRUN, T))
            a('s_lshl_b32 s7, s%d, 7' % sKt)
            a('s_add_u32 s7, s7, 0x%x' % (G.LBUF - G.TMAX))
            a('v_add_u32 v%d, s7, v%d' % (T + 1, VTM))
            a('v_add_u32 v%d, 0x%x, v%d' % (T + 2, G.MBUF - G.TMAX, VTM))
            a('s_mov_b64 exec, s[%d:%d]' % (S_MK, S_MK + 1))
            a('ds_write_b32 v%d, v%d' % (T + 1, LRUN))
            a('s_mov_b64 exec, s[%d:%d]' % (S_MK2, S_MK2 + 1))
            a('ds_write_b32 v%d, v%d' % (T + 2, MRUN))
            a('s_mov_b64 exec, -1')

    def ctx(first):
        PB = 16
        CO = [24, 28, T, T + 4]
        if not first:
            a('ds_read_b32 v15, v%d' % VAL)

        def rd(kk):
            if kk == 4:
                for v in range(4):
                    a('v_add_u32 v%d, 0x10000, v%d' % (VTR + v, VTR + v))
            a('ds_read_b128 %s, v%d offset:%d' % (vr(PB + 4 * (kk & 1), 4), VPB, kk * 1024))
            for ct in range(2):
                c = CO[(2 * kk + ct) & 3]
                a('ds_read_b64_tr_b16 v[%d:%d], v%d offset:%d' % (c, c + 1, VTR + ct, (kk & 3) * 16384))
                a('ds_read_b64_tr_b16 v[%d:%d], v%d offset:%d' % (c + 2, c + 3, VTR + 2 + ct, (kk & 3) * 16384))
        rd(0)
        if not first:
            a('s_waitcnt lgkmcnt(5)')
            for k in range(32):
                a('v_mul_f32 v%d, v15, v%d' % (ACC + k, ACC + k))
        for kk in range(8):
            if kk == 5:
                a('v_mov_b32 v3, 0x%x' % (G.C_X2 if first else G.C_FL))
                a('v_mov_b32 v15, 1')
                a('s_mov_b64 exec, 1')
                a('ds_add_u32 v3, v15')
                a('s_mov_b64 exec, -1')
            if kk < 7:
                rd(kk + 1)
                a('s_waitcnt lgkmcnt(7)')
            else:
                a('s_waitcnt lgkmcnt(2)')
            for ct in range(2):
                if ct == 1:
                    a('s_waitcnt lgkmcnt(%d)' % (5 if kk < 7 else 0))
                c = CO[(2 * kk + ct) & 3]
                a('v_mfma_f32_32x32x16_bf16 %s, %s, %s, %s' % (
                    vr(ACC + 16 * ct, 16), vr(c, 4), vr(PB + 4 * (kk & 1), 4),
                    '0' if (first and kk == 0) else vr(ACC + 16 * ct, 16)))
        if first:
            for v in range(4):
                a('v_add_u32 v%d, 0xffff0000, v%d' % (VTR + v, VTR + v))

    scores2(None, (G.C_X1, 8))
    sync()
    softmax(False)
    sync()
    ctx(True)
    g.lds_signal(G.C_S0, T + 2, T + 3)
    vm.wait_all()
    g.lds_signal(G.C_CLR2, T + 2, T + 3)
    g.stamp(vm, 4, T)
    g.lds_wait(G.C_X2, 8, T + 2, T + 3, sleep=0)
    a('s_lshl_b32 s7, s%d, 13' % S_WAVE)
    a('v_lshl_add_u32 v%d, v1, 4, s7' % T)
    for i in range(8):
        a('ds_write_b128 v%d, %s offset:%d' % (T, vr(ST2 + 4 * i, 4), i * 1024))
    g.lds_signal(G.C_X3, T + 2, T + 3)
    g.stamp(vm, 5, T)
    scores2((G.C_X3, 8), (G.C_Q3, 4))
    WV = Q
    VE, VO = 96, 97
    a('v_lshrrev_b32 v%d, 4, v1' % T)
    a('v_bfe_u32 v%d, v1, 1, 3' % (T + 1))
    a('s_lshl_b32 s7, s%d, 21' % sCh)
    a('s_lshl_b32 s%d, s%d, 18' % (sOff, S_WAVE))
    a('s_add_u32 s7, s7, s%d' % sOff)
    a('s_lshl_b32 s%d, s%d, 8' % (sOff, S_H))
    a('s_add_u32 s7, s7, s%d' % sOff)
    for par, V in ((0, VE), (1, VO)):
        a('v_xor_b32 v%d, v%d, v%d' % (V, T + 1, T))
        if par:
            a('v_xor_b32 v%d, 4, v%d' % (V, V))
        a('v_lshlrev_b32 v%d, 5, v%d' % (V, V))
        a('v_and_b32 v%d, 1, v1' % (T + 2))
        a('v_lshl_add_u32 v%d, v%d, 4, v%d' % (V, T + 2, V))
        a('v_lshl_add_u32 v%d, v%d, 13, v%d' % (V, T, V))
        a('v_add_u32 v%d, s7, v%d' % (V, V))
    a('s_mov_b32 s%d, 0' % sOff)
    for k in range(8):
        vm.issue('buffer_load_dwordx4 %s, v%d, %s, s%d offen nt' % (
            vr(WV + 4 * k, 4), VO if k & 1 else VE, srd(SRD_B), sOff), 'wuv')
        a('s_add_u32 s%d, s%d, 32768' % (sOff, sOff))
    sync()
    softmax(True)
    sync()
    L0 = a.uniq('BML')
    a('s_cmp_lg_u32 s%d, 7' % S_WAVE)
    a('s_cbranch_scc1 %s' % L0)
    a('v_and_b32 v%d, 31, v1' % T)
    a('v_lshlrev_b32 v%d, 2, v%d' % (T + 1, T))
    a('v_add_u32 v%d, 0x%x, v%d' % (T + 1, G.LBUF, T + 1))
    for k in range(4):
        a('ds_read_b32 v%d, v%d offset:%d' % (16 + k, T + 1, k * 128))
    a('ds_read_b32 v20, v%d offset:%d' % (T + 1, G.MBUF - G.LBUF))
    a('s_waitcnt lgkmcnt(0)')
    a('v_add_f32 v16, v16, v17')
    a('v_add_f32 v18, v18, v19')
    a('v_add_f32 v21, v16, v18')
    mlb_addr(T)
    a('s_mov_b64 exec, 0xffffffff')
    a('buffer_store_dwordx2 v[20:21], v%d, %s, 0 offen sc1' % (T, srd(SRD_WS)))
    a('s_mov_b64 exec, -1')
    a.label(L0)
    VC = 98
    a('v_and_b32 v%d, 31, v1' % T)
    a('v_lshlrev_b32 v%d, 10, v%d' % (VC, T))
    a('v_lshrrev_b32 v%d, 5, v1' % (T + 1))
    a('v_and_b32 v%d, 7, v1' % T)
    a('v_xor_b32 v%d, v%d, v%d' % (T, T, T + 1))
    a('v_lshl_add_u32 v%d, v%d, 4, v%d' % (VC, T, VC))
    a('s_lshl_b32 s7, s%d, 7' % S_WAVE)
    a('v_add_u32 v%d, s7, v%d' % (VC, VC))
    a('s_lshl_b32 s7, s%d, 12' % S_WAVE)
    a('v_lshl_add_u32 v99, v1, 4, s7')
    a('s_and_b32 s7, s%d, 1' % S_WAVE)
    a('s_lshl_b32 s7, s7, 6')
    a('v_lshlrev_b32 v100, 4, v1')
    a('v_xor_b32 v100, s7, v100')
    ctx_row_base()
    ctx(False)
    g.stamp(vm, 6, T)
    for ct in range(2):
        for k in range(2):
            r0, r1 = ACC + 16 * ct + 8 * k, ACC + 16 * ct + 8 * k + 4
            for e in range(4):
                a('v_permlane32_swap_b32 v%d, v%d' % (r0 + e, r1 + e))
            d = 16 + 4 * (2 * ct + k)
            a('v_cvt_pk_bf16_f32 v%d, v%d, v%d' % (d, r0, r0 + 1))
            a('v_cvt_pk_bf16_f32 v%d, v%d, v%d' % (d + 1, r0 + 2, r0 + 3))
            a('v_cvt_pk_bf16_f32 v%d, v%d, v%d' % (d + 2, r1, r1 + 1))
            a('v_cvt_pk_bf16_f32 v%d, v%d, v%d' % (d + 3, r1 + 2, r1 + 3))
    g.lds_wait(G.C_FL, 8, T + 6, T + 7, sleep=0)
    for ct in range(2):
        for k in range(2):
            a('v_xor_b32 v%d, 0x%x, v%d' % (T + ((2 * ct + k) & 1), (4 * ct + 2 * k) << 4, VC))
            a('ds_write_b128 v%d, %s' % (T + ((2 * ct + k) & 1), vr(16 + 4 * (2 * ct + k), 4)))
    sync()
    for i in range(4):
        a('ds_read_b128 %s, v99 offset:%d' % (vr(16 + 4 * i, 4), i * 1024))
    for i in range(4):
        a('v_xor_b32 v%d, 0x%x, v100' % (T + (i & 1), i << 4))
        a('s_waitcnt lgkmcnt(%d)' % (3 - i))
        vm.issue('buffer_store_dwordx4 %s, v%d, %s, s%d offen sc1' % (
            vr(16 + 4 * i, 4), T + (i & 1), srd(SRD_WS), sX), 'ctx')
        a('s_add_u32 s%d, s%d, 65536' % (sX, sX))
    g.stamp(vm, 7, T)
    a('s_lshl_b32 s7, s%d, 13' % S_WAVE)
    a('s_add_u32 s7, s7, 0x%x' % G.RING1)
    a('v_lshl_add_u32 v%d, v1, 4, s7' % T)
    vm.wait('wuv')
    for k in range(8):
        a('ds_write_b128 v%d, %s offset:%d' % (T, vr(WV + 4 * k, 4), k * 1024))
    a('v_lshrrev_b32 v%d, 2, v1' % T)
    a('v_and_b32 v%d, 7, v%d' % (T + 1, T))
    a('v_xor_b32 v%d, s%d, v%d' % (T + 1, S_WAVE, T + 1))
    a('v_lshlrev_b32 v4, 8, v%d' % T)
    a('v_lshl_add_u32 v4, v%d, 5, v4' % (T + 1))
    a('v_and_b32 v%d, 3, v1' % (T + 1))
    a('v_lshl_add_u32 v4, v%d, 3, v4' % (T + 1))
    a('v_add_u32 v4, 0x%x, v4' % G.RING1)
    FA = 32
    FB = 64
    for k in range(32):
        a('v_mov_b32 v%d, 0' % (FB + k))
    a('v_and_b32 v%d, 15, v1' % T)
    a('v_cmp_gt_u32 s[%d:%d], 4, v%d' % (S_MK3, S_MK3 + 1, T))
    a('v_lshlrev_b32 v5, 9, v%d' % T)
    a('v_lshrrev_b32 v%d, 4, v1' % (T + 1))
    a('v_lshl_add_u32 v5, v%d, 4, v5' % (T + 1))
    a('v_add_u32 v5, 0x%x, v5' % G.CLAT)
    a('v_lshlrev_b32 v6, 8, v%d' % T)
    a('v_lshl_add_u32 v6, v%d, 4, v6' % (T + 1))
    a('s_lshl_b32 s7, s%d, 6' % sKt)
    a('s_lshl_b32 s%d, s%d, 3' % (sOff, sHh))
    a('s_add_u32 s7, s7, s%d' % sOff)
    a('s_add_u32 s7, s7, 0x%x' % G.OBUF)
    a('v_add_u32 v6, s7, v6')
    X = 96
    a('v_bfe_u32 v%d, v1, 2, 2' % T)
    a('v_lshlrev_b32 v12, 14, v%d' % T)
    a('v_lshrrev_b32 v%d, 4, v1' % (T + 1))
    a('v_lshl_add_u32 v12, v%d, 12, v12' % (T + 1))
    a('v_and_b32 v%d, 3, v1' % (T + 2))
    a('v_lshl_add_u32 v12, v%d, 4, v12' % (T + 2))
    a('s_lshl_b32 s7, s%d, 16' % S_H)
    a('s_lshl_b32 s%d, s%d, 9' % (sOff, sCh))
    a('s_add_u32 s7, s7, s%d' % sOff)
    a('s_lshl_b32 s%d, s%d, 6' % (sOff, S_WAVE))
    a('s_add_u32 s7, s7, s%d' % sOff)
    a('s_add_u32 s7, s7, 0x%x' % G.WS_CTX)
    a('v_add_u32 v12, s7, v12')
    WTB = G.PBUF
    a('v_lshlrev_b32 v13, 6, v%d' % T)
    a('v_lshl_add_u32 v13, v%d, 4, v13' % (T + 1))
    a('s_lshl_b32 s7, s%d, 8' % S_WAVE)
    a('s_add_u32 s7, s7, 0x%x' % WTB)
    a('v_add_u32 v13, s7, v13')
    a('v_lshl_add_u32 v14, v1, 2, s7')
    a('v_lshlrev_b32 v15, 8, v1')
    a('s_lshl_b32 s7, s%d, 3' % S_H)
    a('s_add_u32 s7, s7, 0x%x' % G.WS_MLB)
    a('v_add_u32 v15, s7, v15')
    a('v_lshlrev_b32 v7, 9, v%d' % T)
    a('v_and_b32 v%d, 1, v1' % (T + 1))
    a('v_lshl_add_u32 v7, v%d, 5, v7' % (T + 1))
    a('v_bfe_u32 v%d, v1, 1, 1' % (T + 1))
    a('v_lshl_add_u32 v7, v%d, 3, v7' % (T + 1))
    a('s_lshl_b32 s7, s%d, 6' % S_WAVE)
    a('s_add_u32 s7, s7, 0x%x' % G.CLAT)
    a('v_add_u32 v7, s7, v7')
    LW = a.uniq('WF')
    a('s_cmp_lg_u32 s%d, 0' % S_WAVE)
    a('s_cbranch_scc1 %s' % LW)
    poll_flags(3, 'B')
    a.label(LW)
    sync()
    for ks in range(8):
        a('ds_read_b64_tr_b16 v[%d:%d], v4 offset:%d' % (FA + 4 * ks, FA + 4 * ks + 1, ks * 8192))
        a('ds_read_b64_tr_b16 v[%d:%d], v4 offset:%d' % (FA + 4 * ks + 2, FA + 4 * ks + 3, ks * 8192 + 4096))
    g.stamp(vm, 8, T)
    Lm, Lmd = a.uniq('BM'), a.uniq('BMD')
    a('s_mov_b32 s%d, %d' % (S_SPIN, o.spin))
    a.label(Lm)
    a('buffer_load_dwordx2 v[16:17], v15, %s, 0 offen sc1' % srd(SRD_WS))
    a('s_waitcnt vmcnt(0)')
    vm.q = []
    g.any_sentinel([16, 17], T + 2)
    a('s_cbranch_vccz %s' % Lmd)
    a('s_sleep 1')
    a('s_sub_u32 s%d, s%d, 1' % (S_SPIN, S_SPIN))
    a('s_cmp_lg_u32 s%d, 0' % S_SPIN)
    a('s_cbranch_scc1 %s' % Lm)
    a.label(Lmd)
    for k in range(4):
        a('buffer_load_dwordx4 %s, v12, %s, 0 offen offset:%d sc1' % (vr(X + 4 * k, 4), srd(SRD_WS), k * 1024))
    a('v_mov_b32 v18, v16')
    for sh in (8, 4, 2, 1):
        a('v_max_f32_dpp v18, v18, v18 row_ror:%d row_mask:0xf bank_mask:0xf' % sh)
    a('v_sub_f32 v16, v16, v18')
    a('v_exp_f32 v16, v16')
    a('v_mul_f32 v17, v17, v16')
    for sh in (8, 4, 2, 1):
        a('v_add_f32_dpp v17, v17, v17 row_ror:%d row_mask:0xf bank_mask:0xf' % sh)
    a('v_rcp_f32 v17, v17')
    a('v_mul_f32 v16, v16, v17')
    a('ds_write_b32 v14, v16')
    a('s_waitcnt lgkmcnt(0)')
    a('ds_read_b128 v[20:23], v13')
    Lh, Lh2, Lhd = a.uniq('BH'), a.uniq('BH2'), a.uniq('BHD')
    a('s_mov_b32 s%d, %d' % (S_SPIN, o.spin))
    a('s_branch %s' % Lh2)
    a.label(Lh)
    for k in range(4):
        a('buffer_load_dwordx4 %s, v12, %s, 0 offen offset:%d sc1' % (vr(X + 4 * k, 4), srd(SRD_WS), k * 1024))
    a.label(Lh2)
    a('s_waitcnt vmcnt(0)')
    g.any_sentinel(list(range(X, X + 16)), T + 2)
    a('s_cbranch_vccz %s' % Lhd)
    a('s_sleep 1')
    a('s_sub_u32 s%d, s%d, 1' % (S_SPIN, S_SPIN))
    a('s_cmp_lg_u32 s%d, 0' % S_SPIN)
    a('s_cbranch_scc1 %s' % Lh)
    a.label(Lhd)
    g.stamp(vm, 13, T)
    U = 112
    for k in range(4):
        g.unpack8(U + 8 * k, X + 4 * k)
    a('s_waitcnt lgkmcnt(0)')
    AC = 24
    for k in range(4):
        for e in range(4):
            g.pkfma_bcast(AC + 2 * e, U + 8 * k + 2 * e, 20 + k, first=(k == 0))
    for e in range(8):
        a('v_mov_b32 v%d, v%d' % (U + e, AC + e))
    for e in range(8):
        a('v_permlane32_swap_b32 v%d, v%d' % (AC + e, U + e))
    for e in range(8):
        a('v_add_f32 v%d, v%d, v%d' % (AC + e, AC + e, U + e))
    for e in range(8):
        a('v_mov_b32 v%d, v%d' % (U + e, AC + e))
    for e in range(8):
        a('v_permlane16_swap_b32 v%d, v%d' % (AC + e, U + e))
    for e in range(8):
        a('v_add_f32 v%d, v%d, v%d' % (AC + e, AC + e, U + e))
    for k in range(4):
        a('v_cvt_pk_bf16_f32 v%d, v%d, v%d' % (20 + k, AC + 2 * k, AC + 2 * k + 1))
    a('s_mov_b64 exec, 0xffff')
    a('ds_write_b64 v7, v[20:21]')
    a('ds_write_b64 v7, v[22:23] offset:16')
    a('s_mov_b64 exec, -1')
    sync()
    a('s_mov_b64 exec, s[%d:%d]' % (S_MK3, S_MK3 + 1))
    for ks in range(8):
        a('ds_read_b128 %s, v5 offset:%d' % (vr(FB + 4 * ks, 4), ks * 64))
    a('s_mov_b64 exec, -1')
    a('s_waitcnt lgkmcnt(0)')
    for ks in range(8):
        a('v_mfma_f32_16x16x32_bf16 %s, %s, %s, %s' % (
            vr(16 + 4 * (ks & 1), 4), vr(FA + 4 * ks, 4), vr(FB + 4 * ks, 4),
            '0' if ks < 2 else vr(16 + 4 * (ks & 1), 4)))
    for k in range(4):
        a('v_add_f32 v%d, v%d, v%d' % (16 + k, 16 + k, 20 + k))
    a('v_cvt_pk_bf16_f32 v20, v16, v17')
    a('v_cvt_pk_bf16_f32 v21, v18, v19')
    a('s_mov_b64 exec, s[%d:%d]' % (S_MK3, S_MK3 + 1))
    a('ds_write_b64 v6, v[20:21]')
    a('s_mov_b64 exec, -1')
    g.lds_signal(G.C_O, T, T + 1)
    g.stamp(vm, 9, T)

    a('s_cmp_ge_u32 s%d, 2' % S_WAVE)
    a('s_cbranch_scc1 L_END')
    Y = 32
    LB = a.uniq('FRB')
    LJ = a.uniq('FRJ')
    a('s_mul_i32 s7, s%d, %d' % (sBi, 192 * 128))
    a('s_cmp_eq_u32 s%d, 0' % S_WAVE)
    a('s_cselect_b32 s%d, 0, 0x%x' % (sOff, G.WS_YB - G.WS_YA))
    a('s_add_u32 s%d, s%d, 0x%x' % (sOff, sOff, G.WS_YA))
    a('s_add_u32 s7, s7, s%d' % sOff)
    a('v_lshlrev_b32 v4, 4, v1')
    a('v_add_u32 v4, s7, v4')
    a('s_lshl_b32 s7, s%d, 11' % sBq)
    a('s_lshl_b32 s%d, s%d, 6' % (sOff, sJ))
    a('s_add_u32 s7, s7, s%d' % sOff)
    a('s_lshl_b32 s%d, s%d, 10' % (sOff, S_WAVE))
    a('s_add_u32 s7, s7, s%d' % sOff)
    a('v_lshlrev_b32 v5, 3, v1')
    a('v_add_u32 v5, s7, v5')
    a('s_cmp_eq_u32 s%d, 1' % S_WAVE)
    a('s_cbranch_scc1 %s' % LB)
    poll_flags(3, 'A')
    g.stamp(vm, 10, T)
    Ly, Lyd = a.uniq('FY'), a.uniq('FYD')
    a('s_mov_b32 s%d, %d' % (S_SPIN, o.spin))
    a.label(Ly)
    for i in range(4):
        a('buffer_load_dwordx4 %s, v4, %s, 0 offen offset:%d sc1' % (vr(Y + 4 * i, 4), srd(SRD_WS), i * 1024))
    a('s_waitcnt vmcnt(0)')
    g.any_sentinel(range(Y, Y + 16), T + 2)
    a('s_cbranch_vccz %s' % Lyd)
    a('s_sleep 1')
    a('s_sub_u32 s%d, s%d, 1' % (S_SPIN, S_SPIN))
    a('s_cmp_lg_u32 s%d, 0' % S_SPIN)
    a('s_cbranch_scc1 %s' % Ly)
    a.label(Lyd)
    for st in (8, 4):
        for k in range(st):
            a('v_add_f32 v%d, v%d, v%d' % (Y + k, Y + k, Y + k + st))
    a('s_branch %s' % LJ)
    a.label(LB)
    Lz, Lzd = a.uniq('FZ'), a.uniq('FZD')
    a('s_mov_b32 s%d, %d' % (S_SPIN, o.spin))
    a('s_mov_b32 s%d, 4096' % sOff)
    a.label(Lz)
    for i in range(8):
        a('buffer_load_dwordx4 %s, v4, %s, %s offen offset:%d sc1' % (
            vr(Y + 4 * i, 4), srd(SRD_WS), '0' if i < 4 else 's%d' % sOff, (i & 3) * 1024))
    a('s_waitcnt vmcnt(0)')
    g.any_sentinel(range(Y, Y + 32), T + 2)
    a('s_cbranch_vccz %s' % Lzd)
    a('s_sleep 1')
    a('s_sub_u32 s%d, s%d, 1' % (S_SPIN, S_SPIN))
    a('s_cmp_lg_u32 s%d, 0' % S_SPIN)
    a('s_cbranch_scc1 %s' % Lz)
    a.label(Lzd)
    for st in (16, 8, 4):
        for k in range(st):
            a('v_add_f32 v%d, v%d, v%d' % (Y + k, Y + k, Y + k + st))
    a.label(LJ)
    a.fence(4)
    for k in range(4):
        a('v_add_f32_dpp v%d, v%d, v%d row_ror:8 row_mask:0xf bank_mask:0xf' % (Y + k, Y + k, Y + k))
    for k in range(4):
        a('v_mov_b32 v%d, v%d' % (12 + k, Y + k))
    for k in range(4):
        a('v_permlane16_swap_b32 v%d, v%d' % (Y + k, 12 + k))
    for k in range(4):
        a('v_add_f32 v%d, v%d, v%d' % (Y + k, Y + k, 12 + k))
    for k in range(4):
        a('v_mov_b32 v%d, v%d' % (12 + k, Y + k))
    for k in range(4):
        a('v_permlane32_swap_b32 v%d, v%d' % (Y + k, 12 + k))
    for k in range(4):
        a('v_add_f32 v%d, v%d, v%d' % (Y + k, Y + k, 12 + k))
    a('v_cvt_pk_bf16_f32 v8, v%d, v%d' % (Y, Y + 1))
    a('v_cvt_pk_bf16_f32 v9, v%d, v%d' % (Y + 2, Y + 3))
    a('s_mov_b64 exec, 0xff')
    a('buffer_store_dwordx2 v[8:9], v5, %s, 0 offen' % srd(SRD_C))
    a('s_mov_b64 exec, -1')
    vm.q = []
    g.stamp(vm, 12, T)
    a('s_endpgm')
```

```python
import sys
import os
sys.path.insert(0, os.path.dirname(os.path.abspath(__file__)))
from asmlib import Asm, vr, sr

NAME = 'concat_heads__sliding_block_cached__compressed_kv_cla__decode'

class Opt:
    dev = False
    kd = 8
    kd1 = 2
    kn1 = 0
    bd = 10
    bd1 = 2
    bn1 = 4
    sd = 8
    va = 8
    m3 = True
    spin = 200000
    prof = 0
    nos3 = 0
    nob = 0
    noa = 0
    cpf = 0
    ofast = 0
    xmap = 0
    dpoll = 0
    lnt = 0
    snt = 0
    spread = 1
    q3e = 0
    bap = 0
    apoll = 0
    vk = 1
    late = 1
    asp = 0
    soft = 0
    woe = 8
    noclr = 0
    noswz = 0
    hold = 1
    only = 0
    warm = 1
    wnt = 1


RV = 8
NQ = 22

WS_QPART = 0x900000
WS_QABS = 0x000000
WS_MLA = 0x120000
WS_MLB = 0x124000
WS_FLAG = 0x130000
WS_OP = 0x140000
WS_YA = 0x200000
WS_YB = 0x380000
WS_CB = 0x700000
WS_CTX = 0x500000
QP_FAST = 0x100000
WS_OPF = 0xC00000
WS_TS = 0x800000
WS_SIZE = 0x1000000

RING0 = 0
RING1 = 65536
QST = 98304
SVC = 131072
MISC = 147456
C_CLEAR = MISC + 0
C_Q0 = MISC + 4
C_Q1 = MISC + 8
C_ML = MISC + 12
C_O = MISC + 16
C_ATT = MISC + 20
C_W = MISC + 24
C_F2 = MISC + 28
C_CLR2 = MISC + 32
C_N = MISC + 36
C_F1 = MISC + 40
C_FL = MISC + 44
C_GO = MISC + 48
C_QST = MISC + 52
C_OB = MISC + 56
C_S0 = MISC + 60
NONCE = MISC + 64
C_Q3 = MISC + 72
C_X1 = MISC + 76
C_X2 = MISC + 80
C_X3 = MISC + 84
C_X4 = MISC + 88
QBUF = MISC + 256
MLBUF = MISC + 2304
OBUF = MISC + 2560
PBUF = MISC + 4608
TMAX = MISC + 12800
LBUF = MISC + 13312
CLAT = MISC + 13824
ALPHA = MISC + 15872
MBUF = MISC + 16000
CBUF = MISC + 256
LDS_BYTES = 163840

SCALE_LOG2E = 0.08838834764831845 * 1.4426950408889634


def f32bits(x):
    import struct
    return struct.unpack('<I', struct.pack('<f', x))[0]


P_AX, P_K, P_V, P_WQ, P_WO, P_BX, P_CKV, P_BWQ, P_WUK, P_WUV, P_BWO, P_OUT, P_DBG, P_WS = [8 + 2 * i for i in range(14)]
S_WAVE, S_H, S_R, S_ISB = 3, 4, 5, 6
SRD_WS, SRD_DBG = 36, 40
SRD_A, SRD_B, SRD_C, SRD_D = 44, 48, 52, 56
S_T = 60
S_SPIN = 80
S_TS = 82
S_EX = 84
S_MK = 86
S_MK2 = 88
S_MK3 = 90
S_MK4 = 92
S_NON = 94


class VM:
    def __init__(self, a):
        self.a = a
        self.q = []

    def issue(self, text, tag=None):
        self.a(text)
        self.q.append(tag)

    def wait(self, tag):
        if tag not in self.q:
            return
        idx = max(i for i, t in enumerate(self.q) if t == tag)
        n = len(self.q) - 1 - idx
        self.a('s_waitcnt vmcnt(%d)' % n)
        self.q = self.q[idx + 1:]

    def wait_n(self, n):
        if len(self.q) > n:
            self.a('s_waitcnt vmcnt(%d)' % n)
            self.q = self.q[len(self.q) - n:]

    def wait_all(self):
        self.a('s_waitcnt vmcnt(0)')
        self.q = []


def mk_srd(a, d, p, nbytes):
    a('s_mov_b32 s%d, s%d' % (d, p))
    a('s_and_b32 s%d, s%d, 0xffff' % (d + 1, p + 1))
    a('s_mov_b32 s%d, 0x%x' % (d + 2, nbytes))
    a('s_mov_b32 s%d, 0x20000' % (d + 3))


def srd(d):
    return 's[%d:%d]' % (d, d + 3)


class Gen:
    def __init__(self, opt):
        self.o = opt
        self.a = Asm()

    def stamp(self, vm, idx, vt, clk=False):
        if not self.o.dev:
            return
        if self.o.only and not (self.o.only >> idx) & 1:
            return
        a = self.a
        a('%s s[%d:%d]' % ('s_memtime' if clk else 's_memrealtime', S_TS, S_TS + 1))
        a('s_waitcnt lgkmcnt(0)')
        a('v_mov_b32 v%d, s%d' % (vt, S_TS))
        a('v_mov_b32 v%d, s%d' % (vt + 1, S_TS + 1))
        a('s_mul_i32 s%d, s2, 12' % S_TS)
        a('s_add_u32 s%d, s%d, s%d' % (S_TS, S_TS, S_WAVE))
        a('s_lshl_b32 s%d, s%d, 7' % (S_TS, S_TS))
        a('s_add_u32 s%d, s%d, 0x%x' % (S_TS, S_TS, WS_TS + idx * 8))
        a('v_mov_b32 v%d, s%d' % (vt + 2, S_TS))
        a('s_mov_b64 s[%d:%d], exec' % (S_EX, S_EX + 1))
        a('s_mov_b64 exec, 1')
        vm.issue('buffer_store_dwordx2 v[%d:%d], v%d, %s, 0 offen' % (vt, vt + 1, vt + 2, srd(SRD_WS)), 'ts')
        a('s_mov_b64 exec, s[%d:%d]' % (S_EX, S_EX + 1))

    def lds_signal(self, addr, va, vb):
        a = self.a
        a('v_mov_b32 v%d, 0x%x' % (va, addr))
        a('v_mov_b32 v%d, 1' % vb)
        a('s_waitcnt lgkmcnt(0)')
        a('s_mov_b64 exec, 1')
        a('ds_add_u32 v%d, v%d' % (va, vb))
        a('s_mov_b64 exec, -1')

    def lds_wait(self, addr, target, va, vb, sleep=4):
        a = self.a
        L = a.uniq('LW')
        Ld = a.uniq('LWD')
        a('v_mov_b32 v%d, 0x%x' % (va, addr))
        a('s_mov_b32 s%d, %d' % (S_SPIN, self.o.spin * 8))
        a.label(L)
        a('ds_read_b32 v%d, v%d' % (vb, va))
        a('s_waitcnt lgkmcnt(0)')
        a('v_readfirstlane_b32 s%d, v%d' % (S_T + 19, vb))
        a('s_cmp_ge_u32 s%d, %d' % (S_T + 19, target))
        a('s_cbranch_scc1 %s' % Ld)
        if sleep:
            a('s_sleep %d' % int(sleep))
        a('s_sub_u32 s%d, s%d, 1' % (S_SPIN, S_SPIN))
        a('s_cmp_lg_u32 s%d, 0' % S_SPIN)
        a('s_cbranch_scc1 %s' % L)
        a.label(Ld)

    def pkfma_bcast(self, dst, src, e, first=False):
        a = self.a
        if e % 2 == 0:
            m1, m2 = 'v[%d:%d]' % (e, e + 1), None
            if first:
                a('v_pk_mul_f32 v[%d:%d], v[%d:%d], %s op_sel_hi:[1,0]' % (dst, dst + 1, src, src + 1, m1))
            else:
                a('v_pk_fma_f32 v[%d:%d], v[%d:%d], %s, v[%d:%d] op_sel_hi:[1,0,1]' % (
                    dst, dst + 1, src, src + 1, m1, dst, dst + 1))
        else:
            m1 = 'v[%d:%d]' % (e - 1, e)
            if first:
                a('v_pk_mul_f32 v[%d:%d], v[%d:%d], %s op_sel:[0,1] op_sel_hi:[1,1]' % (
                    dst, dst + 1, src, src + 1, m1))
            else:
                a('v_pk_fma_f32 v[%d:%d], v[%d:%d], %s, v[%d:%d] op_sel:[0,1,0] op_sel_hi:[1,1,1]' % (
                    dst, dst + 1, src, src + 1, m1, dst, dst + 1))

    def unpack8(self, dst, src):
        a = self.a
        for k in range(4):
            a('v_lshlrev_b32 v%d, 16, v%d' % (dst + 2 * k, src + k))
            a('v_and_b32 v%d, 0xffff0000, v%d' % (dst + 2 * k + 1, src + k))

    def any_sentinel(self, regs, vt):
        a = self.a
        regs = list(regs)
        a('v_max_u32 v%d, v%d, v%d' % (vt, regs[0], regs[1]))
        i = 2
        while i + 1 < len(regs):
            a('v_max3_u32 v%d, v%d, v%d, v%d' % (vt, vt, regs[i], regs[i + 1]))
            i += 2
        if i < len(regs):
            a('v_max_u32 v%d, v%d, v%d' % (vt, vt, regs[i]))
        a('v_cmp_eq_u32 vcc, -1, v%d' % vt)

    def tags_bad(self, tagregs):
        a = self.a
        first = True
        for t in tagregs:
            if first:
                a('v_cmp_ne_u64 s[%d:%d], s[%d:%d], v[%d:%d]' % (S_MK4, S_MK4 + 1, S_NON, S_NON + 1, t, t + 1))
                first = False
            else:
                a('v_cmp_ne_u64 vcc, s[%d:%d], v[%d:%d]' % (S_NON, S_NON + 1, t, t + 1))
                a('s_or_b64 s[%d:%d], s[%d:%d], vcc' % (S_MK4, S_MK4 + 1, S_MK4, S_MK4 + 1))
        a('s_cmp_lg_u64 s[%d:%d], 0' % (S_MK4, S_MK4 + 1))

    def get_nonce(self, va, vb):
        a = self.a
        self.lds_wait(C_N, 1, va, vb, sleep=1)
        a('v_mov_b32 v%d, 0x%x' % (va, NONCE))
        a('ds_read_b64 v[%d:%d], v%d' % (va + 2, va + 3, va))
        a('s_waitcnt lgkmcnt(0)')
        a('v_readfirstlane_b32 s%d, v%d' % (S_NON, va + 2))
        a('v_readfirstlane_b32 s%d, v%d' % (S_NON + 1, va + 3))

    def set_flag(self, phase, va):
        a = self.a
        a('s_lshl_b32 s7, s%d, 3' % S_H)
        a('s_add_u32 s7, s7, s%d' % S_R)
        a('s_lshl_b32 s7, s7, 3')
        a('s_add_u32 s7, s7, 0x%x' % WS_FLAG)
        a('v_mov_b32 v%d, s7' % va)
        a('s_or_b32 s7, s%d, %d' % (S_NON, phase))
        a('v_mov_b32 v%d, s7' % (va + 2))
        a('v_mov_b32 v%d, s%d' % (va + 3, S_NON + 1))
        a('s_mov_b64 exec, 1')
        a('buffer_store_dwordx2 v[%d:%d], v%d, %s, 0 offen sc1' % (va + 2, va + 3, va, srd(SRD_WS)))
        a('s_mov_b64 exec, -1')

    def flag_ok(self, lo, level, sdst):
        a = self.a
        a('v_xor_b32 v%d, s%d, v%d' % (lo, S_NON, lo))
        a('v_xor_b32 v%d, s%d, v%d' % (lo + 1, S_NON + 1, lo + 1))
        a('v_subrev_u32 v%d, %d, v%d' % (lo, level, lo))
        a('v_cmp_ge_u32 s[%d:%d], %d, v%d' % (sdst, sdst + 1, 3 - level, lo))
        a('v_cmp_eq_u32 vcc, 0, v%d' % (lo + 1))
        a('s_and_b64 s[%d:%d], s[%d:%d], vcc' % (sdst, sdst + 1, sdst, sdst + 1))

    def nonce_fetch(self, t, wv):
        a, o = self.a, self.o
        L, Lm, Lp = a.uniq('FM'), a.uniq('FMM'), a.uniq('FMP')
        a('s_mov_b32 s%d, 0' % (S_NON + 1))
        a('s_cmp_lg_u32 s%d, %d' % (S_WAVE, wv))
        a('s_cbranch_scc1 %s' % L)
        a('v_mov_b32 v%d, 0' % t)
        a('s_cmp_lg_u32 s2, 0')
        a('s_cbranch_scc1 %s' % Lp)
        a('s_memrealtime s[%d:%d]' % (S_NON, S_NON + 1))
        a('s_waitcnt lgkmcnt(0)')
        a('s_lshl_b64 s[%d:%d], s[%d:%d], 2' % (S_NON, S_NON + 1, S_NON, S_NON + 1))
        a('s_or_b32 s%d, s%d, 0x80000000' % (S_NON + 1, S_NON + 1))
        a('v_mov_b32 v%d, s%d' % (t + 2, S_NON))
        a('v_mov_b32 v%d, s%d' % (t + 3, S_NON + 1))
        a('s_mov_b64 exec, 1')
        a('buffer_store_dwordx2 v[%d:%d], v%d, %s, 0 offen sc1' % (t + 2, t + 3, t, srd(SRD_DBG)))
        a('s_mov_b64 exec, -1')
        a('s_branch %s' % L)
        a.label(Lp)
        a('s_mov_b32 s%d, 0' % (S_NON + 1))
        a.label(L)

    def flag_master(self, t, wv):
        a, o = self.a, self.o
        L, Lm, Lg = a.uniq('FM'), a.uniq('FMM'), a.uniq('FMG')
        a('s_cmp_lg_u32 s%d, %d' % (S_WAVE, wv))
        a('s_cbranch_scc1 %s' % L)
        a('s_cmp_lg_u32 s%d, 0' % (S_NON + 1))
        a('s_cbranch_scc1 %s' % Lg)
        a('v_mov_b32 v%d, 0' % t)
        a('s_mov_b32 s%d, %d' % (S_SPIN, o.spin * 4))
        a.label(Lm)
        a('buffer_load_dwordx2 v[%d:%d], v%d, %s, 0 offen sc1' % (t + 2, t + 3, t, srd(SRD_DBG)))
        a('s_waitcnt vmcnt(0)')
        a('v_readfirstlane_b32 s%d, v%d' % (S_NON, t + 2))
        a('v_readfirstlane_b32 s%d, v%d' % (S_NON + 1, t + 3))
        a('s_cmp_lg_u32 s%d, 0' % (S_NON + 1))
        a('s_cbranch_scc1 %s' % Lg)
        a('s_sub_u32 s%d, s%d, 1' % (S_SPIN, S_SPIN))
        a('s_cmp_lg_u32 s%d, 0' % S_SPIN)
        a('s_cbranch_scc1 %s' % Lm)
        a.label(Lg)
        a('v_mov_b32 v%d, 0x%x' % (t, NONCE))
        a('v_mov_b32 v%d, s%d' % (t + 2, S_NON))
        a('v_mov_b32 v%d, s%d' % (t + 3, S_NON + 1))
        a('ds_write_b64 v%d, v[%d:%d]' % (t, t + 2, t + 3))
        self.lds_signal(C_N, t, t + 1)
        a.label(L)

    def entry(self):
        a = self.a
        if self.o.cpf:
            a('s_getpc_b64 s[98:99]')
        a('s_cmp_ge_u32 s2, 256')
        a('s_cbranch_scc1 L_END')
        a('s_load_dwordx16 s[8:23], s[0:1], 0')
        a('s_load_dwordx8 s[24:31], s[0:1], 64')
        a('s_load_dwordx4 s[32:35], s[0:1], 96')
        a('v_lshrrev_b32 v1, 6, v0')
        a('v_readfirstlane_b32 s%d, v1' % S_WAVE)
        a('v_and_b32 v1, 63, v0')
        a('s_and_b32 s%d, s2, 7' % S_H)
        a('s_lshr_b32 s7, s2, 6')
        a('s_lshl_b32 s7, s7, 3')
        a('s_or_b32 s%d, s%d, s7' % (S_H, S_H))
        a('s_lshr_b32 s%d, s2, 3' % S_R)
        a('s_and_b32 s%d, s%d, 7' % (S_R, S_R))
        if self.o.xmap:
            a('s_lshr_b32 s%d, s2, 3' % S_H)
            a('s_and_b32 s%d, s2, 7' % S_R)
        if self.o.spread:
            a('s_bitcmp1_b32 s2, 6')
            a('s_cselect_b32 s7, 0x%x, 0' % (0x75432610 ^ 0x54732106))
            a('s_xor_b32 s7, s7, 0x54732106')
            a('s_lshl_b32 s%d, s%d, 2' % (S_R, S_R))
            a('s_lshr_b32 s%d, s7, s%d' % (S_R, S_R))
            a('s_and_b32 s%d, s%d, 7' % (S_R, S_R))
        a('s_cmp_ge_u32 s%d, 6' % S_R)
        a('s_cselect_b32 s%d, 1, 0' % S_ISB)
        a('s_waitcnt lgkmcnt(0)')
        mk_srd(a, SRD_WS, P_WS, WS_SIZE)
        mk_srd(a, SRD_DBG, P_DBG, 256)
        self.nonce_fetch(160, 6)
        if self.o.cpf:
            LC = a.uniq('CPF')
            a('s_cmp_lg_u32 s%d, %d' % (S_WAVE, self.o.cpf))
            a('s_cbranch_scc1 %s' % LC)
            a('s_cmp_eq_u32 s%d, 0' % S_ISB)
            a('s_cbranch_scc1 %s' % LC)
            a('s_lshr_b32 s7, s2, 6')
            a('s_lshl_b32 s7, s7, 1')
            a('s_add_u32 s7, s7, s%d' % S_R)
            a('s_sub_u32 s7, s7, 6')
            a('s_lshl_b32 s7, s7, 12')
            a('v_lshl_add_u32 v150, v1, 4, s7')
            a('s_mov_b32 s7, L_CODE_END-%s_kernel-32' % NAME)
            for k in range(4):
                a('v_add_u32 v151, 0x%x, v150' % (k * 1024))
                a('v_min_u32 v151, s7, v151')
                a('v_mov_b32 v153, s99')
                a('v_add_co_u32 v152, vcc, s98, v151')
                a('v_addc_co_u32 v153, vcc, 0, v153, vcc')
                a('global_load_dwordx4 v[156:159], v[152:153], off')
            a.label(LC)
        L0 = a.uniq('Z')
        a('s_cmp_lg_u32 s%d, 8' % S_WAVE)
        a('s_cbranch_scc1 %s' % L0)
        a('v_lshlrev_b32 v2, 2, v1')
        a('v_add_u32 v2, 0x%x, v2' % MISC)
        a('v_mov_b32 v3, 0')
        a('ds_write_b32 v2, v3')
        a('s_waitcnt lgkmcnt(0)')
        a.label(L0)
        LA = a.uniq('ISA')
        a('s_cmp_eq_u32 s%d, 0' % S_ISB)
        a('s_cbranch_scc1 %s' % LA)
        a('s_cmp_ge_u32 s%d, 8' % S_WAVE)
        a('s_cbranch_scc1 L_BSVC')
        a('s_branch L_BATT')
        a.label(LA)

    def a_att(self):
        a, o = self.a, self.o
        vm = VM(a)
        KR, VRING, SC, QV, ACC, TMP = 32, 120, 8, 2, 152, 160
        VK = 6
        sB, sU, sF, sN, sOffK, sOffV, sBias, sLast, sC, sMl, sOp, sOpF = [S_T + i for i in range(12)]
        mk_srd(a, SRD_A, P_K, 134217728)
        mk_srd(a, SRD_B, P_V, 134217728)
        a('s_lshr_b32 s%d, s%d, 1' % (sB, S_WAVE))
        a('s_and_b32 s%d, s%d, 1' % (sU, S_WAVE))
        a('s_lshl_b32 s7, s%d, 7' % S_R)
        a('s_mul_i32 s%d, s7, 43691' % sF)
        a('s_lshr_b32 s%d, s%d, 17' % (sF, sF))
        a('s_add_u32 s7, s7, 128')
        a('s_mul_i32 s7, s7, 43691')
        a('s_lshr_b32 s7, s7, 17')
        a('s_sub_u32 s7, s7, s%d' % sF)
        if o.m3:
            a('s_sub_u32 s%d, s7, s%d' % (sN, sU))
            a('s_add_u32 s%d, s%d, 1' % (sN, sN))
            a('s_lshr_b32 s%d, s%d, 1' % (sN, sN))
            a('s_add_u32 s%d, s%d, s%d' % (sF, sF, sU))
            ST = 2
        else:
            a('s_add_u32 s%d, s7, 1' % sN)
            a('s_lshr_b32 s%d, s%d, 1' % (sN, sN))
            a('s_mul_i32 s%d, s%d, s%d' % (sC, sN, sU))
            a('s_add_u32 s%d, s%d, s%d' % (sF, sF, sC))
            a('s_lshr_b32 s7, s7, 1')
            a('s_cmp_eq_u32 s%d, 1' % sU)
            a('s_cselect_b32 s%d, s7, s%d' % (sN, sN))
            ST = 1
        a('s_lshl_b32 s7, s%d, 5' % sB)
        a('s_add_u32 s7, s7, s%d' % S_H)
        a('s_lshl_b32 s7, s7, 20')
        a('s_add_u32 s7, s7, 0xC0000')
        if o.noa:
            a('s_mov_b32 s7, 0x40000000')
        a('v_lshlrev_b32 v%d, 4, v1' % VK)
        a('v_add_u32 v%d, s7, v%d' % (VK, VK))
        a('s_lshl_b32 s%d, s%d, 10' % (sOffK, sF))
        a('s_mov_b32 s%d, s%d' % (sOffV, sOffK))
        a('s_add_u32 s%d, s%d, %d' % (sLast, sOffK, (NQ - 1) * ST * 1024))
        a('s_cmp_eq_u32 s%d, %d' % (sN, NQ))
        a('s_cselect_b32 s%d, s%d, 0x40000000' % (sLast, sLast))
        a('s_cselect_b32 s%d, 0, 0xff800000' % sBias)
        a('s_mov_b32 s%d, 0x%x' % (sC, f32bits(SCALE_LOG2E)))

        def ldk(j):
            so = sLast if j == NQ - 1 else sOffK
            vm.issue('buffer_load_dwordx4 %s, v%d, %s, s%d offen nt' % (vr(KR + 4 * j, 4), VK, srd(SRD_A), so),
                     ('K', j))
            if j < NQ - 2:
                a('s_add_u32 s%d, s%d, %d' % (sOffK, sOffK, ST * 1024))

        def vreg(j):
            if o.vk:
                return VRING + 4 * j if j < RV else KR + 4 * (j - RV)
            return VRING + 4 * (j % RV)

        def ldv(j):
            so = sLast if j == NQ - 1 else sOffV
            vm.issue('buffer_load_dwordx4 %s, v%d, %s, s%d offen nt' % (
                vr(vreg(j), 4), VK, srd(SRD_B), so), ('V', j))
            if j < NQ - 2:
                a('s_add_u32 s%d, s%d, %d' % (sOffV, sOffV, ST * 1024))

        D = o.kd
        a('s_waitcnt vmcnt(0)')
        a('s_lshl_b32 s7, s%d, 2' % S_H)
        a('s_add_u32 s7, s7, s%d' % sB)
        a('s_mul_i32 s7, s7, 12')
        a('s_lshl_b32 s%d, s%d, 1' % (sMl, S_R))
        a('s_add_u32 s7, s7, s%d' % sMl)
        a('s_add_u32 s7, s7, s%d' % sU)
        a('s_lshl_b32 s%d, s7, 9' % sOp)
        a('s_add_u32 s%d, s%d, 0x%x' % (sOp, sOp, WS_OP))
        a('s_lshl_b32 s%d, s7, 10' % sOpF)
        a('s_add_u32 s%d, s%d, 0x%x' % (sOpF, sOpF, WS_OPF))
        a('s_lshl_b32 s%d, s7, 3' % sMl)
        a('s_add_u32 s%d, s%d, 0x%x' % (sMl, sMl, WS_MLA))
        a('v_mov_b32 v%d, s%d' % (TMP, sMl))
        a('v_lshlrev_b32 v%d, 3, v1' % (TMP + 1))
        a('v_mov_b32 v%d, -1' % (TMP + 2))
        a('v_mov_b32 v%d, -1' % (TMP + 3))
        vm.issue('buffer_store_dwordx2 v[%d:%d], v%d, %s, s%d offen sc1' % (
            TMP + 2, TMP + 3, TMP + 1, srd(SRD_WS), sOp), 'clr')
        a('s_mov_b64 exec, 1')
        vm.issue('buffer_store_dwordx2 v[%d:%d], v%d, %s, 0 offen sc1' % (TMP + 2, TMP + 3, TMP, srd(SRD_WS)), 'clr')
        a('s_mov_b64 exec, -1')
        self.stamp(vm, 0, TMP)
        for j in range(NQ):
            if o.hold and j == o.soft:
                if o.hold == 2:
                    self.lds_wait(C_Q1, 2, TMP, TMP + 1, sleep=2)
                else:
                    self.lds_wait(C_GO, 7 if o.late else 6, TMP, TMP + 1, sleep=2)
            vm.wait_n((o.kd1 if j < o.kn1 else D) - 1)
            ldk(j)
            if j == D + 1:
                vm.wait('clr')
                self.lds_signal(C_CLR2, TMP, TMP + 1)
        nv = 0
        for j in range(D):
            vm.wait_n(D - 1)
            ldv(nv)
            nv += 1
        self.stamp(vm, 1, TMP)
        self.lds_wait(C_Q0, 2, TMP, TMP + 1)
        self.get_nonce(TMP, TMP + 1)
        a('v_and_b32 v%d, 15, v1' % TMP)
        a('v_lshlrev_b32 v%d, 4, v%d' % (TMP, TMP))
        a('s_lshl_b32 s7, s%d, 8' % sB)
        a('s_add_u32 s7, s7, 0x%x' % QBUF)
        a('v_add_u32 v%d, s7, v%d' % (TMP, TMP))
        a('ds_read_b128 %s, v%d' % (vr(QV, 4), TMP))
        vm.wait(('K', NQ - 1))
        a('s_waitcnt lgkmcnt(0)')
        self.stamp(vm, 2, TMP)
        extra_at = {4: 1, 12: 1}
        for g0 in range(0, NQ, 4):
            js = list(range(g0, min(g0 + 4, NQ)))
            for k in range(4):
                for j in js:
                    a('v_dot2_f32_bf16 v%d, v%d, v%d, %s' % (SC + j, KR + 4 * j + k, QV + k,
                                                            '0' if k == 0 else 'v%d' % (SC + j)))
            for sh in (8, 4, 2, 1):
                for j in js:
                    a('v_add_f32_dpp v%d, v%d, v%d row_ror:%d row_mask:0xf bank_mask:0xf' % (
                        SC + j, SC + j, SC + j, sh))
            if o.vk:
                while nv < NQ and (nv < RV or nv - RV <= js[-1]):
                    ldv(nv)
                    nv += 1
            elif g0 in extra_at and nv < min(RV, NQ):
                ldv(nv)
                nv += 1
        a('v_add_f32 v%d, s%d, v%d' % (SC + NQ - 1, sBias, SC + NQ - 1))
        M, M2 = TMP, TMP + 1
        a('v_max3_f32 v%d, v%d, v%d, v%d' % (M, SC, SC + 1, SC + 2))
        j = 3
        while j + 1 < NQ:
            a('v_max3_f32 v%d, v%d, v%d, v%d' % (M, M, SC + j, SC + j + 1))
            j += 2
        if j < NQ:
            a('v_max_f32 v%d, v%d, v%d' % (M, M, SC + j))
        a('v_mov_b32 v%d, v%d' % (M2, M))
        a('v_permlane32_swap_b32 v%d, v%d' % (M, M2))
        a('v_max_f32 v%d, v%d, v%d' % (M, M, M2))
        a('v_mov_b32 v%d, v%d' % (M2, M))
        a('v_permlane16_swap_b32 v%d, v%d' % (M, M2))
        a('v_max_f32 v%d, v%d, v%d' % (M, M, M2))
        a('v_mul_f32 v%d, s%d, v%d' % (M, sC, M))
        for j in range(NQ):
            a('v_fma_f32 v%d, v%d, s%d, -v%d' % (SC + j, SC + j, sC, M))
        for j in range(NQ):
            a('v_exp_f32 v%d, v%d' % (SC + j, SC + j))
        L, L2 = TMP + 2, TMP + 3
        a('v_add_f32 v%d, v%d, v%d' % (L, SC, SC + 1))
        a('v_add_f32 v%d, v%d, v%d' % (L2, SC + 2, SC + 3))
        for j in range(4, NQ, 2):
            a('v_add_f32 v%d, v%d, v%d' % (L, L, SC + j))
            a('v_add_f32 v%d, v%d, v%d' % (L2, L2, SC + j + 1))
        a('v_add_f32 v%d, v%d, v%d' % (L, L, L2))
        a('v_mov_b32 v%d, v%d' % (L2, L))
        a('v_permlane32_swap_b32 v%d, v%d' % (L, L2))
        a('v_add_f32 v%d, v%d, v%d' % (L, L, L2))
        a('v_mov_b32 v%d, v%d' % (L2, L))
        a('v_permlane16_swap_b32 v%d, v%d' % (L, L2))
        a('v_add_f32 v%d, v%d, v%d' % (M + 1, L, L2))
        a('v_mov_b32 v%d, s%d' % (TMP + 4, sMl))
        a('s_mov_b64 exec, 1')
        vm.issue('buffer_store_dwordx2 v[%d:%d], v%d, %s, 0 offen sc1' % (M, M + 1, TMP + 4, srd(SRD_WS)), 'ml')
        a('s_mov_b64 exec, -1')
        self.stamp(vm, 3, TMP)
        while nv < min(o.va, NQ):
            ldv(nv)
            nv += 1
        for j in range(NQ):
            vm.wait(('V', j))
            vs = vreg(j)
            self.unpack8(TMP, vs)
            for k in range(4):
                self.pkfma_bcast(ACC + 2 * k, TMP + 2 * k, SC + j, first=(j == 0))
            while nv < NQ and nv <= j + o.va and nv - RV <= j:
                ldv(nv)
                nv += 1
        self.stamp(vm, 4, TMP)
        for k in range(4):
            a('v_permlane32_swap_b32 v%d, v%d' % (ACC + k, ACC + k + 4))
        for k in range(4):
            a('v_add_f32 v%d, v%d, v%d' % (ACC + k, ACC + k, ACC + k + 4))
        for k in range(2):
            a('v_permlane16_swap_b32 v%d, v%d' % (ACC + k, ACC + k + 2))
        for k in range(2):
            a('v_add_f32 v%d, v%d, v%d' % (ACC + k, ACC + k, ACC + k + 2))
        a('v_and_b32 v%d, 15, v1' % TMP)
        a('v_lshlrev_b32 v%d, 5, v%d' % (TMP, TMP))
        a('v_bfe_u32 v%d, v1, 5, 1' % (TMP + 1))
        a('v_lshl_add_u32 v%d, v%d, 4, v%d' % (TMP, TMP + 1, TMP))
        a('v_bfe_u32 v%d, v1, 4, 1' % (TMP + 1))
        a('v_lshl_add_u32 v%d, v%d, 3, v%d' % (TMP, TMP + 1, TMP))
        if o.ofast:
            a('v_mov_b32 v%d, s%d' % (ACC + 2, S_NON))
            a('v_mov_b32 v%d, s%d' % (ACC + 3, S_NON + 1))
            a('v_lshlrev_b32 v%d, 1, v%d' % (TMP + 1, TMP))
            vm.issue('buffer_store_dwordx4 %s, v%d, %s, s%d offen' % (vr(ACC, 4), TMP + 1, srd(SRD_WS), sOpF), 'o')
        vm.issue('buffer_store_dwordx2 v[%d:%d], v%d, %s, s%d offen sc1' % (ACC, ACC + 1, TMP, srd(SRD_WS), sOp), 'o')
        self.lds_signal(C_O, TMP, TMP + 1)
        self.stamp(vm, 5, TMP)
        a('s_endpgm')

    def a_prologue(self):
        a, o = self.a, self.o
        vm = VM(a)
        sU, sMat, sCh, sOff, sRb, sV = [S_T + i for i in range(6)]
        XR, WR, UK, ACC, XF, WT = 10, 26, 58, 74, 106, 138
        VQP, VQA, VT, SN = 2, 3, 6, 146
        LUK, LG, LDONE = a.uniq('PUK'), a.uniq('PG'), a.uniq('PD')
        a('s_setprio 3')
        a('s_cmp_ge_u32 s%d, 6' % S_WAVE)
        a('s_cbranch_scc1 %s' % LUK)
        a('s_lshr_b32 s7, s%d, 1' % S_WAVE)
        a('s_mul_i32 s7, s7, 6')
        a('s_add_u32 s%d, s7, s%d' % (sU, S_R))
        a('s_and_b32 s%d, s%d, 1' % (sCh, S_WAVE))
        LNB = a.uniq('NB')
        a('s_cmp_lt_u32 s%d, 16' % sU)
        a('s_cbranch_scc1 %s' % LNB)
        a('s_barrier')
        a('s_branch %s' % LG)
        a.label(LNB)
        a('s_lshr_b32 s%d, s%d, 3' % (sMat, sU))
        a('s_and_b32 s%d, s%d, 7' % (sRb, sU))
        a('s_cmp_eq_u32 s%d, 0' % sMat)
        a('s_cselect_b32 s%d, s%d, s%d' % (S_T + 10, P_AX, P_BX))
        a('s_cselect_b32 s%d, s%d, s%d' % (S_T + 11, P_AX + 1, P_BX + 1))
        a('s_cselect_b32 s%d, s%d, s%d' % (S_T + 12, P_WQ, P_BWQ))
        a('s_cselect_b32 s%d, s%d, s%d' % (S_T + 13, P_WQ + 1, P_BWQ + 1))
        mk_srd(a, SRD_A, S_T + 10, 4096)
        mk_srd(a, SRD_B, S_T + 12, 4194304)
        a('v_lshrrev_b32 v%d, 3, v1' % VT)
        a('v_lshlrev_b32 v%d, 16, v%d' % (VT + 2, VT))
        a('v_and_b32 v%d, 7, v1' % (VT + 3))
        a('v_lshl_add_u32 v%d, v%d, 4, v%d' % (VT + 2, VT + 3, VT + 2))
        a('s_lshl_b32 s7, s%d, 19' % sRb)
        a('s_lshl_b32 s%d, s%d, 8' % (sOff, S_H))
        a('s_add_u32 s7, s7, s%d' % sOff)
        a('s_lshl_b32 s%d, s%d, 7' % (sOff, sCh))
        a('s_add_u32 s7, s7, s%d' % sOff)
        a('v_add_u32 v%d, s7, v%d' % (VT + 2, VT + 2))
        a('v_lshlrev_b32 v%d, 4, v%d' % (VT + 1, VT))
        a('s_lshl_b32 s7, s%d, 7' % sRb)
        a('v_add_u32 v%d, s7, v%d' % (VT + 1, VT + 1))
        for b in range(4):
            vm.issue('buffer_load_dwordx4 %s, v%d, %s, 0 offen offset:%d' % (
                vr(XR + 4 * b, 4), VT + 1, srd(SRD_A), b * 1024), 'x')
        a('s_mov_b32 s%d, 0' % sOff)
        for i in range(8):
            vm.issue('buffer_load_dwordx4 %s, v%d, %s, s%d offen nt' % (
                vr(WR + 4 * i, 4), VT + 2, srd(SRD_B), sOff), ('W', i))
            if i < 7:
                a('s_add_u32 s%d, s%d, 8192' % (sOff, sOff))
        a('s_barrier')
        self.stamp(vm, 6, 150)
        a('s_lshl_b32 s7, s%d, 5' % sMat)
        a('s_add_u32 s7, s7, s%d' % S_H)
        a('s_lshl_b32 s7, s7, 3')
        a('s_add_u32 s7, s7, s%d' % sRb)
        a('s_lshl_b32 s7, s7, 1')
        a('s_add_u32 s7, s7, s%d' % sCh)
        a('s_lshl_b32 s7, s7, 10')
        a('s_add_u32 s7, s7, 0x%x' % WS_QPART)
        a('v_lshlrev_b32 v%d, 4, v1' % VQP)
        a('v_add_u32 v%d, s7, v%d' % (VQP, VQP))
        vm.wait('x')
        for b in range(4):
            self.unpack8(XF + 8 * b, XR + 4 * b)
        for i in range(8):
            vm.wait(('W', i))
            self.unpack8(WT, WR + 4 * i)
            for b in range(4):
                for k in range(4):
                    self.pkfma_bcast(ACC + 8 * b + 2 * k, WT + 2 * k, XF + 8 * b + i, first=(i == 0))
        for v in range(16):
            a('v_permlane32_swap_b32 v%d, v%d' % (ACC + v, ACC + v + 16))
        for v in range(16):
            a('v_add_f32 v%d, v%d, v%d' % (ACC + v, ACC + v, ACC + v + 16))
        for v in range(8):
            a('v_permlane16_swap_b32 v%d, v%d' % (ACC + v, ACC + v + 8))
        for v in range(8):
            a('v_add_f32 v%d, v%d, v%d' % (ACC + v, ACC + v, ACC + v + 8))
        for v in range(8):
            a('v_add_f32_dpp v%d, v%d, v%d row_ror:8 row_mask:0xf bank_mask:0xf' % (ACC + v, ACC + v, ACC + v))
        a('v_and_b32 v%d, 8, v1' % VT)
        a('v_cmp_ne_u32 vcc, 0, v%d' % VT)
        for k in range(4):
            a('v_cndmask_b32 v%d, v%d, v%d, vcc' % (ACC + 8 + k, ACC + k, ACC + 4 + k))
        PS = ACC + 16
        a('v_cvt_pk_bf16_f32 v%d, v%d, v%d' % (PS, ACC + 8, ACC + 9))
        a('v_cvt_pk_bf16_f32 v%d, v%d, v%d' % (PS + 1, ACC + 10, ACC + 11))
        self.stamp(vm, 12, 150)
        self.get_nonce(VT, VT + 1)
        a('v_mov_b32 v%d, s%d' % (PS + 2, S_NON))
        a('v_mov_b32 v%d, s%d' % (PS + 3, S_NON + 1))
        a('s_mov_b32 s%d, 0x%x' % (sOff, QP_FAST))
        vm.issue('buffer_store_dwordx4 %s, v%d, %s, s%d offen' % (vr(PS, 4), VQP, srd(SRD_WS), sOff), 'qp')
        vm.issue('buffer_store_dwordx4 %s, v%d, %s, 0 offen sc1' % (vr(PS, 4), VQP, srd(SRD_WS)), 'qp')
        self.stamp(vm, 7, 150)
        a.label(LG)
        a('s_cmp_ge_u32 s%d, 4' % S_WAVE)
        a('s_cbranch_scc1 %s' % LDONE)
        self.get_nonce(VT, VT + 1)
        a('s_lshr_b32 s%d, s%d, 1' % (sMat, S_WAVE))
        a('s_lshl_b32 s7, s%d, 5' % sMat)
        a('s_add_u32 s7, s7, s%d' % S_H)
        a('s_lshl_b32 s7, s7, 14')
        a('s_lshl_b32 s%d, s%d, 10' % (sOff, sCh))
        a('s_add_u32 s7, s7, s%d' % sOff)
        a('s_add_u32 s7, s7, 0x%x' % WS_QPART)
        a('v_lshlrev_b32 v%d, 4, v1' % VQP)
        a('v_add_u32 v%d, s7, v%d' % (VQP, VQP))
        GR = 82
        Lg, Lgd = a.uniq('GQ'), a.uniq('GQD')
        a('s_mov_b32 s%d, %d' % (S_SPIN, o.spin))
        a.label(Lg)
        a('s_and_b32 s7, s%d, 3' % S_SPIN)
        a('s_cmp_eq_u32 s7, 1')
        a('s_cselect_b32 s%d, 0, 0x%x' % (sOff, QP_FAST))
        for rp in range(8):
            a('buffer_load_dwordx4 %s, v%d, %s, s%d offen offset:%d sc1' % (
                vr(GR + 4 * rp, 4), VQP, srd(SRD_WS), sOff, (rp & 1) * 2048))
            if rp & 1:
                a('s_add_u32 s%d, s%d, 4096' % (sOff, sOff))
        a('s_waitcnt vmcnt(0)')
        vm.q = []
        if o.dev:
            Lx = a.uniq('PX')
            a('s_cmp_lg_u32 s%d, %d' % (S_SPIN, o.spin))
            a('s_cbranch_scc1 %s' % Lx)
            self.stamp(vm, 11, 150)
            a.label(Lx)
        self.tags_bad(range(GR + 2, GR + 32, 4))
        a('s_cbranch_scc0 %s' % Lgd)
        a('s_sleep 1')
        a('s_sub_u32 s%d, s%d, 1' % (S_SPIN, S_SPIN))
        a('s_cmp_lg_u32 s%d, 0' % S_SPIN)
        a('s_cbranch_scc1 %s' % Lg)
        a.label(Lgd)
        G = WR
        for rp in range(8):
            for k in range(2):
                a('v_lshlrev_b32 v%d, 16, v%d' % (G + 4 * rp + 2 * k, GR + 4 * rp + k))
                a('v_and_b32 v%d, 0xffff0000, v%d' % (G + 4 * rp + 2 * k + 1, GR + 4 * rp + k))
        for st in (16, 8, 4):
            for k in range(st):
                a('v_add_f32 v%d, v%d, v%d' % (G + k, G + k, G + k + st))
        a('v_cvt_pk_bf16_f32 v%d, v%d, v%d' % (G + 4, G, G + 1))
        a('v_cvt_pk_bf16_f32 v%d, v%d, v%d' % (G + 5, G + 2, G + 3))
        a('v_lshrrev_b32 v%d, 4, v1' % VT)
        a('v_lshlrev_b32 v%d, 8, v%d' % (VT, VT))
        a('v_and_b32 v%d, 7, v1' % (VT + 1))
        a('v_lshl_add_u32 v%d, v%d, 4, v%d' % (VT, VT + 1, VT))
        a('v_and_b32 v%d, 8, v1' % (VT + 1))
        a('v_add_u32 v%d, v%d, v%d' % (VT, VT + 1, VT))
        a('s_lshl_b32 s7, s%d, 10' % sMat)
        a('s_lshl_b32 s%d, s%d, 7' % (sOff, sCh))
        a('s_add_u32 s7, s7, s%d' % sOff)
        a('s_add_u32 s7, s7, 0x%x' % QBUF)
        a('v_add_u32 v%d, s7, v%d' % (VT, VT))
        a('ds_write_b64 v%d, v[%d:%d]' % (VT, G + 4, G + 5))
        a('s_lshl_b32 s7, s%d, 2' % sMat)
        a('s_add_u32 s7, s7, 0x%x' % C_Q0)
        a('v_mov_b32 v%d, s7' % VT)
        a('v_mov_b32 v%d, 1' % (VT + 1))
        a('s_waitcnt lgkmcnt(0)')
        a('s_mov_b64 exec, 1')
        a('ds_add_u32 v%d, v%d' % (VT, VT + 1))
        a('s_mov_b64 exec, -1')
        self.stamp(vm, 8, 150)
        a('s_branch %s' % LDONE)
        a.label(LUK)
        vm.q = []
        a('s_sub_u32 s7, s%d, 6' % S_WAVE)
        a('s_mul_i32 s7, s7, 6')
        a('s_add_u32 s%d, s7, s%d' % (sV, S_R))
        mk_srd(a, SRD_C, P_WUK, 4194304)
        a('v_lshrrev_b32 v%d, 4, v1' % VT)
        a('v_and_b32 v%d, 15, v1' % (VT + 1))
        a('v_cmp_gt_u32 s[%d:%d], 4, v%d' % (S_MK, S_MK + 1, VT + 1))
        a('v_lshlrev_b32 v%d, 15, v%d' % (VQA, VT + 1))
        a('v_lshl_add_u32 v%d, v%d, 3, v%d' % (VQA, VT, VQA))
        a('s_lshl_b32 s7, s%d, 10' % S_H)
        a('s_lshl_b32 s%d, s%d, 5' % (sOff, sV))
        a('s_add_u32 s7, s7, s%d' % sOff)
        a('s_add_u32 s7, s7, 0x%x' % WS_QABS)
        a('s_cmp_ge_u32 s%d, 32' % sV)
        a('s_cselect_b32 s7, 0x40000000, s7')
        a('v_add_u32 v%d, s7, v%d' % (VQA, VQA))
        a('v_mov_b32 v%d, -1' % SN)
        a('v_mov_b32 v%d, -1' % (SN + 1))
        a('s_mov_b64 exec, s[%d:%d]' % (S_MK, S_MK + 1))
        vm.issue('buffer_store_dwordx2 %s, v%d, %s, 0 offen sc1' % (vr(SN, 2), VQA, srd(SRD_WS)), 'clr')
        a('s_mov_b64 exec, -1')
        a('s_barrier')
        self.flag_master(150, 6)
        a('v_lshlrev_b32 v%d, 15, v%d' % (VT + 2, VT))
        a('v_lshl_add_u32 v%d, v%d, 4, v%d' % (VT + 2, VT + 1, VT + 2))
        a('s_lshl_b32 s7, s%d, 17' % sV)
        a('s_lshl_b32 s%d, s%d, 8' % (sOff, S_H))
        a('s_add_u32 s7, s7, s%d' % sOff)
        a('v_add_u32 v%d, s7, v%d' % (VT + 2, VT + 2))
        a('s_mov_b32 s%d, 0' % sOff)
        for i in range(4):
            vm.issue('buffer_load_dwordx4 %s, v%d, %s, s%d offen nt' % (
                vr(UK + 4 * i, 4), VT + 2, srd(SRD_C), sOff), 'uk')
            if i < 3:
                a('s_add_u32 s%d, s%d, 8192' % (sOff, sOff))
        vm.wait('clr')
        self.lds_signal(C_CLEAR, VT + 2, VT + 3)
        LF = a.uniq('F1')
        a('s_cmp_lg_u32 s%d, 8' % S_WAVE)
        a('s_cbranch_scc1 %s' % LF)
        self.get_nonce(VT + 2, VT + 3)
        self.lds_wait(C_CLEAR, 6, VT + 2, VT + 3, sleep=1)
        self.set_flag(1, VT + 2)
        a.label(LF)
        self.lds_wait(C_Q1, 2, VT + 2, VT + 3, sleep=1)
        QB, TQ = ACC, ACC + 16
        a('v_lshlrev_b32 v%d, 4, v%d' % (VT + 2, VT + 1))
        a('v_add_u32 v%d, 0x%x, v%d' % (VT + 2, QBUF + 1024, VT + 2))
        for b in range(4):
            a('ds_read_b128 %s, v%d offset:%d' % (vr(QB + 4 * b, 4), VT + 2, b * 256))
        vm.wait('uk')
        a('s_waitcnt lgkmcnt(0)')
        for k in range(4):
            for i in range(4):
                for b in range(4):
                    t = TQ + 4 * b + i
                    a('v_dot2_f32_bf16 v%d, v%d, v%d, %s' % (t, UK + 4 * i + k, QB + 4 * b + k,
                                                            '0' if k == 0 else 'v%d' % t))
        for sh in (8, 4, 2, 1):
            for t in range(TQ, TQ + 16):
                a('v_add_f32_dpp v%d, v%d, v%d row_ror:%d row_mask:0xf bank_mask:0xf' % (t, t, t, sh))
        PK = QB
        for b in range(4):
            a('v_cvt_pk_bf16_f32 v%d, v%d, v%d' % (PK + 2 * b, TQ + 4 * b, TQ + 4 * b + 1))
            a('v_cvt_pk_bf16_f32 v%d, v%d, v%d' % (PK + 2 * b + 1, TQ + 4 * b + 2, TQ + 4 * b + 3))
        for b in range(1, 4):
            a('v_cmp_eq_u32 vcc, %d, v%d' % (b, VT + 1))
            a('v_cndmask_b32 v%d, v%d, v%d, vcc' % (PK, PK, PK + 2 * b))
            a('v_cndmask_b32 v%d, v%d, v%d, vcc' % (PK + 1, PK + 1, PK + 2 * b + 1))
        a('s_mov_b64 exec, s[%d:%d]' % (S_MK, S_MK + 1))
        a('buffer_store_dwordx2 v[%d:%d], v%d, %s, 0 offen sc1' % (PK, PK + 1, VQA, srd(SRD_WS)))
        a('s_mov_b64 exec, -1')
        self.lds_signal(C_GO, VT + 2, VT + 3)
        LH = a.uniq('F2H')
        a('s_cmp_lg_u32 s%d, 8' % S_WAVE)
        a('s_cbranch_scc1 %s' % LH)
        self.lds_wait(C_GO, 6, VT + 2, VT + 3, sleep=0)
        self.set_flag(2, VT + 2)
        if o.late:
            a('s_waitcnt vmcnt(0)')
            self.stamp(vm, 10, 150)
            self.lds_signal(C_GO, VT + 2, VT + 3)
        a.label(LH)
        self.stamp(vm, 9, 150)
        a.label(LDONE)
        a('s_setprio 0')
        a('s_cmp_ge_u32 s%d, 8' % S_WAVE)
        a('s_cbranch_scc1 L_ASVC')

    def a_svc(self):
        a, o = self.a, self.o
        vm = VM(a)
        a.label('L_ASVC')
        sS, sOff = S_T, S_T + 3
        VY, VT = 4, 6
        RAW, FR, X, ML, W, OP = 32, 64, 96, 120, 144, 8
        a('s_setprio %d' % o.asp)
        a('s_waitcnt vmcnt(0)')
        self.get_nonce(VT, VT + 1)
        a('s_sub_u32 s%d, s%d, 8' % (sS, S_WAVE))
        mk_srd(a, SRD_D, P_WO, 4194304)
        self.stamp(vm, 14, 150, clk=True)
        self.stamp(vm, 0, 150)
        a('v_lshrrev_b32 v%d, 4, v1' % VT)
        a('v_and_b32 v%d, 15, v1' % (VT + 1))
        a('v_cmp_gt_u32 s[%d:%d], 4, v%d' % (S_MK, S_MK + 1, VT + 1))
        a('v_cmp_gt_u32 s[%d:%d], 8, v%d' % (S_MK4 + 4, S_MK4 + 5, VT + 1))
        a('s_lshl_b32 s7, s%d, 2' % S_R)
        a('s_add_u32 s7, s7, s%d' % sS)
        a('s_mul_i32 s7, s7, 192')
        a('s_add_u32 s7, s7, s%d' % S_H)
        a('s_lshl_b32 s7, s7, 7')
        a('s_add_u32 s7, s7, 0x%x' % WS_YA)
        a('s_cmp_ge_u32 s%d, 4' % S_R)
        a('s_cselect_b32 s7, 0x40000000, s7')
        a('v_and_b32 v%d, 3, v1' % (VT + 2))
        a('v_mul_u32_u24 v%d, 0x%x, v%d' % (VY, 16 * 192 * 128, VT + 2))
        a('v_lshl_add_u32 v%d, v%d, 4, v%d' % (VY, VT, VY))
        a('v_bfe_u32 v%d, v1, 2, 1' % (VT + 2))
        a('v_lshl_add_u32 v%d, v%d, 6, v%d' % (VY, VT + 2, VY))
        a('v_add_u32 v%d, s7, v%d' % (VY, VY))
        for k in range(4):
            a('v_mov_b32 v%d, -1' % (X + k))
        a('s_mov_b64 exec, s[%d:%d]' % (S_MK4 + 4, S_MK4 + 5))
        vm.issue('buffer_store_dwordx4 %s, v%d, %s, 0 offen sc1' % (vr(X, 4), VY, srd(SRD_WS)), 'clr2')
        a('s_mov_b64 exec, -1')
        a('v_bfe_u32 v%d, v1, 1, 3' % (VT + 1))
        a('s_lshl_b32 s7, s%d, 17' % S_H)
        a('s_lshl_b32 s%d, s%d, 15' % (sOff, sS))
        a('s_add_u32 s7, s7, s%d' % sOff)
        a('s_lshl_b32 s%d, s%d, 8' % (sOff, S_R))
        a('s_add_u32 s7, s7, s%d' % sOff)
        a('s_cmp_ge_u32 s%d, 4' % S_R)
        a('s_cselect_b32 s7, 0x40000000, s7')
        for par, V in ((0, 160), (1, 161)):
            a('v_xor_b32 v%d, v%d, v%d' % (V, VT + 1, VT))
            if par:
                a('v_xor_b32 v%d, 4, v%d' % (V, V))
            a('v_lshlrev_b32 v%d, 5, v%d' % (V, V))
            a('v_and_b32 v162, 1, v1')
            a('v_lshl_add_u32 v%d, v162, 4, v%d' % (V, V))
            a('v_lshl_add_u32 v%d, v%d, 10, v%d' % (V, VT, V))
            a('v_add_u32 v%d, s7, v%d' % (V, V))
        a('s_mov_b32 s%d, 0' % sOff)
        for p in range(8):
            vm.issue('buffer_load_dwordx4 %s, v%d, %s, s%d offen nt' % (
                vr(RAW + 4 * p, 4), 160 + (p & 1), srd(SRD_D), sOff), 'wo')
            if p < 7:
                a('s_add_u32 s%d, s%d, 4096' % (sOff, sOff))
        vm.wait('clr2')
        self.lds_signal(C_CLR2, 163, 164)
        L3 = a.uniq('F2')
        a('s_cmp_lg_u32 s%d, 0' % sS)
        a('s_cbranch_scc1 %s' % L3)
        self.lds_wait(C_CLR2, 12, 163, 164, sleep=4)
        self.set_flag(3, 164)
        a.label(L3)
        a('s_cmp_ge_u32 s%d, 4' % S_R)
        a('s_cbranch_scc1 L_END')
        a('s_lshl_b32 s7, s%d, 13' % sS)
        a('v_lshl_add_u32 v%d, v1, 4, s7' % (VT + 2))
        a('v_lshrrev_b32 v%d, 2, v1' % VT)
        a('v_and_b32 v%d, 7, v%d' % (VT + 1, VT))
        a('v_lshlrev_b32 v%d, 8, v%d' % (VT, VT))
        a('v_and_b32 v%d, 3, v1' % (VT + 3))
        a('v_lshl_add_u32 v%d, v%d, 3, v%d' % (VT, VT + 3, VT))
        a('s_lshl_b32 s7, s%d, 1' % sS)
        a('v_xor_b32 v%d, s7, v%d' % (VT + 1, VT + 1))
        a('v_lshl_add_u32 v160, v%d, 5, v%d' % (VT + 1, VT))
        a('v_xor_b32 v%d, 1, v%d' % (VT + 1, VT + 1))
        a('v_lshl_add_u32 v161, v%d, 5, v%d' % (VT + 1, VT))
        vm.wait('wo')
        for p in range(8):
            a('ds_write_b128 v%d, %s offset:%d' % (VT + 2, vr(RAW + 4 * p, 4), p * 1024))
        self.lds_signal(C_W, 163, 164)
        self.lds_wait(C_W, 4, 163, 164, sleep=2)
        for t in range(2):
            for p in range(8):
                r = FR + 16 * t + 4 * (p >> 1) + 2 * (p & 1)
                a('ds_read_b64_tr_b16 v[%d:%d], v%d offset:%d' % (r, r + 1, 160 + t, p * 4096))
            a('s_waitcnt lgkmcnt(0)')
        self.stamp(vm, 6, 164)
        a('s_setprio 0')
        a('v_and_b32 v%d, 7, v1' % VT)
        a('v_lshlrev_b32 v%d, 3, v%d' % (VT, VT))
        a('s_lshl_b32 s7, s%d, 6' % S_H)
        a('s_add_u32 s7, s7, 0x%x' % WS_FLAG)
        a('v_add_u32 v%d, s7, v%d' % (VT, VT))
        a('s_mov_b32 s%d, 0xc0c0c0c0' % S_MK3)
        a('s_mov_b32 s%d, 0xc0c0c0c0' % (S_MK3 + 1))
        Lp, Lpd = a.uniq('GF'), a.uniq('GFD')
        a('s_mov_b32 s%d, %d' % (S_SPIN, o.spin))
        a.label(Lp)
        a('buffer_load_dwordx2 v[%d:%d], v%d, %s, 0 offen sc1' % (VT + 2, VT + 3, VT, srd(SRD_WS)))
        a('s_waitcnt vmcnt(0)')
        vm.q = []
        self.flag_ok(VT + 2, 3, S_MK2)
        a('s_or_b64 s[%d:%d], s[%d:%d], s[%d:%d]' % (S_MK2, S_MK2 + 1, S_MK2, S_MK2 + 1, S_MK3, S_MK3 + 1))
        a('s_cmp_eq_u64 s[%d:%d], -1' % (S_MK2, S_MK2 + 1))
        a('s_cbranch_scc1 %s' % Lpd)
        a('s_sleep 16')
        a('s_sub_u32 s%d, s%d, 1' % (S_SPIN, S_SPIN))
        a('s_cmp_lg_u32 s%d, 0' % S_SPIN)
        a('s_cbranch_scc1 %s' % Lp)
        a.label(Lpd)
        a('s_lshl_b32 s7, s%d, 2' % S_H)
        a('s_add_u32 s7, s7, s%d' % sS)
        a('s_mul_i32 s%d, s7, 96' % sOff)
        a('s_add_u32 s%d, s%d, 0x%x' % (sOff, sOff, WS_MLA))
        a('v_mov_b32 v%d, s%d' % (VT, sOff))
        a('s_mul_i32 s7, s7, 6144')
        a('s_add_u32 s7, s7, 0x%x' % WS_OP)
        a('v_lshl_add_u32 v5, v1, 4, s7')
        Lm, Lmd = a.uniq('AM'), a.uniq('AMD')
        a('s_mov_b32 s%d, %d' % (S_SPIN, o.spin))
        a.label(Lm)
        for k in range(6):
            a('buffer_load_dwordx4 %s, v%d, %s, 0 offen offset:%d sc1' % (vr(ML + 4 * k, 4), VT, srd(SRD_WS), 16 * k))
        a('s_waitcnt vmcnt(0)')
        self.any_sentinel(range(ML, ML + 24), VT + 1)
        a('s_cbranch_vccz %s' % Lmd)
        a('s_sleep 16')
        a('s_sub_u32 s%d, s%d, 1' % (S_SPIN, S_SPIN))
        a('s_cmp_lg_u32 s%d, 0' % S_SPIN)
        a('s_cbranch_scc1 %s' % Lm)
        a.label(Lmd)
        Mx, Ls = VT + 1, VT + 2
        a('v_max3_f32 v%d, v%d, v%d, v%d' % (Mx, ML, ML + 2, ML + 4))
        for k in range(3, 11, 2):
            a('v_max3_f32 v%d, v%d, v%d, v%d' % (Mx, Mx, ML + 2 * k, ML + 2 * k + 2))
        a('v_max_f32 v%d, v%d, v%d' % (Mx, Mx, ML + 22))
        for k in range(12):
            a('v_sub_f32 v%d, v%d, v%d' % (ML + 2 * k, ML + 2 * k, Mx))
        for k in range(12):
            a('v_exp_f32 v%d, v%d' % (ML + 2 * k, ML + 2 * k))
        a('v_mul_f32 v%d, v%d, v%d' % (Ls, ML, ML + 1))
        for k in range(1, 12):
            a('v_fmac_f32 v%d, v%d, v%d' % (Ls, ML + 2 * k, ML + 2 * k + 1))
        a('v_rcp_f32 v%d, v%d' % (Ls, Ls))
        a('v_cmp_lt_u32 vcc, 31, v1')
        for i in range(6):
            a('v_cndmask_b32 v%d, v%d, v%d, vcc' % (W + i, ML + 4 * i, ML + 4 * i + 2))
        for i in range(6):
            a('v_mul_f32 v%d, v%d, v%d' % (W + i, W + i, Ls))
        XF, WF = 96, 32
        for i in range(12):
            a('v_mul_f32 v%d, v%d, v%d' % (WF + i, ML + 2 * i, Ls))
        a('s_lshl_b32 s7, s%d, 2' % S_H)
        a('s_add_u32 s7, s7, s%d' % sS)
        a('s_mul_i32 s7, s7, 12288')
        a('s_add_u32 s7, s7, 0x%x' % WS_OPF)
        a('v_lshl_add_u32 v3, v1, 4, s7')
        a('v_lshrrev_b32 v2, 4, v1')
        a('v_lshlrev_b32 v2, 6, v2')
        a('v_bfe_u32 v%d, v1, 1, 2' % VT)
        a('v_lshl_add_u32 v2, v%d, 4, v2' % VT)
        a('v_bfe_u32 v%d, v1, 3, 1' % VT)
        a('v_lshl_add_u32 v2, v%d, 3, v2' % VT)
        a('v_and_b32 v%d, 1, v1' % VT)
        a('v_lshl_add_u32 v2, v%d, 2, v2' % VT)
        a('s_lshl_b32 s7, s%d, 8' % sS)
        a('s_add_u32 s7, s7, 0x%x' % OBUF)
        a('v_add_u32 v2, s7, v2')
        a('v_bfe_u32 v%d, v1, 3, 2' % VT)
        a('v_lshlrev_b32 v%d, 6, v%d' % (VT, VT))
        a('v_and_b32 v%d, 3, v1' % (VT + 1))
        a('v_lshl_add_u32 v%d, v%d, 4, v%d' % (VT, VT + 1, VT))
        a('v_bfe_u32 v%d, v1, 2, 1' % (VT + 1))
        a('v_lshl_add_u32 v%d, v%d, 3, v%d' % (VT, VT + 1, VT))
        a('s_lshl_b32 s7, s%d, 8' % sS)
        a('s_add_u32 s7, s7, 0x%x' % OBUF)
        a('v_add_u32 v%d, s7, v%d' % (VT, VT))
        a('v_and_b32 v%d, 15, v1' % (VT + 1))
        a('v_lshlrev_b32 v%d, 8, v%d' % (VT + 1, VT + 1))
        a('v_lshrrev_b32 v%d, 4, v1' % (VT + 2))
        a('v_lshl_add_u32 v%d, v%d, 4, v%d' % (VT + 1, VT + 2, VT + 1))
        a('v_add_u32 v%d, 0x%x, v%d' % (VT + 1, OBUF, VT + 1))
        OP = 16
        for k in range(16):
            a('v_mov_b32 v%d, 0' % (OP + k))
        a('s_mov_b32 s%d, 4096' % sOff)
        self.stamp(vm, 1, 164)
        self.lds_wait(C_O, 8, 163, 164, sleep=2)
        a('s_setprio 3')
        self.stamp(vm, 7, 164)
        Lo, Lod, Lf, Lfd, Lj = a.uniq('AO'), a.uniq('AOD'), a.uniq('AF'), a.uniq('AFD'), a.uniq('AJ')
        AC = 152
        a('s_mov_b32 s%d, %d' % (S_SPIN, o.spin))
        if o.ofast:
            a.label(Lf)
            a('s_mov_b32 s7, 0')
            for i in range(12):
                a('buffer_load_dwordx4 %s, v3, %s, s7 offen offset:%d sc1' % (
                    vr(XF + 4 * i, 4), srd(SRD_WS), (i & 3) * 1024))
                if i & 3 == 3:
                    a('s_add_u32 s7, s7, 4096')
            a('s_waitcnt vmcnt(0)')
            self.tags_bad(range(XF + 2, XF + 48, 4))
            a('s_cbranch_scc0 %s' % Lfd)
            a('s_sub_u32 s%d, s%d, 1' % (S_SPIN, S_SPIN))
            a('s_and_b32 s7, s%d, 3' % S_SPIN)
            a('s_cmp_lg_u32 s7, 0')
            a('s_cbranch_scc1 %s' % Lf)
        a.label(Lo)
        for i in range(6):
            a('buffer_load_dwordx4 %s, v5, %s, %s offen offset:%d sc1' % (
                vr(X + 4 * i, 4), srd(SRD_WS), '0' if i < 4 else 's%d' % sOff, (i & 3) * 1024))
        a('s_waitcnt vmcnt(0)')
        self.any_sentinel(range(X, X + 24), VT + 2)
        a('s_cbranch_vccz %s' % Lod)
        a('s_sleep 1')
        a('s_sub_u32 s%d, s%d, 1' % (S_SPIN, S_SPIN))
        a('s_cmp_gt_i32 s%d, 0' % S_SPIN)
        a('s_cbranch_scc1 %s' % (Lf if o.ofast else Lo))
        a.label(Lod)
        self.stamp(vm, 2, 164)
        for i in range(6):
            for k in range(2):
                self.pkfma_bcast(AC + 2 * k, X + 4 * i + 2 * k, W + i, first=(i == 0))
        for k in range(4):
            a('v_mov_b32 v%d, v%d' % (AC + 4 + k, AC + k))
        for k in range(4):
            a('v_permlane32_swap_b32 v%d, v%d' % (AC + k, AC + 4 + k))
        for k in range(4):
            a('v_add_f32 v%d, v%d, v%d' % (AC + k, AC + k, AC + 4 + k))
        a('v_cvt_pk_bf16_f32 v%d, v%d, v%d' % (AC, AC, AC + 1))
        a('v_cvt_pk_bf16_f32 v%d, v%d, v%d' % (AC + 1, AC + 2, AC + 3))
        a('ds_write_b64 v%d, v[%d:%d]' % (VT, AC, AC + 1))
        if o.ofast:
            a('s_branch %s' % Lj)
            a.label(Lfd)
            self.stamp(vm, 2, 164)
            for i in range(12):
                self.pkfma_bcast(AC + 2 * (i & 1), XF + 4 * i, WF + i, first=(i < 2))
            a('v_add_f32 v%d, v%d, v%d' % (AC, AC, AC + 2))
            a('v_add_f32 v%d, v%d, v%d' % (AC + 1, AC + 1, AC + 3))
            a('v_cvt_pk_bf16_f32 v%d, v%d, v%d' % (AC, AC, AC + 1))
            a('ds_write_b32 v2, v%d' % AC)
            a.label(Lj)
        self.lds_signal(C_OB, 163, 164)
        self.lds_wait(C_OB, 4, 163, 164, sleep=0)
        a('s_mov_b64 exec, s[%d:%d]' % (S_MK, S_MK + 1))
        for ks in range(4):
            a('ds_read_b128 %s, v%d offset:%d' % (vr(OP + 4 * ks, 4), VT + 1, ks * 64))
        a('s_mov_b64 exec, -1')
        a('s_waitcnt lgkmcnt(0)')
        for ks in range(4):
            for t in range(2):
                a('v_mfma_f32_16x16x32_bf16 %s, %s, %s, %s' % (
                    vr(AC + 4 * t, 4), vr(FR + 16 * t + 4 * ks, 4), vr(OP + 4 * ks, 4),
                    '0' if ks == 0 else vr(AC + 4 * t, 4)))
        for k in range(4):
            a('v_mov_b32_dpp v%d, v%d row_ror:4 row_mask:0xf bank_mask:0x2' % (AC + k, AC + 4 + k))
        a('s_mov_b64 exec, s[%d:%d]' % (S_MK4 + 4, S_MK4 + 5))
        a('buffer_store_dwordx4 %s, v%d, %s, 0 offen sc1' % (vr(AC, 4), VY, srd(SRD_WS)))
        a('s_mov_b64 exec, -1')
        self.stamp(vm, 8, 164)
        self.stamp(vm, 15, 164, clk=True)
        a('s_endpgm')

    def b_svc(self):
        a, o = self.a, self.o
        vm = VM(a)
        a.label('L_BSVC')
        sS, sOff, sBi, sYB = S_T, S_T + 3, S_T + 4, S_T + 5
        VY, VT = 4, 6
        ST3, GQ = 32, (96 if o.q3e else 32)
        FR, TT, TA = 32, 8, 24
        VE, VO, VW = 160, 161, 162
        a('s_setprio 3')
        a('s_barrier')
        self.flag_master(150, 8)
        a('s_sub_u32 s%d, s%d, 8' % (sS, S_WAVE))
        mk_srd(a, SRD_A, P_CKV, 16777216)
        mk_srd(a, SRD_D, P_BWO, 4194304)
        a('s_lshl_b32 s%d, s%d, 1' % (sBi, S_H))
        a('s_add_u32 s%d, s%d, s%d' % (sBi, sBi, S_R))
        a('s_sub_u32 s%d, s%d, 6' % (sBi, sBi))
        a('v_lshlrev_b32 v2, 4, v1')
        a('v_lshrrev_b32 v%d, 4, v1' % VT)
        a('v_and_b32 v%d, 15, v1' % (VT + 1))
        a('v_cmp_gt_u32 s[%d:%d], 4, v%d' % (S_MK, S_MK + 1, VT + 1))
        a('v_cmp_gt_u32 s[%d:%d], 8, v%d' % (S_MK4 + 4, S_MK4 + 5, VT + 1))
        a('s_lshl_b32 s%d, s%d, 7' % (sYB, sBi))
        a('s_add_u32 s%d, s%d, 0x%x' % (sYB, sYB, WS_YB))
        a('s_mul_i32 s7, s%d, %d' % (sS, 4 * 192 * 128))
        a('s_add_u32 s%d, s%d, s7' % (sYB, sYB))
        a('v_and_b32 v%d, 3, v1' % (VT + 2))
        a('v_mul_u32_u24 v%d, 0x%x, v%d' % (VY, 16 * 192 * 128, VT + 2))
        a('v_lshl_add_u32 v%d, v%d, 4, v%d' % (VY, VT, VY))
        a('v_bfe_u32 v%d, v1, 2, 1' % (VT + 2))
        a('v_lshl_add_u32 v%d, v%d, 6, v%d' % (VY, VT + 2, VY))
        a('v_add_u32 v%d, s%d, v%d' % (VY, sYB, VY))
        for k in range(4):
            a('v_mov_b32 v%d, -1' % (TT + k))
        a('s_mov_b64 exec, s[%d:%d]' % (S_MK4 + 4, S_MK4 + 5))
        for cbi in range(0 if o.noclr & 1 else 4):
            a('s_mov_b32 s7, %d' % (cbi * 192 * 128))
            vm.issue('buffer_store_dwordx4 %s, v%d, %s, s7 offen sc1' % (vr(TT, 4), VY, srd(SRD_WS)), 'clr2')
        a('s_mov_b64 exec, -1')
        a('v_bfe_u32 v%d, v1, 1, 3' % (VT + 1))
        a('s_lshl_b32 s7, s%d, 17' % S_H)
        a('s_lshl_b32 s%d, s%d, 8' % (sOff, sS))
        a('s_add_u32 s7, s7, s%d' % sOff)
        for par, V in ((0, VE), (1, VO)):
            a('v_xor_b32 v%d, v%d, v%d' % (V, VT + 1, VT))
            if par:
                a('v_xor_b32 v%d, 4, v%d' % (V, V))
            a('v_lshlrev_b32 v%d, 5, v%d' % (V, V))
            a('v_and_b32 v162, 1, v1')
            a('v_lshl_add_u32 v%d, v162, 4, v%d' % (V, V))
            a('v_lshl_add_u32 v%d, v%d, 10, v%d' % (V, VT, V))
            a('v_add_u32 v%d, s7, v%d' % (V, V))
        a('v_lshrrev_b32 v%d, 2, v1' % VT)
        a('v_and_b32 v%d, 7, v%d' % (VT + 1, VT))
        a('v_lshlrev_b32 v%d, 8, v%d' % (VT, VT))
        a('v_and_b32 v162, 3, v1')
        a('v_lshl_add_u32 v%d, v162, 3, v%d' % (VT, VT))
        a('s_lshl_b32 s7, s%d, 12' % sS)
        a('s_add_u32 s7, s7, 0x%x' % SVC)
        a('v_add_u32 v%d, s7, v%d' % (VT, VT))
        for t in range(8):
            a('v_xor_b32 v162, %d, v%d' % (t, VT + 1))
            a('v_lshl_add_u32 v%d, v162, 5, v%d' % (TA + t, VT))
        a('v_lshl_add_u32 v%d, v1, 4, s7' % VW)

        def wo_loads(k0, k1):
            a('s_mov_b32 s%d, %s' % (sOff, '0x40000000' if o.nos3 else str(k0 * 4096)))
            for k in range(k0, k1):
                vm.wait_n(o.sd - 1)
                vm.issue('buffer_load_dwordx4 %s, v%d, %s, s%d offen%s' % (
                    vr(FR + 4 * k, 4), VO if k & 1 else VE, srd(SRD_D), sOff, ' nt' if o.wnt else ''), ('wo', k))
                a('s_add_u32 s%d, s%d, 4096' % (sOff, sOff))

        if o.q3e:
            a('s_setprio 0')
            a('s_lshl_b32 s7, s%d, 18' % sBi)
            a('s_lshl_b32 s%d, s%d, 14' % (sOff, sS))
            a('s_add_u32 s%d, s%d, s7' % (sOff, sOff))
            a('s_add_u32 s%d, s%d, %d' % (sOff, sOff, 192 * 1024))
            if o.nob:
                a('s_mov_b32 s%d, 0x40000000' % sOff)
            for i in range(16):
                f = ((i & 3) << 2) | (i >> 2)
                a('v_xor_b32 v%d, 0x%x, v2' % (VT + (i & 1), f << 4))
                vm.wait_n(o.bd - 1)
                vm.issue('buffer_load_dwordx4 %s, v%d, %s, s%d offen nt' % (
                    vr(ST3 + 4 * i, 4), VT + (i & 1), srd(SRD_A), sOff), 'st3')
                a('s_add_u32 s%d, s%d, 1024' % (sOff, sOff))
            wo_loads(32 - o.woe, 32)
            a('s_setprio 3')
        elif o.woe:
            a('s_setprio 0')
            wo_loads(16, 16 + o.woe)
            a('s_setprio 3')
        self.get_nonce(VT, VT + 1)
        if o.apoll:
            vm.wait_all()
            self.lds_wait(C_FL, 1, VT, VT + 1, sleep=1)
        else:
            a('v_lshlrev_b32 v%d, 3, v1' % VT)
            a('s_lshl_b32 s7, s%d, 9' % sS)
            a('s_add_u32 s7, s7, 0x%x' % WS_FLAG)
            a('v_add_u32 v%d, s7, v%d' % (VT, VT))
            a('s_mov_b32 s%d, 0xc0c0c0c0' % S_MK3)
            a('s_mov_b32 s%d, 0xc0c0c0c0' % (S_MK3 + 1))
            Lp, Lpd = a.uniq('GF'), a.uniq('GFD')
            a('s_mov_b32 s%d, %d' % (S_SPIN, o.spin))
            a.label(Lp)
            a('buffer_load_dwordx2 v[%d:%d], v%d, %s, 0 offen sc1' % (VT + 2, VT + 3, VT, srd(SRD_WS)))
            a('s_waitcnt vmcnt(0)')
            vm.q = []
            self.flag_ok(VT + 2, 1 if o.dpoll else 2, S_MK2)
            a('s_or_b64 s[%d:%d], s[%d:%d], s[%d:%d]' % (S_MK2, S_MK2 + 1, S_MK2, S_MK2 + 1, S_MK3, S_MK3 + 1))
            a('s_cmp_eq_u64 s[%d:%d], -1' % (S_MK2, S_MK2 + 1))
            a('s_cbranch_scc1 %s' % Lpd)
            a('s_sleep 6')
            a('s_sub_u32 s%d, s%d, 1' % (S_SPIN, S_SPIN))
            a('s_cmp_lg_u32 s%d, 0' % S_SPIN)
            a('s_cbranch_scc1 %s' % Lp)
            a.label(Lpd)
        self.lds_signal(C_CLR2, 163, 164)
        self.stamp(vm, 1, 164)
        a('s_lshr_b32 s7, s%d, 3' % S_H)
        a('s_lshl_b32 s7, s7, 15')
        a('s_lshl_b32 s%d, s%d, 13' % (sOff, sS))
        a('s_add_u32 s7, s7, s%d' % sOff)
        a('s_add_u32 s7, s7, 0x%x' % WS_QABS)
        a('v_lshl_add_u32 v%d, v1, 4, s7' % VT)
        a('s_and_b32 s7, s%d, 1' % sS)
        a('s_lshl_b32 s7, s7, 7')
        a('v_xor_b32 v3, s7, v2')
        a('s_lshl_b32 s7, s%d, 13' % sS)
        a('s_add_u32 s7, s7, 0x%x' % QST)
        a('v_add_u32 v3, s7, v3')
        Lq, Lqd = a.uniq('BQ'), a.uniq('BQD')
        a('s_mov_b32 s%d, %d' % (S_SPIN, o.spin))
        a('s_mov_b32 s%d, 4096' % sOff)
        a.label(Lq)
        for i in range(8):
            a('buffer_load_dwordx4 %s, v%d, %s, %s offen offset:%d sc1' % (
                vr(GQ + 4 * i, 4), VT, srd(SRD_WS), '0' if i < 4 else 's%d' % sOff, (i & 3) * 1024))
        a('s_waitcnt vmcnt(0)')
        self.any_sentinel(range(GQ, GQ + 32), VT + 1)
        a('s_cbranch_vccz %s' % Lqd)
        a('s_sleep %d' % (o.dpoll if o.dpoll else 2))
        a('s_sub_u32 s%d, s%d, 1' % (S_SPIN, S_SPIN))
        a('s_cmp_lg_u32 s%d, 0' % S_SPIN)
        a('s_cbranch_scc1 %s' % Lq)
        a.label(Lqd)
        for i in range(8):
            a('v_xor_b32 v%d, 0x%x, v3' % (VT + (i & 1), i << 4))
            a('ds_write_b128 v%d, %s offset:%d' % (VT + (i & 1), vr(GQ + 4 * i, 4), i * 1024))
        self.lds_signal(C_QST, VT, VT + 1)
        self.stamp(vm, 3, 164)
        if not o.q3e:
            a('s_lshl_b32 s7, s%d, 18' % sBi)
            a('s_lshl_b32 s%d, s%d, 14' % (sOff, sS))
            a('s_add_u32 s%d, s%d, s7' % (sOff, sOff))
            a('s_add_u32 s%d, s%d, %d' % (sOff, sOff, 192 * 1024))
            if o.nob:
                a('s_mov_b32 s%d, 0x40000000' % sOff)
            for i in range(16):
                f = ((i & 3) << 2) | (i >> 2)
                a('v_xor_b32 v%d, 0x%x, v2' % (VT + (i & 1), f << 4))
                vm.wait_n(o.bd - 1)
                vm.issue('buffer_load_dwordx4 %s, v%d, %s, s%d offen nt' % (
                    vr(ST3 + 4 * i, 4), VT + (i & 1), srd(SRD_A), sOff), 'st3')
                a('s_add_u32 s%d, s%d, 1024' % (sOff, sOff))
        a('s_setprio 0')

        def transpose(ks):
            blk = FR + 32 * ks
            vm.wait(('wo', 8 * ks + 3))
            for k in range(4):
                a('ds_write_b128 v%d, %s offset:%d' % (VW, vr(blk + 4 * k, 4), k * 1024))
            a('s_waitcnt lgkmcnt(0)')
            for t in range(8):
                a('ds_read_b64_tr_b16 v[%d:%d], v%d' % (TT + 2 * t, TT + 2 * t + 1, TA + t))
            vm.wait(('wo', 8 * ks + 7))
            a('s_waitcnt lgkmcnt(0)')
            for k in range(4):
                a('ds_write_b128 v%d, %s offset:%d' % (VW, vr(blk + 16 + 4 * k, 4), k * 1024))
            a('s_waitcnt lgkmcnt(0)')
            for t in range(8):
                a('ds_read_b64_tr_b16 v[%d:%d], v%d' % (blk + 4 * t + 2, blk + 4 * t + 3, TA + t))
            for t in range(8):
                a('v_mov_b32 v%d, v%d' % (blk + 4 * t, TT + 2 * t))
                a('v_mov_b32 v%d, v%d' % (blk + 4 * t + 1, TT + 2 * t + 1))
            a('s_waitcnt lgkmcnt(0)')

        if o.q3e:
            wo_loads(16, 32 - o.woe)
        else:
            wo_loads(16 + o.woe, 32)
        self.lds_wait(C_S0, 8, VT, VT + 1, sleep=1)
        a('s_setprio 3')
        vm.wait('st3')
        a('s_lshl_b32 s7, s%d, 14' % sS)
        a('s_add_u32 s7, s7, 0x%x' % RING1)
        a('v_add_u32 v2, s7, v2')
        for i in range(16):
            a('ds_write_b128 v2, %s offset:%d' % (vr(ST3 + 4 * i, 4), i * 1024))
        self.lds_signal(C_Q3, VT, VT + 1)
        a('s_setprio 0')
        self.stamp(vm, 4, 164)
        L3 = a.uniq('F2')
        a('s_cmp_lg_u32 s%d, 0' % sS)
        a('s_cbranch_scc1 %s' % L3)
        self.lds_wait(C_CLR2, 12, 163, 164, sleep=1)
        self.set_flag(3, 164)
        a.label(L3)
        wo_loads(0, 16)
        for ks in (2, 3, 0, 1):
            transpose(ks)
        self.stamp(vm, 6, 164)
        OP = TT
        for k in range(16):
            a('v_mov_b32 v%d, 0' % (OP + k))
        a('v_and_b32 v%d, 15, v1' % VT)
        a('v_lshlrev_b32 v%d, 8, v%d' % (VT + 1, VT))
        a('v_lshrrev_b32 v162, 4, v1')
        a('v_lshl_add_u32 v%d, v162, 4, v%d' % (VT + 1, VT + 1))
        a('v_add_u32 v%d, 0x%x, v%d' % (VT + 1, OBUF, VT + 1))
        self.lds_wait(C_O, 8, 163, 164, sleep=1)
        a('s_setprio 3')
        self.stamp(vm, 7, 164)
        a('s_mov_b64 exec, s[%d:%d]' % (S_MK, S_MK + 1))
        for ks in range(4):
            a('ds_read_b128 %s, v%d offset:%d' % (vr(OP + 4 * ks, 4), VT + 1, ks * 64))
        a('s_mov_b64 exec, -1')
        a('s_waitcnt lgkmcnt(0)')

        def D(t):
            return 24 if t == 0 else FR + 4 * (t - 1)
        a('s_mov_b32 s%d, 0' % sOff)
        for t in range(8):
            for ks in range(4):
                a('v_mfma_f32_16x16x32_bf16 %s, %s, %s, %s' % (
                    vr(D(t), 4), vr(FR + 32 * ks + 4 * t, 4), vr(OP + 4 * ks, 4), '0' if ks == 0 else vr(D(t), 4)))
        for t in range(0, 8, 2):
            for k in range(4):
                a('v_mov_b32_dpp v%d, v%d row_ror:4 row_mask:0xf bank_mask:0x2' % (D(t) + k, D(t + 1) + k))
            a('s_mov_b64 exec, s[%d:%d]' % (S_MK4 + 4, S_MK4 + 5))
            vm.issue('buffer_store_dwordx4 %s, v%d, %s, s%d offen sc1' % (vr(D(t), 4), VY, srd(SRD_WS), sOff), 'y')
            a('s_mov_b64 exec, -1')
            a('s_add_u32 s%d, s%d, %d' % (sOff, sOff, 192 * 128))
        self.stamp(vm, 8, 164)
        a('s_endpgm')

    def b_att(self):
        from gen_b import b_att
        b_att(self)

    def build(self):
        a = self.a
        hdr = open(os.path.join(os.path.dirname(os.path.abspath(__file__)), '..', NAME + '.s.ref')).read()
        head = []
        for line in hdr.split('\n'):
            if line.startswith('; @launch'):
                head.append('; @launch grid=(256,1,1) block=(768,1,1) lds=%d' % LDS_BYTES)
            elif line.startswith(';'):
                head.append(line)
            else:
                break
        a.raw('\n'.join(head))
        a.raw('.amdgcn_target "amdgcn-amd-amdhsa--gfx950"\n.text\n.globl %s_kernel\n.p2align 8\n'
              '.type %s_kernel,@function\n%s_kernel:' % (NAME, NAME, NAME))
        self.entry()
        self.a_prologue()
        self.a_att()
        self.a_svc()
        self.b_svc()
        self.b_att()
        a.label('L_END')
        a('s_endpgm')
        a.label('L_CODE_END')
        a.raw('''.section .rodata,"a"
.p2align 6
.amdhsa_kernel %s_kernel
  .amdhsa_next_free_vgpr 168
  .amdhsa_next_free_sgpr 102
  .amdhsa_accum_offset 168
  .amdhsa_group_segment_fixed_size 0
  .amdhsa_kernarg_size 112
  .amdhsa_user_sgpr_count 2
  .amdhsa_user_sgpr_kernarg_segment_ptr 1
  .amdhsa_system_sgpr_workgroup_id_x 1
  .amdhsa_float_denorm_mode_32 3
.end_amdhsa_kernel
''' % NAME)
        return a.text()


if __name__ == '__main__':
    opt = Opt()
    out = os.path.join(os.path.dirname(os.path.abspath(__file__)), '..', NAME + '.s')
    for arg in sys.argv[1:]:
        if arg.startswith('out='):
            out = arg[4:]
        else:
            k, v = arg.split('=')
            setattr(opt, k, type(getattr(opt, k))(int(v)))
    g = Gen(opt)
    txt = g.build()
    if opt.lnt or opt.snt:
        lines = []
        for l in txt.split('\n'):
            if l.rstrip().endswith(' sc1') and 'dwordx4' in l:
                if ('load' in l and opt.lnt) or ('store' in l and opt.snt):
                    l = l.rstrip() + ' nt'
            lines.append(l)
        txt = '\n'.join(lines)
    open(out, 'w').write(txt)
    print('wrote', out, len(txt), 'bytes; auto nops:', g.a.nops)
```

```python
from asmlib import Asm


def hs_kernel(ws_off, n, mode, nw=12):
    a = Asm()
    a.raw('.text\n.globl hs_kernel\n.p2align 8\n.type hs_kernel,@function\nhs_kernel:')
    a('s_cmp_lg_u32 s2, 0')
    a('s_cbranch_scc1 HS_END')
    a('s_memrealtime s[20:21]')
    a('s_load_dwordx4 s[4:7], s[0:1], 96')
    a('s_waitcnt lgkmcnt(0)')
    a('s_mov_b32 s8, s6')
    a('s_and_b32 s9, s7, 0xffff')
    a('s_mov_b32 s10, 0x1000000')
    a('s_mov_b32 s11, 0x20000')
    a('s_mov_b32 s12, s4')
    a('s_and_b32 s13, s5, 0xffff')
    a('s_mov_b32 s14, 256')
    a('s_mov_b32 s15, 0x20000')
    a('v_mul_u32_u24 v1, %d, v0' % (8 * nw))
    a('v_add_u32 v1, 0x%x, v1' % ws_off)
    k = n // 64
    for i in range(k):
        a('s_mov_b32 s16, %d' % ((i // nw) * 64 * nw * 8 + (i % nw) * 8))
        a('buffer_load_dwordx2 v[%d:%d], v1, s[8:11], s16 offen' % (8 + 2 * i, 9 + 2 * i))
    a('s_waitcnt vmcnt(0)')
    for i in range(2 * k):
        a('v_sub_u32 v%d, s20, v%d' % (8 + i, 8 + i))
    a('v_mov_b32 v2, v8')
    a('v_mov_b32 v3, v8')
    a('v_mov_b32 v4, v9')
    a('v_mov_b32 v5, v9')
    for i in range(1, k):
        a('v_max_u32 v2, v2, v%d' % (8 + 2 * i))
        a('v_min_u32 v3, v3, v%d' % (8 + 2 * i))
        a('v_min_u32 v4, v4, v%d' % (9 + 2 * i))
        a('v_max_u32 v5, v5, v%d' % (9 + 2 * i))
    a('s_mov_b32 s22, 0')
    a('s_mov_b32 s23, -1')
    a('s_mov_b32 s24, -1')
    a('s_mov_b32 s25, 0')
    a('s_mov_b32 s36, -1')
    a('s_mov_b32 s37, -1')
    for l in range(64):
        a('v_readlane_b32 s26, v2, %d' % l)
        a('v_readlane_b32 s27, v3, %d' % l)
        a('v_readlane_b32 s28, v4, %d' % l)
        a('v_readlane_b32 s29, v5, %d' % l)
        a('s_max_u32 s22, s22, s26')
        a('s_min_u32 s23, s23, s27')
        a('s_min_u32 s24, s24, s28')
        r = 37 if l & 8 else 36
        a('s_min_u32 s%d, s%d, s28' % (r, r))
        a('s_max_u32 s25, s25, s29')
    a('s_sub_u32 s26, s22, s24')
    a('s_sub_u32 s27, s22, s23')
    a('s_sub_u32 s28, s22, s25')
    a('s_sub_u32 s36, s22, s36')
    a('s_sub_u32 s37, s22, s37')
    a('v_mov_b32 v2, s26')
    a('v_mov_b32 v3, s27')
    a('v_mov_b32 v4, s24')
    a('v_mov_b32 v5, s28')
    a('v_mov_b32 v6, 0')
    a('v_mov_b32 v8, s36')
    a('v_mov_b32 v9, s37')
    a('s_mov_b64 exec, 1')
    a('buffer_store_dwordx4 v[2:5], v6, s[12:15], 0 offen')
    a('buffer_store_dwordx2 v[8:9], v6, s[12:15], 0 offen offset:16')
    if mode >= 2:
        a('s_lshl_b32 s30, s26, 3')
        a('s_add_u32 s30, s30, 10000')
        a('s_min_u32 s30, s30, 200000')
        a('s_sub_u32 s20, s20, s22')
        a.label('HS_SPIN')
        a('s_memrealtime s[32:33]')
        a('s_waitcnt lgkmcnt(0)')
        a('s_sub_u32 s31, s32, s20')
        a('s_cmp_lt_u32 s31, s30')
        a('s_cbranch_scc1 HS_SPIN')
    a.label('HS_END')
    a('s_endpgm')
    a.raw('''.section .rodata,"a"
.p2align 6
.amdhsa_kernel hs_kernel
  .amdhsa_next_free_vgpr 256
  .amdhsa_next_free_sgpr 40
  .amdhsa_accum_offset 256
  .amdhsa_group_segment_fixed_size 0
  .amdhsa_kernarg_size 112
  .amdhsa_user_sgpr_count 2
  .amdhsa_user_sgpr_kernarg_segment_ptr 1
  .amdhsa_system_sgpr_workgroup_id_x 1
.end_amdhsa_kernel
''')
    return a.text()
```

```python
import sys
sys.path.insert(0, "gen"); sys.path.insert(0, "/code")
from asmlib import *
from hs import hs_kernel
N = 'concat_heads__sliding_block_cached__compressed_kv_cla__decode'
WS_HS = 0xF00000
SZ = [4096, 134217728, 134217728, 4194304, 4194304, 4096, 16777216, 4194304, 4194304, 4194304, 4194304]


def probe(plan='uni', nw=8, da=8, db=8, fl='nt', na=128, mode=2, il=1):
    a = Asm()
    a.raw('.text\n.globl probe_kernel\n.p2align 8\n.type probe_kernel,@function\nprobe_kernel:')
    a('s_cmp_ge_u32 s2, 256')
    a('s_cbranch_scc1 PR_END')
    a('s_memrealtime s[60:61]')
    a('s_load_dwordx16 s[8:23], s[0:1], 0')
    a('s_load_dwordx8 s[24:31], s[0:1], 64')
    a('s_load_dwordx4 s[32:35], s[0:1], 96')
    a('v_lshrrev_b32 v1, 6, v0')
    a('v_readfirstlane_b32 s3, v1')
    a('v_and_b32 v1, 63, v0')
    a('v_lshlrev_b32 v2, 4, v1')
    a('s_waitcnt lgkmcnt(0)')
    fls = '' if fl == 'plain' else ' ' + fl.replace('_', ' ')

    def seg(buf, sbase, kb, D):
        p = 8 + 2 * buf
        a('s_mov_b32 s40, s%d' % p)
        a('s_and_b32 s41, s%d, 0xffff' % (p + 1))
        a('s_mov_b32 s42, 0x%x' % SZ[buf])
        a('s_mov_b32 s43, 0x20000')
        n = kb // nw
        assert n * nw == kb
        if il:
            a('s_lshl_b32 s44, s3, 10')
            st = nw * 1024
        else:
            a('s_mul_i32 s44, s3, %d' % (n * 1024))
            st = 1024
        a('s_add_u32 s44, s44, s%d' % sbase)
        a('s_mov_b32 s45, %d' % n)
        L = a.uniq('PL')
        a.label(L)
        a('s_waitcnt vmcnt(%d)' % (D - 1))
        a('buffer_load_dwordx4 v[8:11], v2, s[40:43], s44 offen%s' % fls)
        a('s_add_u32 s44, s44, %d' % st)
        a('s_sub_u32 s45, s45, 1')
        a('s_cmp_lg_u32 s45, 0')
        a('s_cbranch_scc1 %s' % L)

    if plan == 'uni':
        for buf in (3, 7, 8):
            a('s_lshl_b32 s46, s2, 14')
            seg(buf, 46, 16, da)
        a('s_lshl_b32 s46, s2, 16')
        seg(6, 46, 64, da)
        a('s_lshr_b32 s46, s2, 1')
        a('s_lshl_b32 s46, s46, 20')
        a('s_and_b32 s47, s2, 1')
        a('s_lshl_b32 s47, s47, 17')
        a('s_add_u32 s46, s46, s47')
        a('s_add_u32 s46, s46, 0xC0000')
        seg(1, 46, 128, da)
        seg(2, 46, 128, da)
        for buf in (9, 4, 10):
            a('s_lshl_b32 s46, s2, 14')
            seg(buf, 46, 16, da)
    else:
        a('s_and_b32 s48, s2, 7')
        a('s_lshr_b32 s47, s2, 4')
        a('s_lshl_b32 s47, s47, 3')
        a('s_or_b32 s48, s48, s47')
        a('s_bitcmp1_b32 s2, 3')
        a('s_cbranch_scc1 PR_B')
        a('s_lshl_b32 s46, s48, 20')
        a('s_add_u32 s46, s46, 0xC0000')
        seg(1, 46, 256, da)
        seg(2, 46, 256, da)
        a('s_branch PR_J')
        a.label('PR_B')
        if plan != 'aonly':
            for buf in (3, 7, 8):
                a('s_lshl_b32 s46, s48, 15')
                seg(buf, 46, 32, db)
            a('s_lshl_b32 s46, s48, 17')
            seg(6, 46, 128, db)
            for buf in (9, 4, 10):
                a('s_lshl_b32 s46, s48, 15')
                seg(buf, 46, 32, db)
        a.label('PR_J')
    a('s_waitcnt vmcnt(0)')
    a('s_mov_b32 s40, s34')
    a('s_and_b32 s41, s35, 0xffff')
    a('s_mov_b32 s42, 0x1000000')
    a('s_mov_b32 s43, 0x20000')
    a('s_memrealtime s[62:63]')
    a('s_mul_i32 s7, s2, %d' % nw)
    a('s_add_u32 s7, s7, s3')
    a('s_lshl_b32 s7, s7, 3')
    a('s_add_u32 s7, s7, 0x%x' % WS_HS)
    a('v_mov_b32 v2, s7')
    a('s_waitcnt lgkmcnt(0)')
    a('v_mov_b32 v4, s60')
    a('v_mov_b32 v5, s62')
    a('s_mov_b64 exec, 1')
    a('buffer_store_dwordx2 v[4:5], v2, s[40:43], 0 offen')
    a.label('PR_END')
    a('s_endpgm')
    a.raw('''.section .rodata,"a"
.p2align 6
.amdhsa_kernel probe_kernel
  .amdhsa_next_free_vgpr 128
  .amdhsa_next_free_sgpr 80
  .amdhsa_accum_offset 128
  .amdhsa_group_segment_fixed_size 0
  .amdhsa_kernarg_size 112
  .amdhsa_user_sgpr_count 2
  .amdhsa_user_sgpr_kernarg_segment_ptr 1
  .amdhsa_system_sgpr_workgroup_id_x 1
.end_amdhsa_kernel
''')
    t = open('/code/%s.s' % N).read()
    old = '; @launch grid=(256,1,1) block=(768,1,1) lds=163840'
    new = ('; @launch kernel=probe_kernel grid=(256,1,1) block=(%d,1,1) lds=163840\n' % (nw * 64) +
           '; @launch kernel=%s_kernel grid=(256,1,1) block=(768,1,1) lds=163840\n' % N +
           '; @launch kernel=hs_kernel grid=(1,1,1) block=(64,1,1) lds=0')
    return t.replace(old, new) + a.text() + hs_kernel(WS_HS, 256 * nw, mode, nw)


if __name__ == '__main__':
    kw = {}
    for x in sys.argv[2:]:
        k, v = x.split('=')
        kw[k] = int(v) if v.isdigit() else v
    open('scratch/%s.s' % sys.argv[1], 'w').write(probe(**kw))
```

```python
import sys
sys.path.insert(0, "gen"); sys.path.insert(0, "/code")
from asmlib import *
from hs import hs_kernel
N = 'concat_heads__sliding_block_cached__compressed_kv_cla__decode'
WS_HS = 0xF00000
SZ = [4096, 134217728, 134217728, 4194304, 4194304, 4096, 16777216, 4194304, 4194304, 4194304, 4194304]


def probe(plan='uni', nw=8, da=8, db=8, fl='nt', na=128, mode=2, il=1, rot=0, rsh=0):
    a = Asm()
    a.raw('.text\n.globl probe_kernel\n.p2align 8\n.type probe_kernel,@function\nprobe_kernel:')
    a('s_cmp_ge_u32 s2, 256')
    a('s_cbranch_scc1 PR_END')
    a('s_memrealtime s[60:61]')
    a('s_load_dwordx16 s[8:23], s[0:1], 0')
    a('s_load_dwordx8 s[24:31], s[0:1], 64')
    a('s_load_dwordx4 s[32:35], s[0:1], 96')
    a('v_lshrrev_b32 v1, 6, v0')
    a('v_readfirstlane_b32 s3, v1')
    a('v_and_b32 v1, 63, v0')
    a('v_lshlrev_b32 v2, 4, v1')
    a('s_waitcnt lgkmcnt(0)')
    fls = '' if fl == 'plain' else ' ' + fl.replace('_', ' ')

    def seg(buf, sbase, kb, D):
        p = 8 + 2 * buf
        a('s_mov_b32 s40, s%d' % p)
        a('s_and_b32 s41, s%d, 0xffff' % (p + 1))
        a('s_mov_b32 s42, 0x%x' % SZ[buf])
        a('s_mov_b32 s43, 0x20000')
        n = kb // nw
        assert n * nw == kb
        if il:
            a('s_lshl_b32 s44, s3, 10')
            st = nw * 1024
        else:
            a('s_mul_i32 s44, s3, %d' % (n * 1024))
            st = 1024
        if rot:
            a('s_lshr_b32 s49, s2, %d' % rsh)
            a('s_mul_i32 s49, s49, %d' % (rot * st))
            a('s_add_u32 s44, s44, s49')
            a('s_and_b32 s44, s44, 0x%x' % (kb * 1024 - 1))
        a('s_mov_b32 s45, %d' % n)
        L = a.uniq('PL')
        a.label(L)
        a('s_add_u32 s50, s44, s%d' % sbase)
        a('s_waitcnt vmcnt(%d)' % (D - 1))
        a('buffer_load_dwordx4 v[8:11], v2, s[40:43], s50 offen%s' % fls)
        a('s_add_u32 s44, s44, %d' % st)
        a('s_and_b32 s44, s44, 0x%x' % (kb * 1024 - 1))
        a('s_sub_u32 s45, s45, 1')
        a('s_cmp_lg_u32 s45, 0')
        a('s_cbranch_scc1 %s' % L)

    if plan == 'uni':
        for buf in (3, 7, 8):
            a('s_lshl_b32 s46, s2, 14')
            seg(buf, 46, 16, da)
        a('s_lshl_b32 s46, s2, 16')
        seg(6, 46, 64, da)
        a('s_lshr_b32 s46, s2, 1')
        a('s_lshl_b32 s46, s46, 20')
        a('s_and_b32 s47, s2, 1')
        a('s_lshl_b32 s47, s47, 17')
        a('s_add_u32 s46, s46, s47')
        a('s_add_u32 s46, s46, 0xC0000')
        seg(1, 46, 128, da)
        seg(2, 46, 128, da)
        for buf in (9, 4, 10):
            a('s_lshl_b32 s46, s2, 14')
            seg(buf, 46, 16, da)
    else:
        a('s_and_b32 s48, s2, 7')
        a('s_lshr_b32 s47, s2, 4')
        a('s_lshl_b32 s47, s47, 3')
        a('s_or_b32 s48, s48, s47')
        a('s_bitcmp1_b32 s2, 3')
        a('s_cbranch_scc1 PR_B')
        a('s_lshl_b32 s46, s48, 20')
        a('s_add_u32 s46, s46, 0xC0000')
        seg(1, 46, 256, da)
        seg(2, 46, 256, da)
        a('s_branch PR_J')
        a.label('PR_B')
        if plan != 'aonly':
            for buf in (3, 7, 8):
                a('s_lshl_b32 s46, s48, 15')
                seg(buf, 46, 32, db)
            a('s_lshl_b32 s46, s48, 17')
            seg(6, 46, 128, db)
            for buf in (9, 4, 10):
                a('s_lshl_b32 s46, s48, 15')
                seg(buf, 46, 32, db)
        a.label('PR_J')
    a('s_waitcnt vmcnt(0)')
    a('s_mov_b32 s40, s34')
    a('s_and_b32 s41, s35, 0xffff')
    a('s_mov_b32 s42, 0x1000000')
    a('s_mov_b32 s43, 0x20000')
    a('s_memrealtime s[62:63]')
    a('s_mul_i32 s7, s2, %d' % nw)
    a('s_add_u32 s7, s7, s3')
    a('s_lshl_b32 s7, s7, 3')
    a('s_add_u32 s7, s7, 0x%x' % WS_HS)
    a('v_mov_b32 v2, s7')
    a('s_waitcnt lgkmcnt(0)')
    a('v_mov_b32 v4, s60')
    a('v_mov_b32 v5, s62')
    a('s_mov_b64 exec, 1')
    a('buffer_store_dwordx2 v[4:5], v2, s[40:43], 0 offen')
    a.label('PR_END')
    a('s_endpgm')
    a.raw('''.section .rodata,"a"
.p2align 6
.amdhsa_kernel probe_kernel
  .amdhsa_next_free_vgpr 128
  .amdhsa_next_free_sgpr 80
  .amdhsa_accum_offset 128
  .amdhsa_group_segment_fixed_size 0
  .amdhsa_kernarg_size 112
  .amdhsa_user_sgpr_count 2
  .amdhsa_user_sgpr_kernarg_segment_ptr 1
  .amdhsa_system_sgpr_workgroup_id_x 1
.end_amdhsa_kernel
''')
    t = open('/code/%s.s' % N).read()
    old = '; @launch grid=(256,1,1) block=(768,1,1) lds=163840'
    new = ('; @launch kernel=probe_kernel grid=(256,1,1) block=(%d,1,1) lds=163840\n' % (nw * 64) +
           '; @launch kernel=%s_kernel grid=(256,1,1) block=(768,1,1) lds=163840\n' % N +
           '; @launch kernel=hs_kernel grid=(1,1,1) block=(64,1,1) lds=0')
    return t.replace(old, new) + a.text() + hs_kernel(WS_HS, 256 * nw, mode, nw)


if __name__ == '__main__':
    kw = {}
    for x in sys.argv[2:]:
        k, v = x.split('=')
        kw[k] = int(v) if v.isdigit() else v
    open('scratch/%s.s' % sys.argv[1], 'w').write(probe(**kw))
```

```python
import sys
sys.path.insert(0, "gen"); sys.path.insert(0, "/code")
from asmlib import *
from hs import hs_kernel
N = 'concat_heads__sliding_block_cached__compressed_kv_cla__decode'
WS_HS = 0xF00000
SZ = [4096, 134217728, 134217728, 4194304, 4194304, 4096, 16777216, 4194304, 4194304, 4194304, 4194304]


def probe(plan='uni', nw=8, da=8, db=8, fl='nt', na=128, mode=2, il=1, rot=0, rsh=0, bu=1):
    a = Asm()
    a.raw('.text\n.globl probe_kernel\n.p2align 8\n.type probe_kernel,@function\nprobe_kernel:')
    a('s_cmp_ge_u32 s2, 256')
    a('s_cbranch_scc1 PR_END')
    a('s_memrealtime s[60:61]')
    a('s_load_dwordx16 s[8:23], s[0:1], 0')
    a('s_load_dwordx8 s[24:31], s[0:1], 64')
    a('s_load_dwordx4 s[32:35], s[0:1], 96')
    a('v_lshrrev_b32 v1, 6, v0')
    a('v_readfirstlane_b32 s3, v1')
    a('v_and_b32 v1, 63, v0')
    a('v_lshlrev_b32 v2, 4, v1')
    a('s_waitcnt lgkmcnt(0)')
    fls = '' if fl == 'plain' else ' ' + fl.replace('_', ' ')

    def seg(buf, sbase, kb, D):
        p = 8 + 2 * buf
        a('s_mov_b32 s40, s%d' % p)
        a('s_and_b32 s41, s%d, 0xffff' % (p + 1))
        a('s_mov_b32 s42, 0x%x' % SZ[buf])
        a('s_mov_b32 s43, 0x20000')
        n = kb // nw
        assert n * nw == kb
        B = min(bu, n)
        n //= B
        if il:
            a('s_mul_i32 s44, s3, %d' % (1024 * B))
            st = nw * 1024 * B
        else:
            a('s_mul_i32 s44, s3, %d' % (n * 1024))
            st = 1024
        if rot:
            a('s_lshr_b32 s49, s2, %d' % rsh)
            a('s_mul_i32 s49, s49, %d' % (rot * 1024))
            a('s_add_u32 s44, s44, s49')
            a('s_and_b32 s44, s44, 0x%x' % (kb * 1024 - 1))
        a('s_mov_b32 s45, %d' % n)
        L = a.uniq('PL')
        a.label(L)
        a('s_add_u32 s50, s44, s%d' % sbase)
        a('s_waitcnt vmcnt(%d)' % (D - B))
        for k in range(B):
            if k == 4:
                a('s_add_u32 s50, s50, 4096')
            a('buffer_load_dwordx4 v[8:11], v2, s[40:43], s50 offen offset:%d%s' % ((k & 3) * 1024, fls))
        a('s_add_u32 s44, s44, %d' % st)
        a('s_and_b32 s44, s44, 0x%x' % (kb * 1024 - 1))
        a('s_sub_u32 s45, s45, 1')
        a('s_cmp_lg_u32 s45, 0')
        a('s_cbranch_scc1 %s' % L)

    if plan == 'uni':
        for buf in (3, 7, 8):
            a('s_lshl_b32 s46, s2, 14')
            seg(buf, 46, 16, da)
        a('s_lshl_b32 s46, s2, 16')
        seg(6, 46, 64, da)
        a('s_lshr_b32 s46, s2, 1')
        a('s_lshl_b32 s46, s46, 20')
        a('s_and_b32 s47, s2, 1')
        a('s_lshl_b32 s47, s47, 17')
        a('s_add_u32 s46, s46, s47')
        a('s_add_u32 s46, s46, 0xC0000')
        seg(1, 46, 128, da)
        seg(2, 46, 128, da)
        for buf in (9, 4, 10):
            a('s_lshl_b32 s46, s2, 14')
            seg(buf, 46, 16, da)
    else:
        a('s_and_b32 s48, s2, 7')
        a('s_lshr_b32 s47, s2, 4')
        a('s_lshl_b32 s47, s47, 3')
        a('s_or_b32 s48, s48, s47')
        a('s_bitcmp1_b32 s2, 3')
        a('s_cbranch_scc1 PR_B')
        a('s_lshl_b32 s46, s48, 20')
        a('s_add_u32 s46, s46, 0xC0000')
        seg(1, 46, 256, da)
        seg(2, 46, 256, da)
        a('s_branch PR_J')
        a.label('PR_B')
        if plan != 'aonly':
            for buf in (3, 7, 8):
                a('s_lshl_b32 s46, s48, 15')
                seg(buf, 46, 32, db)
            a('s_lshl_b32 s46, s48, 17')
            seg(6, 46, 128, db)
            for buf in (9, 4, 10):
                a('s_lshl_b32 s46, s48, 15')
                seg(buf, 46, 32, db)
        a.label('PR_J')
    a('s_waitcnt vmcnt(0)')
    a('s_mov_b32 s40, s34')
    a('s_and_b32 s41, s35, 0xffff')
    a('s_mov_b32 s42, 0x1000000')
    a('s_mov_b32 s43, 0x20000')
    a('s_memrealtime s[62:63]')
    a('s_mul_i32 s7, s2, %d' % nw)
    a('s_add_u32 s7, s7, s3')
    a('s_lshl_b32 s7, s7, 3')
    a('s_add_u32 s7, s7, 0x%x' % WS_HS)
    a('v_mov_b32 v2, s7')
    a('s_waitcnt lgkmcnt(0)')
    a('v_mov_b32 v4, s60')
    a('v_mov_b32 v5, s62')
    a('s_mov_b64 exec, 1')
    a('buffer_store_dwordx2 v[4:5], v2, s[40:43], 0 offen')
    a.label('PR_END')
    a('s_endpgm')
    a.raw('''.section .rodata,"a"
.p2align 6
.amdhsa_kernel probe_kernel
  .amdhsa_next_free_vgpr 128
  .amdhsa_next_free_sgpr 80
  .amdhsa_accum_offset 128
  .amdhsa_group_segment_fixed_size 0
  .amdhsa_kernarg_size 112
  .amdhsa_user_sgpr_count 2
  .amdhsa_user_sgpr_kernarg_segment_ptr 1
  .amdhsa_system_sgpr_workgroup_id_x 1
.end_amdhsa_kernel
''')
    t = open('/code/%s.s' % N).read()
    old = '; @launch grid=(256,1,1) block=(768,1,1) lds=163840'
    new = ('; @launch kernel=probe_kernel grid=(256,1,1) block=(%d,1,1) lds=163840\n' % (nw * 64) +
           '; @launch kernel=%s_kernel grid=(256,1,1) block=(768,1,1) lds=163840\n' % N +
           '; @launch kernel=hs_kernel grid=(1,1,1) block=(64,1,1) lds=0')
    return t.replace(old, new) + a.text() + hs_kernel(WS_HS, 256 * nw, mode, nw)


if __name__ == '__main__':
    kw = {}
    for x in sys.argv[2:]:
        k, v = x.split('=')
        kw[k] = int(v) if v.isdigit() else v
    open('scratch/%s.s' % sys.argv[1], 'w').write(probe(**kw))
```

```python
import re

_REG = re.compile(r'^(v|s|a)(\d+)$|^(v|s|a)\[(\d+):(\d+)\]$')

TRANS = ('v_exp_f32', 'v_log_f32', 'v_rcp_f32', 'v_rsq_f32', 'v_sqrt_f32', 'v_sin_f32', 'v_cos_f32',
         'v_rcp_iflag_f32')


def regs_of(tok):
    tok = tok.strip()
    neg = tok.lstrip('-')
    if neg.startswith('abs(') or neg.startswith('|'):
        neg = neg.strip('abs()|')
    tok = neg
    if tok == 'vcc':
        return {('s', 106), ('s', 107)}
    if tok == 'vcc_lo':
        return {('s', 106)}
    if tok == 'vcc_hi':
        return {('s', 107)}
    if tok == 'exec':
        return {('s', 126), ('s', 127)}
    if tok == 'm0':
        return {('s', 124)}
    m = _REG.match(tok)
    if not m:
        return set()
    if m.group(1):
        return {(m.group(1), int(m.group(2)))}
    return {(m.group(3), i) for i in range(int(m.group(4)), int(m.group(5)) + 1)}


def split_ops(s):
    ops, depth, cur = [], 0, ''
    for ch in s:
        if ch in '[(':
            depth += 1
        if ch in '])':
            depth -= 1
        if ch == ',' and depth == 0:
            ops.append(cur.strip())
            cur = ''
        else:
            cur += ch
    if cur.strip():
        ops.append(cur.strip())
    return ops


class Ins:
    __slots__ = ('op', 'w', 'r', 'kind', 'passes', 'srcc', 'srcab', 'dpp_src', 'states', 'text', 'store_data',
                 'is_lds_dma', 'sreads')


def mfma_passes(op):
    if '32x32x16' in op or '32x32x8' in op:
        return 8
    if '16x16x32' in op or '16x16x16' in op:
        return 4
    raise ValueError(op)


def parse(text):
    t = text.split(';')[0].strip()
    parts = t.split(None, 1)
    op = parts[0]
    rest = parts[1] if len(parts) > 1 else ''
    ops = split_ops(rest)
    mods = ''
    if ops:
        last = ops[-1].split()
        if len(last) > 1:
            ops[-1] = last[0]
            mods = ' '.join(last[1:])
    i = Ins()
    i.op, i.text = op, text
    i.w, i.r = set(), set()
    i.kind = 'other'
    i.passes = 0
    i.srcc, i.srcab, i.dpp_src, i.store_data = set(), set(), set(), set()
    i.is_lds_dma = False
    i.states = 1
    base = op
    for suf in ('_e32', '_e64', '_dpp', '_sdwa'):
        if base.endswith(suf):
            base = base[:-len(suf)]
    if op == 's_nop':
        i.states = int(ops[0], 0) + 1
        i.kind = 'salu'
        return i
    if op.startswith('s_'):
        i.kind = 'salu'
        nodst = ('s_cmp', 's_waitcnt', 's_branch', 's_cbranch', 's_barrier', 's_sleep', 's_setprio', 's_endpgm',
                 's_bitcmp', 's_setreg', 's_sendmsg')
        if op.startswith(nodst):
            for o in ops:
                i.r |= regs_of(o)
        else:
            if ops:
                i.w |= regs_of(ops[0])
            for o in ops[1:]:
                i.r |= regs_of(o)
            if op.startswith(('s_addk', 's_bitset')):
                i.r |= i.w
            if 'saveexec' in op:
                i.w |= regs_of('exec')
        if op.startswith('s_load') or op.startswith('s_buffer_load') or op.startswith('s_mem'):
            i.kind = 'smem'
        return i
    if op.startswith('v_mfma'):
        i.kind = 'mfma'
        i.passes = mfma_passes(op)
        i.w = regs_of(ops[0])
        i.srcab = regs_of(ops[1]) | regs_of(ops[2])
        i.srcc = regs_of(ops[3])
        i.r = i.srcab | i.srcc
        return i
    if op.startswith('v_'):
        i.kind = 'valu'
        if base in TRANS:
            i.kind = 'trans'
        if base.startswith('v_dot'):
            i.kind = 'dot'
        if base.startswith('v_permlane') and 'swap' in base:
            i.kind = 'perm'
            i.w = regs_of(ops[0]) | regs_of(ops[1])
            i.r = set(i.w)
            return i
        i.w = regs_of(ops[0])
        srcs = ops[1:]
        if base in ('v_add_co_u32', 'v_sub_co_u32', 'v_addc_co_u32', 'v_subb_co_u32', 'v_mad_u64_u32',
                    'v_div_scale_f32'):
            i.w |= regs_of(ops[1])
            srcs = ops[2:]
        for o in srcs:
            i.r |= regs_of(o)
        if base in ('v_fmac_f32', 'v_dot2c_f32_bf16', 'v_pk_fmac_f16', 'v_writelane_b32'):
            i.r |= i.w
        if base == 'v_dot2_f32_bf16':
            i.srcc = regs_of(ops[3])
            i.srcab = regs_of(ops[1]) | regs_of(ops[2])
        if base == 'v_dot2c_f32_bf16':
            i.srcc = set(i.w)
            i.srcab = regs_of(ops[1]) | regs_of(ops[2])
        if op.endswith('_dpp') or 'row_' in mods or 'quad_perm' in mods:
            i.dpp_src = regs_of(ops[1])
            i.r |= i.w
        if base == 'v_cndmask_b32' and len(ops) == 3:
            i.r |= regs_of('vcc')
        return i
    if op.startswith('buffer_') or op.startswith('global_'):
        i.kind = 'vmem'
        if op in ('buffer_wbl2', 'buffer_inv'):
            return i
        ml = mods.split()
        if 'lds' in ml or 'load_lds' in op:
            i.is_lds_dma = True
            for o in ops:
                i.r |= regs_of(o)
            i.r |= regs_of('m0')
            return i
        if 'store' in op:
            for o in ops:
                i.r |= regs_of(o)
            if 'x4' in op or 'x3' in op:
                i.store_data = regs_of(ops[0]) if op.startswith('buffer_') else regs_of(ops[1])
            return i
        if 'atomic' in op:
            for o in ops:
                i.r |= regs_of(o)
            if 'sc0' in ml:
                i.w = regs_of(ops[0])
            return i
        i.w = regs_of(ops[0])
        for o in ops[1:]:
            i.r |= regs_of(o)
        return i
    if op.startswith('ds_'):
        i.kind = 'ds'
        if op.startswith('ds_write') or (('add' in op or 'max' in op or 'min' in op or 'or_' in op)
                                         and 'rtn' not in op):
            for o in ops:
                i.r |= regs_of(o)
            return i
        i.w = regs_of(ops[0])
        for o in ops[1:]:
            i.r |= regs_of(o)
        return i
    raise ValueError('unknown instruction: ' + text)


CMP_SALU = int(__import__('os').environ.get('CMP_SALU', '0'))


def vonly(s):
    return {x for x in s if x[0] in 'va'}


def sonly(s):
    return {x for x in s if x[0] == 's'}


def need(p, c):
    n = 0
    pv, ps = vonly(p.w), sonly(p.w)
    valu_like = p.kind in ('valu', 'trans', 'dot', 'perm')
    cvalu = c.kind in ('valu', 'trans', 'dot', 'perm')
    if valu_like:
        if pv & c.dpp_src:
            n = max(n, 2)
        if c.op.startswith(('v_readlane', 'v_readfirstlane')) and pv & c.r:
            n = max(n, 1)
        if c.kind == 'perm' and pv & c.r:
            n = max(n, 2)
        if c.kind == 'mfma' and pv & c.r:
            n = max(n, 2)
        if p.kind == 'trans' and c.kind != 'trans' and pv & (c.r | c.w):
            n = max(n, 1)
        if ps:
            if cvalu and ps & c.r:
                n = max(n, 4 if c.op.startswith(('v_readlane', 'v_writelane')) else 2)
            if c.kind == 'salu' and ps & c.r and p.op.startswith('v_cmp'):
                n = max(n, CMP_SALU)
            if c.kind == 'vmem' and ps & c.r:
                n = max(n, 5)
            if c.kind == 'mfma' and ps & c.r:
                n = max(n, 4)
        if p.kind == 'dot' and pv & (c.r | c.w):
            same = c.kind == 'dot' and c.op.split('_e')[0] == p.op.split('_e')[0]
            if same and not (pv & c.srcab):
                pass
            else:
                n = max(n, 3)
    if p.kind == 'mfma':
        big = {4: 8, 8: 12}[p.passes]
        if c.kind == 'mfma':
            if pv & c.srcab:
                n = max(n, big)
            if pv & c.srcc:
                if c.srcc == pv and c.passes == p.passes:
                    pass
                else:
                    n = max(n, p.passes + 2)
            if pv & c.w and not (c.srcc == pv and c.w == pv):
                n = max(n, p.passes + 2)
        elif pv & (c.r | c.w):
            n = max(n, big)
        if cvalu and p.srcc & c.w:
            n = max(n, {4: 3, 8: 7}[p.passes])
    if p.kind == 'salu' and ('s', 124) in p.w and c.is_lds_dma:
        n = max(n, 1)
    if p.store_data and (p.store_data & c.w):
        n = max(n, 2 if cvalu else 1)
    return n


class Asm:
    def __init__(self):
        self.lines = []
        self.hist = []
        self.nuniq = 0
        self.nops = 0

    def comment(self, s):
        self.lines.append('    ; ' + s)

    def raw(self, s):
        self.lines.append(s)

    def label(self, name):
        self.lines.append(name + ':')

    def uniq(self, base='L'):
        self.nuniq += 1
        return '%s_%d' % (base, self.nuniq)

    def fence(self, n=16):
        while n > 0:
            k = min(n, 16)
            self('s_nop %d' % (k - 1))
            n -= k

    def __call__(self, text):
        for t in text.strip().split('\n'):
            t = t.strip()
            if not t or t.startswith(';'):
                continue
            self._one(t)

    def _one(self, t):
        c = parse(t)
        dist = 0
        pad = 0
        for p in reversed(self.hist):
            n = need(p, c)
            if n - dist > pad:
                pad = n - dist
            dist += p.states
            if dist >= 24:
                break
        while pad > 0:
            k = min(pad, 16)
            nop = parse('s_nop %d' % (k - 1))
            self.lines.append('    s_nop %d' % (k - 1))
            self.hist.append(nop)
            self.nops += 1
            pad -= k
        self.lines.append('    ' + t)
        self.hist.append(c)
        if len(self.hist) > 40:
            self.hist = self.hist[-40:]

    def text(self):
        return '\n'.join(self.lines) + '\n'


def vr(base, n=1):
    return 'v%d' % base if n == 1 else 'v[%d:%d]' % (base, base + n - 1)


def sr(base, n=1):
    return 's%d' % base if n == 1 else 's[%d:%d]' % (base, base + n - 1)
```

```python
from asmlib import vr
import gen3 as G
from gen3 import (VM, mk_srd, srd, f32bits, S_T, S_G, S_SLOT, S_WAVE, S_SPIN, S_MK, S_MK2, S_MK3,
                  SRD_WS, SRD_A, SRD_C, P_CKV, P_OUT, P_V, S_H)


def ci(a, s):
    a('s_lshl_b32 s%d, s%d, 3' % (s, S_G))
    a('s_add_u32 s%d, s%d, s%d' % (s, s, S_SLOT))
    a('s_sub_u32 s%d, s%d, 8' % (s, s))


def c_role(g):
    a = g.a
    g.sec('CA')
    a.label('L_C')
    c_att(g)
    c_svc(g)


def c_att(g):
    a, o = g.a, g.o
    vm = VM(a)
    g.common(split=True)
    (sBi, sBq, sJ, sCh, sKt, sHh, sOff, sC, sM0, sX, sBase) = [S_T + i for i in range(11)]
    Q, ST2, ACC = 32, 96, 128
    ST1 = ACC
    VB8, VB4 = 2, 3
    T = 160

    def sync():
        a('s_waitcnt lgkmcnt(0)')
        a('s_barrier')

    ci(a, sBi)
    a('v_lshlrev_b32 v%d, 4, v1' % T)
    a('s_and_b32 s7, s%d, 3' % S_WAVE)
    a('s_lshl_b32 s7, s7, 2')
    a('s_lshr_b32 s%d, s%d, 2' % (sOff, S_WAVE))
    a('s_or_b32 s7, s7, s%d' % sOff)
    sSw = sJ
    a('s_lshl_b32 s%d, s7, 4' % sSw)
    a('v_xor_b32 v%d, s%d, v%d' % (VB8, sSw, T))
    a('v_xor_b32 v%d, 32, v%d' % (VB4, VB8))
    a('s_lshl_b32 s%d, s%d, 18' % (sBase, sBi))

    def thr():
        vm.wait_n(o.bd - 1)

    a('s_lshl_b32 s%d, s%d, 10' % (sM0, S_WAVE))
    sLd = sBq
    a('s_add_u32 s%d, s%d, s%d' % (sLd, sBase, sM0))

    a('s_waitcnt lgkmcnt(0)')
    mk_srd(a, SRD_A, P_CKV, 16777216)
    for i in range(24):
        vt = VB4 if i & 1 else VB8
        if i < 12:
            a('s_mov_b32 m0, s%d' % sM0)
            thr()
            vm.issue('buffer_load_dwordx4 v%d, %s, s%d offen nt lds' % (vt, srd(SRD_A), sLd), 'q0')
            a('s_addk_i32 s%d, 8192' % sM0)
        else:
            thr()
            r = ST1 + 4 * (i - 12) if i < 16 else ST2 + 4 * (i - 16)
            vm.issue('buffer_load_dwordx4 %s, v%d, %s, s%d offen nt' % (vr(r, 4), vt, srd(SRD_A), sLd),
                     'st1' if i < 16 else 'st2')
        if i == o.bd - 1:
            g.sec('CB', True)
            g.post()
            a('s_lshr_b32 s%d, s%d, 1' % (sKt, S_WAVE))
            a('s_and_b32 s%d, s%d, 1' % (sHh, S_WAVE))
            a('s_mov_b32 s%d, 0x%x' % (sC, f32bits(G.SCALE_LOG2E)))
            a('s_barrier')
        a('s_addk_i32 s%d, 8192' % sLd)
        if i == o.qev:
            g.lds_signal(G.C_OK, T, T + 1)
    g.sec('CR', True)
    g.stamp(vm, 0, T)
    VA, VA1, VTM, VP, VPB, VAL, VQ = 4, 2, 5, 6, 7, 8, 3
    VTR = 9
    MRUN, LRUN = 13, 14
    S8 = 16
    a('v_and_b32 v%d, 15, v1' % T)
    a('v_lshlrev_b32 v%d, 10, v%d' % (VA, T))
    a('v_lshrrev_b32 v%d, 4, v1' % (T + 1))
    a('v_lshl_add_u32 v%d, v%d, 8, v%d' % (VA, T + 1, VA))
    a('v_lshl_add_u32 v%d, v%d, 4, v%d' % (VQ, T, VA))
    a('s_lshl_b32 s7, s%d, 14' % sHh)
    a('s_add_u32 s7, s7, 0x%x' % G.QST)
    a('v_add_u32 v%d, s7, v%d' % (VQ, VQ))
    a('v_and_b32 v%d, 3, v1' % (T + 2))
    a('v_lshl_add_u32 v%d, v%d, 6, v%d' % (VA, T + 2, VA))
    a('v_bfe_u32 v%d, v1, 2, 2' % (T + 2))
    a('v_lshl_add_u32 v%d, v%d, 4, v%d' % (VA, T + 2, VA))
    a('s_lshl_b32 s7, s%d, 14' % sKt)
    a('v_add_u32 v%d, s7, v%d' % (VA, VA))
    a('v_add_u32 v%d, 0x10000, v%d' % (VA1, VA))
    a('s_lshl_b32 s7, s%d, 6' % sHh)
    a('s_add_u32 s7, s7, 0x%x' % G.TMAX)
    a('v_lshl_add_u32 v%d, v%d, 2, s7' % (VTM, T))
    a('s_lshl_b32 s7, s%d, 10' % sKt)
    a('s_lshl_b32 s%d, s%d, 9' % (sOff, sHh))
    a('s_add_u32 s7, s7, s%d' % sOff)
    a('s_add_u32 s7, s7, 0x%x' % G.PBUF)
    a('v_lshl_add_u32 v%d, v%d, 5, s7' % (VP, T))
    a('v_lshl_add_u32 v%d, v%d, 3, v%d' % (VP, T + 1, VP))
    a('v_and_b32 v%d, 31, v1' % (T + 2))
    a('v_lshlrev_b32 v%d, 5, v%d' % (VPB, T + 2))
    a('v_lshrrev_b32 v%d, 5, v1' % (T + 3))
    a('v_lshl_add_u32 v%d, v%d, 4, v%d' % (VPB, T + 3, VPB))
    a('v_add_u32 v%d, 0x%x, v%d' % (VPB, G.PBUF, VPB))
    a('v_lshlrev_b32 v%d, 2, v%d' % (VAL, T + 2))
    a('v_add_u32 v%d, 0x%x, v%d' % (VAL, G.ALPHA, VAL))
    a('v_bfe_u32 v%d, v1, 2, 2' % (T + 2))
    a('v_lshl_add_u32 v%d, v%d, 3, v%d' % (T + 4, T + 3, T + 2))
    a('v_lshlrev_b32 v%d, 10, v%d' % (T + 4, T + 4))
    a('v_and_b32 v%d, 1, v1' % (T + 5))
    a('v_lshl_add_u32 v%d, v%d, 3, v%d' % (T + 4, T + 5, T + 4))
    a('s_lshl_b32 s7, s%d, 8' % sKt)
    a('v_add_u32 v%d, s7, v%d' % (T + 4, T + 4))
    a('v_bfe_u32 v%d, v1, 4, 1' % (T + 5))
    a('v_lshlrev_b32 v%d, 1, v%d' % (T + 5, T + 5))
    a('v_bfe_u32 v%d, v1, 1, 1' % T)
    a('v_or_b32 v%d, v%d, v%d' % (T + 5, T + 5, T))
    a('s_lshl_b32 s7, s%d, 3' % sHh)
    a('v_or_b32 v%d, s7, v%d' % (T + 5, T + 5))
    a('v_lshlrev_b32 v%d, 2, v%d' % (T + 2, T + 2))
    a('v_xor_b32 v%d, v%d, v%d' % (T + 5, T + 5, T + 2))
    a('v_lshlrev_b32 v%d, 1, v%d' % (T + 3, T + 3))
    a('v_xor_b32 v%d, v%d, v%d' % (T + 5, T + 5, T + 3))
    for hf in range(2):
        for ct in range(2):
            a('v_xor_b32 v%d, %d, v%d' % (T, (4 * ct) ^ hf, T + 5))
            a('v_lshl_add_u32 v%d, v%d, 4, v%d' % (VTR + 2 * hf + ct, T, T + 4))
            if hf:
                a('v_add_u32 v%d, 0x1000, v%d' % (VTR + 2 * hf + ct, VTR + 2 * hf + ct))
    a('v_mov_b32 v%d, 0xff800000' % MRUN)
    a('v_mov_b32 v%d, 0' % LRUN)
    a('v_cmp_gt_u32 s[%d:%d], 16, v1' % (S_MK, S_MK + 1))
    a('s_cmp_eq_u32 s%d, 0' % sKt)
    a('s_cselect_b32 s%d, 0xffff, 0' % S_MK2)
    a('s_mov_b32 s%d, 0' % (S_MK2 + 1))
    vm.wait('st1')
    g.stamp(vm, 1, T)
    a('s_barrier')
    if o.cut & 2:
        a('s_branch L_END')
    g.stamp(vm, 2, T)
    for ks in range(16):
        a('v_xor_b32 v%d, 0x%x, v%d' % (T + (ks & 1), ks << 4, VQ))
        a('ds_read_b128 %s, v%d' % (vr(Q + 4 * ks, 4), T + (ks & 1)))
    a('s_lshl_b32 s7, s%d, 10' % S_WAVE)
    a('s_add_u32 s7, s7, 0x%x' % G.QST)
    a('v_lshl_add_u32 v%d, v1, 4, s7' % VQ)
    sync()
    for i in range(4):
        a('ds_write_b128 v%d, %s offset:%d' % (VQ, vr(ST1 + 4 * i, 4), i * 8192))
    g.stamp(vm, 3, T)

    def scores2(order, mid, AOB):
        nb = len(AOB)
        for t in order:
            if t == order[1]:
                mid()

            def rd(n):
                vt = T + (n % 3)
                a('v_xor_b32 v%d, 0x%x, v%d' % (vt, n << 4, VA1 if t else VA))
                a('ds_read_b128 %s, v%d' % (vr(AOB[n % nb], 4), vt))
            for n in range(nb - 1):
                rd(n)
            for ks in range(16):
                if ks + nb - 1 < 16:
                    rd(ks + nb - 1)
                    a('s_waitcnt lgkmcnt(%d)' % (nb - 1))
                else:
                    a('s_waitcnt lgkmcnt(%d)' % (15 - ks))
                a('v_mfma_f32_16x16x32_bf16 %s, %s, %s, %s' % (
                    vr(S8 + 4 * t, 4), vr(AOB[ks % nb], 4), vr(Q + 4 * ks, 4), '0' if ks == 0 else vr(S8 + 4 * t, 4)))
        a('v_max3_f32 v%d, v%d, v%d, v%d' % (T, S8, S8 + 1, S8 + 2))
        a('v_max3_f32 v%d, v%d, v%d, v%d' % (T, T, S8 + 3, S8 + 4))
        a('v_max3_f32 v%d, v%d, v%d, v%d' % (T, T, S8 + 5, S8 + 6))
        a('v_max_f32 v%d, v%d, v%d' % (T, T, S8 + 7))
        a('v_mov_b32 v%d, v%d' % (T + 1, T))
        a('v_permlane32_swap_b32 v%d, v%d' % (T, T + 1))
        a('v_max_f32 v%d, v%d, v%d' % (T, T, T + 1))
        a('v_mov_b32 v%d, v%d' % (T + 1, T))
        a('v_permlane16_swap_b32 v%d, v%d' % (T, T + 1))
        a('v_max_f32 v%d, v%d, v%d' % (T, T, T + 1))
        a('s_lshl_b32 s7, s%d, 7' % sKt)
        a('v_add_u32 v%d, s7, v%d' % (T + 1, VTM))
        a('s_mov_b64 exec, s[%d:%d]' % (S_MK, S_MK + 1))
        a('ds_write_b32 v%d, v%d' % (T + 1, T))
        a('s_mov_b64 exec, -1')

    def softmax(last):
        for k in range(4):
            a('ds_read_b32 v%d, v%d offset:%d' % (T + k, VTM, k * 128))
        a('s_waitcnt lgkmcnt(0)')
        a('v_max3_f32 v%d, v%d, v%d, v%d' % (T, T, T + 1, T + 2))
        a('v_max_f32 v%d, v%d, v%d' % (T, T, T + 3))
        a('v_mul_f32 v%d, s%d, v%d' % (T, sC, T))
        a('v_max_f32 v%d, v%d, v%d' % (T, T, MRUN))
        a('v_sub_f32 v%d, v%d, v%d' % (T + 1, MRUN, T))
        a('v_exp_f32 v%d, v%d' % (T + 1, T + 1))
        a('v_mov_b32 v%d, v%d' % (MRUN, T))
        for k in range(8):
            a('v_fma_f32 v%d, v%d, s%d, -v%d' % (S8 + k, S8 + k, sC, T))
        for k in range(8):
            a('v_exp_f32 v%d, v%d' % (S8 + k, S8 + k))
        for k in range(4):
            a('v_cvt_pk_bf16_f32 v%d, v%d, v%d' % (24 + k, S8 + 2 * k, S8 + 2 * k + 1))
        a('ds_write_b64 v%d, v[24:25]' % VP)
        a('ds_write_b64 v%d, v[26:27] offset:4096' % VP)
        a('v_add_u32 v%d, 0x%x, v%d' % (T + 2, (G.ALPHA - G.TMAX) & 0xffffffff, VTM))
        a('s_mov_b64 exec, s[%d:%d]' % (S_MK2, S_MK2 + 1))
        a('ds_write_b32 v%d, v%d' % (T + 2, T + 1))
        a('s_mov_b64 exec, -1')
        a('v_mul_f32 v%d, v%d, v%d' % (LRUN, LRUN, T + 1))
        for st in (4, 2, 1):
            for k in range(st):
                a('v_add_f32 v%d, v%d, v%d' % (S8 + k, S8 + k, S8 + k + st))
        a('v_add_f32 v%d, v%d, v%d' % (LRUN, LRUN, S8))
        if last:
            a('v_mov_b32 v%d, v%d' % (T, LRUN))
            a('v_permlane32_swap_b32 v%d, v%d' % (LRUN, T))
            a('v_add_f32 v%d, v%d, v%d' % (LRUN, LRUN, T))
            a('v_mov_b32 v%d, v%d' % (T, LRUN))
            a('v_permlane16_swap_b32 v%d, v%d' % (LRUN, T))
            a('v_add_f32 v%d, v%d, v%d' % (LRUN, LRUN, T))
            a('s_lshl_b32 s7, s%d, 7' % sKt)
            a('s_add_u32 s7, s7, 0x%x' % (G.LBUF - G.TMAX))
            a('v_add_u32 v%d, s7, v%d' % (T + 1, VTM))
            a('v_add_u32 v%d, 0x%x, v%d' % (T + 2, G.MBUF - G.TMAX, VTM))
            a('s_mov_b64 exec, s[%d:%d]' % (S_MK, S_MK + 1))
            a('ds_write_b32 v%d, v%d' % (T + 1, LRUN))
            a('s_mov_b64 exec, s[%d:%d]' % (S_MK2, S_MK2 + 1))
            a('ds_write_b32 v%d, v%d' % (T + 2, MRUN))
            a('s_mov_b64 exec, -1')

    def ctx(first):
        PB = 16
        CO = [24, 28, T, T + 4]
        if not first:
            a('ds_read_b32 v15, v%d' % VAL)

        def rd(kk):
            if kk == 4:
                for v in range(4):
                    a('v_add_u32 v%d, 0x10000, v%d' % (VTR + v, VTR + v))
            a('ds_read_b128 %s, v%d offset:%d' % (vr(PB + 4 * (kk & 1), 4), VPB, kk * 1024))
            for ct in range(2):
                c = CO[(2 * kk + ct) & 3]
                a('ds_read_b64_tr_b16 v[%d:%d], v%d offset:%d' % (c, c + 1, VTR + ct, (kk & 3) * 16384))
                a('ds_read_b64_tr_b16 v[%d:%d], v%d offset:%d' % (c + 2, c + 3, VTR + 2 + ct, (kk & 3) * 16384))
        rd(0)
        if not first:
            a('s_waitcnt lgkmcnt(5)')
            for k in range(32):
                a('v_mul_f32 v%d, v15, v%d' % (ACC + k, ACC + k))
        for kk in range(8):
            if kk == 4:
                a('s_barrier')
            if first and kk in (4, 5):
                for i in range(4 * (kk - 4), 4 * (kk - 4) + 4):
                    a('s_mov_b32 m0, s%d' % sM0)
                    a('s_add_u32 s%d, s%d, 8192' % (sM0, sM0))
                    vm.issue('buffer_load_dwordx4 v%d, %s, s%d offen nt lds' % (15 if i & 1 else 3, srd(SRD_A), sLd), 'q3')
                    a('s_add_u32 s%d, s%d, 8192' % (sLd, sLd))
            if kk < 7:
                rd(kk + 1)
                a('s_waitcnt lgkmcnt(7)')
            else:
                a('s_waitcnt lgkmcnt(2)')
            for ct in range(2):
                if ct == 1:
                    a('s_waitcnt lgkmcnt(%d)' % (5 if kk < 7 else 0))
                c = CO[(2 * kk + ct) & 3]
                a('v_mfma_f32_32x32x16_bf16 %s, %s, %s, %s' % (
                    vr(ACC + 16 * ct, 16), vr(c, 4), vr(PB + 4 * (kk & 1), 4),
                    '0' if (first and kk == 0) else vr(ACC + 16 * ct, 16)))
        if first:
            for v in range(4):
                a('v_add_u32 v%d, 0xffff0000, v%d' % (VTR + v, VTR + v))

    scores2((0, 1), sync, [24, 28, T + 4] + [ACC + 16 + 4 * k for k in range(o.nb - 3)])
    g.stamp(vm, 8, T + 2)
    sync()
    softmax(False)
    a('v_lshlrev_b32 v3, 4, v1')
    a('v_xor_b32 v3, s%d, v3' % sSw)
    a('v_xor_b32 v15, 32, v3')
    a('s_lshl_b32 s%d, s%d, 10' % (sM0, S_WAVE))
    sync()
    g.stamp(vm, 11, T + 2)
    ctx(True)
    a('s_lshl_b32 s7, s%d, 10' % S_WAVE)
    a('s_add_u32 s7, s7, 0x%x' % G.RING1)
    a('v_lshl_add_u32 v3, v1, 4, s7')
    vm.wait('st2')
    a('s_barrier')
    g.stamp(vm, 4, T + 2)
    for i in range(8):
        a('ds_write_b128 v3, %s offset:%d' % (vr(ST2 + 4 * i, 4), i * 8192))
    sync()
    g.stamp(vm, 5, T + 2)

    def mid2():
        vm.wait('q3')
        a('s_barrier')
    scores2((1, 0), mid2, [24, 28, T + 4] + [ST2 + 4 * k for k in range(o.nb - 3)])
    g.stamp(vm, 13, T + 2)
    sync()
    softmax(True)
    VC = 98
    a('v_and_b32 v%d, 31, v1' % T)
    a('v_lshlrev_b32 v%d, 7, v%d' % (VC, T))
    a('v_lshrrev_b32 v%d, 5, v1' % (T + 1))
    a('v_and_b32 v%d, 7, v1' % T)
    a('v_xor_b32 v%d, v%d, v%d' % (T + 1, T, T + 1))
    a('v_lshl_add_u32 v%d, v%d, 4, v%d' % (VC, T + 1, VC))
    a('s_lshl_b32 s7, s%d, 12' % S_WAVE)
    a('v_add_u32 v%d, s7, v%d' % (VC, VC))
    a('v_lshl_add_u32 v99, v1, 4, s7')
    a('v_lshrrev_b32 v%d, 3, v1' % (T + 1))
    a('v_xor_b32 v%d, v%d, v%d' % (T, T, T + 1))
    a('v_lshlrev_b32 v100, 7, v%d' % (T + 1))
    a('v_lshl_add_u32 v100, v%d, 4, v100' % T)
    a('s_lshl_b32 s%d, s%d, 15' % (sX, sBi))
    a('s_add_u32 s%d, s%d, s7' % (sX, sX))
    a('s_add_u32 s%d, s%d, 0x%x' % (sX, sX, G.WS_CTX))
    sync()
    ctx(False)
    g.stamp(vm, 6, T)
    for ct in range(2):
        for k in range(2):
            r0, r1 = ACC + 16 * ct + 8 * k, ACC + 16 * ct + 8 * k + 4
            for e in range(4):
                a('v_permlane32_swap_b32 v%d, v%d' % (r0 + e, r1 + e))
            d = 16 + 4 * (2 * ct + k)
            a('v_cvt_pk_bf16_f32 v%d, v%d, v%d' % (d, r0, r0 + 1))
            a('v_cvt_pk_bf16_f32 v%d, v%d, v%d' % (d + 1, r0 + 2, r0 + 3))
            a('v_cvt_pk_bf16_f32 v%d, v%d, v%d' % (d + 2, r1, r1 + 1))
            a('v_cvt_pk_bf16_f32 v%d, v%d, v%d' % (d + 3, r1 + 2, r1 + 3))
            a('v_xor_b32 v%d, 0x%x, v%d' % (T + ((2 * ct + k) & 1), (4 * ct + 2 * k) << 4, VC))
            a('ds_write_b128 v%d, %s' % (T + ((2 * ct + k) & 1), vr(d, 4)))
    for i in range(4):
        a('ds_read_b128 %s, v99 offset:%d' % (vr(32 + 4 * i, 4), i * 1024))
    for i in range(4):
        a('s_waitcnt lgkmcnt(%d)' % (3 - i))
        vm.issue('buffer_store_dwordx4 %s, v100, %s, s%d offen offset:%d sc1' % (
            vr(32 + 4 * i, 4), srd(SRD_WS), sX, i * 1024), 'ctx')
    g.stamp(vm, 7, T)
    g.nonce_lds(T)
    a('v_and_b32 v%d, 31, v1' % T)
    a('v_lshlrev_b32 v3, 2, v%d' % T)
    a('v_add_u32 v3, 0x%x, v3' % G.LBUF)
    a('s_lshl_b32 s7, s%d, 9' % sBi)
    a('s_add_u32 s7, s7, 0x%x' % G.WS_MLB)
    a('s_cmp_eq_u32 s%d, 0' % S_WAVE)
    a('s_cselect_b32 s7, s7, 0x40000000')
    a('v_lshl_add_u32 v4, v%d, 4, s7' % T)
    g.set_tag(20)
    for k in range(4):
        a('ds_read_b32 v%d, v3 offset:%d' % (16 + k, k * 128))
    a('ds_read_b32 v20, v3 offset:%d' % (G.MBUF - G.LBUF))
    a('s_waitcnt lgkmcnt(0)')
    a('v_add_f32 v16, v16, v17')
    a('v_add_f32 v18, v18, v19')
    a('v_add_f32 v21, v16, v18')
    vm.wait_all()
    a('s_barrier')
    if o.cut & 1:
        a('s_branch L_END')
    a('s_mov_b64 exec, 0xffffffff')
    a('buffer_store_dwordx4 v[20:23], v4, %s, 0 offen sc1' % srd(SRD_WS))
    a('s_mov_b64 exec, -1')
    g.stamp(vm, 9, T)
    a('v_lshlrev_b32 v2, 4, v1')
    if o.pv:
        mk_srd(a, SRD_A, P_V, 134217728)
        a('s_bfe_u32 s7, s%d, 0x10002' % S_SLOT)
        a('s_lshl_b32 s7, s7, 6')
        a('s_add_u32 s7, s7, s%d' % S_H)
        a('s_lshl_b32 s7, s7, 20')
        a('s_lshl_b32 s%d, s%d, 10' % (S_T + 12, S_WAVE))
        a('s_add_u32 s%d, s%d, s7' % (S_T + 12, S_T + 12))
        a('s_add_u32 s%d, s%d, %d' % (S_T + 12, S_T + 12, 0xC0000 + (G.NS * (G.NQ - o.hj) if o.hj else 256) * 1024 - 8192))
        a('s_add_u32 s%d, s%d, 0x2000000' % (S_T + 13, S_T + 12))
        a('s_mov_b32 s%d, %d' % (S_T + 14, o.pv // 8))
        a('s_sleep %d' % o.pvs)
        Lp = a.uniq('PV')
        a.label(Lp)
        for k in range(2):
            a('s_waitcnt vmcnt(%d)' % (o.pvd - 1))
            a('buffer_load_dwordx4 v[8:11], v2, %s, s%d offen' % (srd(SRD_A), S_T + 12 + k))
            a('s_sub_u32 s%d, s%d, 8192' % (S_T + 12 + k, S_T + 12 + k))
        a('s_sub_u32 s%d, s%d, 1' % (S_T + 14, S_T + 14))
        a('s_cmp_lg_u32 s%d, 0' % (S_T + 14))
        a('s_cbranch_scc1 %s' % Lp)
    mk_srd(a, SRD_C, P_OUT, 8192)
    a('s_lshl_b32 s7, s%d, 3' % sBi)
    a('s_add_u32 s7, s7, s%d' % S_WAVE)
    a('s_lshl_b32 s7, s7, 10')
    a('s_add_u32 s7, s7, 0x%x' % G.WS_Y)
    a('v_add_u32 v4, s7, v2')
    a('s_bfe_u32 s7, s%d, 0x20003' % sBi)
    a('s_lshl_b32 s7, s7, 11')
    a('s_lshr_b32 s%d, s%d, 5' % (sOff, sBi))
    a('s_lshl_b32 s%d, s%d, 10' % (sOff, sOff))
    a('s_add_u32 s7, s7, s%d' % sOff)
    a('s_and_b32 s%d, s%d, 7' % (sOff, sBi))
    a('s_lshl_b32 s%d, s%d, 7' % (sOff, sOff))
    a('s_add_u32 s7, s7, s%d' % sOff)
    a('v_and_b32 v5, 7, v1')
    a('v_lshl_add_u32 v5, v5, 4, s7')
    a('v_lshrrev_b32 v6, 4, v1')
    a('v_lshl_add_u32 v5, v6, 2, v5')
    a('s_mov_b32 s%d, 0x00ff00ff' % S_MK3)
    a('s_mov_b32 s%d, 0x00ff00ff' % (S_MK3 + 1))
    a('s_lshl_b32 s7, s%d, 10' % S_WAVE)
    a('s_add_u32 s7, s7, 0x%x' % G.PBUF)
    a('v_add_u32 v6, s7, v2')

    def mk(r):
        return (['buffer_load_dwordx4 %s, v4, %s, 0 offen sc1' % (vr(r, 4), srd(SRD_WS))], [r])
    g.poll(vm, mk(32)[0], 32, T, sleep=o.rsl, anyok=True)
    g.stamp(vm, 10, T)
    LR = a.uniq('RD')
    g.unpack4(64, 32)
    a('s_cbranch_vccz %s' % LR)
    g.poll_pipe(vm, mk, [32, 36, 40][:o.rpn], lambda r: g.unpack4(64, r), gap=o.rpp)
    a.label(LR)
    a('ds_write_b128 v6, v[64:67]')
    g.stamp(vm, 12, T)
    sync()
    a('s_cmp_lg_u32 s%d, 0' % S_WAVE)
    a('s_cbranch_scc1 L_END')
    Y = 64
    for i in range(8):
        a('ds_read_b128 %s, v6 offset:%d' % (vr(Y + 4 * i, 4), 1024 * i))
    for e in range(2):
        y = Y + 16 * e
        a('s_waitcnt lgkmcnt(%d)' % (4 - 4 * e))
        for st in (8, 4):
            for k in range(0, st, 2):
                a('v_pk_add_f32 v[%d:%d], v[%d:%d], v[%d:%d]' % (y + k, y + k + 1, y + k, y + k + 1, y + k + st, y + k + st + 1))
    for k in range(4):
        a('v_permlane32_swap_b32 v%d, v%d' % (Y + k, Y + 16 + k))
    for k in range(4):
        a('v_add_f32 v%d, v%d, v%d' % (Y + k, Y + k, Y + 16 + k))
    for k in range(2):
        a('v_permlane16_swap_b32 v%d, v%d' % (Y + k, Y + 2 + k))
    for k in range(2):
        a('v_add_f32 v%d, v%d, v%d' % (Y + k, Y + k, Y + 2 + k))
    for k in range(2):
        a('v_add_f32_dpp v%d, v%d, v%d row_ror:8 row_mask:0xf bank_mask:0xf' % (Y + k, Y + k, Y + k))
    a('v_cvt_pk_bf16_f32 v8, v%d, v%d' % (Y, Y + 1))
    a('s_mov_b64 exec, s[%d:%d]' % (S_MK3, S_MK3 + 1))
    a('buffer_store_dword v8, v5, %s, 0 offen' % srd(SRD_C))
    a('s_mov_b64 exec, -1')
    g.end()


def c_svc(g):
    a, o = g.a, g.o
    vm = VM(a)
    g.sec('CSVC')
    a.label('L_CSVC')
    g.common(True)
    sS, sOff, sBi = S_T, S_T + 3, S_T + 4
    VT = 6
    ST3, GQ = 32, 96
    T = 160
    a('s_setprio 3')
    a('s_sub_u32 s%d, s%d, 8' % (sS, S_WAVE))
    ci(a, sBi)
    a('v_lshlrev_b32 v2, 4, v1')
    a('s_barrier')
    g.touch(9, 'CR')
    g.touch(10, 'CR2')
    L0 = a.uniq('C8')
    a('s_cmp_lg_u32 s%d, 0' % sS)
    a('s_cbranch_scc1 %s' % L0)
    a('s_sleep %d' % o.csl)
    g.nonce_get(vm, T)
    g.nonce_share(T)
    a.label(L0)
    a('s_lshr_b32 s7, s%d, 4' % sBi)
    a('s_lshl_b32 s7, s7, 16')
    a('s_lshl_b32 s%d, s%d, 14' % (sOff, sS))
    a('s_add_u32 s7, s7, s%d' % sOff)
    a('s_add_u32 s7, s7, 0x%x' % G.WS_QABS)
    a('v_lshl_add_u32 v4, v1, 4, s7')
    a('s_and_b32 s7, s%d, 1' % sS)
    a('s_lshl_b32 s7, s7, 7')
    a('v_lshlrev_b32 v3, 3, v1')
    a('v_xor_b32 v3, s7, v3')
    a('s_lshl_b32 s7, s%d, 13' % sS)
    a('s_add_u32 s7, s7, 0x%x' % G.QST)
    a('v_add_u32 v3, s7, v3')
    if o.cut & 16:
        a('s_branch L_CCUT')
    g.nonce_lds(T, sleep=4)
    g.stamp(vm, 1, T)
    if o.qev:
        g.lds_wait(G.C_OK, 8, T, T + 1, sleep=2)
    a('s_sleep %d' % o.csl2)
    for k in range(1, 4):
        a('s_mov_b32 s%d, %d' % (S_T + 6 + k, 4096 * k))
    loads = ['buffer_load_dwordx4 %s, v4, %s, %s offen offset:%d sc1' % (
        vr(GQ + 4 * i, 4), srd(SRD_WS), '0' if i < 4 else 's%d' % (S_T + 6 + (i >> 2)), (i & 3) * 1024) for i in range(16)]
    if o.cpre:
        g.poll(vm, loads[:1], GQ, T, sleep=o.cpre, anyok=bool(o.cany))
    g.stamp(vm, 0, T)
    g.poll_sel(vm, loads, [GQ + 4 * i for i in range(16)], T, plain=bool(o.qpl))
    for i in range(16):
        if i & 1 == 0:
            a('v_xor_b32 v%d, 0x%x, v3' % (VT + ((i >> 1) & 1), (i >> 1) << 4))
        a('ds_write_b64 v%d, %s offset:%d' % (VT + ((i >> 1) & 1), vr(GQ + 4 * i, 2), i * 512))
    a.label('L_CCUT')
    a('s_waitcnt lgkmcnt(0)')
    a('s_barrier')
    g.stamp(vm, 3, T)
    g.end()
```

```python
import sys
import os
sys.path.insert(0, os.path.dirname(os.path.abspath(__file__)))
from asmlib import Asm, vr, sr
import struct

NAME = 'concat_heads__sliding_block_cached__compressed_kv_cla__decode'


class Opt:
    dev = 0
    hs = 0
    spin = 200000
    kd = 3
    kd1 = 4
    kn1 = 0
    rot = 0
    bd = 4
    ud = 3
    sdu = 2
    sdx = 2
    xmap = 0
    bap = 0
    noswz = 0
    rsl = 20
    xsl = 2
    hold = 1
    lay = 1
    psl8 = 26
    dump = 0
    kdl = 5
    knl = 0
    bal = 1
    hj = 0
    vhd = 3
    cpf = 0
    n2b = 2
    n2s = 4
    n3b = 0
    q3sl = 8
    kh = 0
    qpl = 0
    qev = 21
    pw = 0
    q3p = 3
    cany = 1
    xpp = 4
    upp = 2
    rpp = 4
    pf = 64
    pfe = 0
    pfd = 8
    ndb = 16
    n3 = 0
    bd3e = 2
    swp = 0
    n2 = 8
    nb = 7
    cpre = 0
    l2 = 1
    pv = 32
    pvd = 4
    rpn = 2
    pvs = 60
    cutsl = 1
    csl2 = 1
    asl = 16
    usl = 16
    cut = 0
    q0 = 16
    qr = 2
    bu = 1
    noclr = 0
    psl = 26
    wfe = 0
    nsl = 8
    ukd = 8
    ukd1 = 8
    ukn1 = 0
    bd3 = 8
    csl = 24
    wsl = 4
    wsl2 = 4


NW = 12
NS = 11
NQ = 24

WS_QABS = 0x000000
WS_QBP = 0x040000
WS_QAP = 0x080000
WS_CHK = 0x0C0000
WS_OA = 0x0D0000
WS_MLB = 0x0E0000
WS_PH = 0x200000
WS_Y = 0x100000
WS_CTX = 0x500000
WS_TS = 0x800000
WS_HS = 0xF00000
WS_SIZE = 0x1000000

RING0 = 0
RING1 = 65536
QST = 98304
MISC = 147456
C_CLR = MISC + 0
C_Q = MISC + 4
C_ML = MISC + 8
C_O = MISC + 12
C_ATT = MISC + 16
C_UK = MISC + 20
C_OK = MISC + 24
C_OK2 = MISC + 28
C_OB = MISC + 32
C_FL = MISC + 36
C_QST = MISC + 40
C_S0 = MISC + 44
C_Q3 = MISC + 48
C_X1 = MISC + 52
C_X2 = MISC + 56
C_X3 = MISC + 60
C_PA = MISC + 64
C_PB = MISC + 68
C_QA = MISC + 72
C_N = MISC + 76
C_PUB = MISC + 88
C_PF = MISC + 92
C_VH = MISC + 96
NONCE = MISC + 80
QBUF = MISC + 256
MLBUF = MISC + 512
OBUF = MISC + 1024
PT = MISC + 2048
PHL = MISC + 4096
OHB = MISC + 8192
MLS = MISC + 2048
PBUF = MISC + 4608
TMAX = MISC + 12800
LBUF = MISC + 13312
ALPHA = MISC + 15872
MBUF = MISC + 16000
PPART = 0
OPART = 65536
LDS_BYTES = 163840

SCALE_LOG2E = 0.08838834764831845 * 1.4426950408889634


def f32bits(x):
    return struct.unpack('<I', struct.pack('<f', x))[0]


P_AX, P_K, P_V, P_WQ, P_WO, P_BX, P_CKV, P_BWQ, P_WUK, P_WUV, P_BWO, P_OUT, P_DBG, P_WS = [8 + 2 * i for i in range(14)]
S_WAVE, S_G, S_SLOT, S_H = 3, 4, 5, 6
SRD_WS, SRD_DBG = 36, 40
SRD_A, SRD_B, SRD_C, SRD_D = 44, 48, 52, 56
S_T = 60
S_SPIN = 80
S_TS = 82
S_EX = 84
S_MK = 86
S_MK2 = 88
S_MK3 = 90
S_LO, S_HI = 92, 93
S_XCC = 96
S_FAR = 97
S_NON = 94


class VM:
    def __init__(self, a):
        self.a = a
        self.q = []

    def issue(self, text, tag=None):
        self.a(text)
        self.q.append(tag)

    def wait(self, tag):
        if tag not in self.q:
            return
        idx = max(i for i, t in enumerate(self.q) if t == tag)
        n = len(self.q) - 1 - idx
        self.a('s_waitcnt vmcnt(%d)' % n)
        self.q = self.q[idx + 1:]

    def wait_n(self, n):
        if len(self.q) > n:
            self.a('s_waitcnt vmcnt(%d)' % n)
            self.q = self.q[len(self.q) - n:]

    def wait_all(self):
        self.a('s_waitcnt vmcnt(0)')
        self.q = []


def mk_srd(a, d, p, nbytes):
    a('s_mov_b32 s%d, s%d' % (d, p))
    a('s_and_b32 s%d, s%d, 0xffff' % (d + 1, p + 1))
    a('s_mov_b32 s%d, 0x%x' % (d + 2, nbytes))
    a('s_mov_b32 s%d, 0x20000' % (d + 3))


def srd(d):
    return 's[%d:%d]' % (d, d + 3)


class Gen:
    def __init__(self, opt):
        self.o = opt
        self.a = Asm()

    def stamp(self, vm, idx, vt):
        if not self.o.dev:
            return
        a = self.a
        a('s_memrealtime s[%d:%d]' % (S_TS, S_TS + 1))
        a('s_waitcnt lgkmcnt(0)')
        a('v_mov_b32 v%d, s%d' % (vt, S_TS))
        a('v_mov_b32 v%d, s%d' % (vt + 1, S_TS + 1))
        a('s_mul_i32 s%d, s2, 12' % S_TS)
        a('s_add_u32 s%d, s%d, s%d' % (S_TS, S_TS, S_WAVE))
        a('s_lshl_b32 s%d, s%d, 7' % (S_TS, S_TS))
        a('s_add_u32 s%d, s%d, 0x%x' % (S_TS, S_TS, WS_TS + idx * 8))
        a('v_mov_b32 v%d, s%d' % (vt + 2, S_TS))
        a('s_mov_b64 s[%d:%d], exec' % (S_EX, S_EX + 1))
        a('s_mov_b64 exec, 1')
        vm.issue('buffer_store_dwordx2 v[%d:%d], v%d, %s, 0 offen' % (vt, vt + 1, vt + 2, srd(SRD_WS)), 'ts')
        a('s_mov_b64 exec, s[%d:%d]' % (S_EX, S_EX + 1))

    def sec(self, name, jump=False):
        if jump:
            self.a('s_branch L_%s' % name)
        self.a.raw(';@SEC %s' % name)
        if jump:
            self.a.label('L_%s' % name)

    def touch(self, wave, page):
        a = self.a
        if not self.o.lay:
            return
        a('s_cmp_eq_u32 s%d, %d' % (S_WAVE, wave))
        a('s_cbranch_scc1 LT_%s' % page)
        a.label('LR_%s' % page)

    def end(self, have=False):
        a = self.a
        if self.o.hs:
            a('s_mov_b64 exec, 1')
            if not have:
                a('s_memrealtime s[98:99]')
            a('s_mul_i32 s7, s2, 12')
            a('s_add_u32 s7, s7, s%d' % S_WAVE)
            a('s_lshl_b32 s7, s7, 3')
            a('s_add_u32 s7, s7, 0x%x' % WS_HS)
            a('v_mov_b32 v2, s7')
            a('s_waitcnt lgkmcnt(0)')
            a('v_mov_b32 v4, s100')
            a('v_mov_b32 v5, s98')
            a('buffer_store_dwordx2 v[4:5], v2, %s, 0 offen' % srd(SRD_WS))
        a('s_endpgm')

    def lds_signal(self, addr, va, vb):
        a = self.a
        a('v_mov_b32 v%d, 0x%x' % (va, addr))
        a('v_mov_b32 v%d, 1' % vb)
        a('s_waitcnt lgkmcnt(0)')
        a('s_mov_b64 exec, 1')
        a('ds_add_u32 v%d, v%d' % (va, vb))
        a('s_mov_b64 exec, -1')

    def lds_wait(self, addr, target, va, vb, sleep=4):
        a = self.a
        L = a.uniq('LW')
        Ld = a.uniq('LWD')
        a('v_mov_b32 v%d, 0x%x' % (va, addr))
        a('s_mov_b32 s%d, %d' % (S_SPIN, self.o.spin * 8))
        a.label(L)
        a('ds_read_b32 v%d, v%d' % (vb, va))
        a('s_waitcnt lgkmcnt(0)')
        a('v_readfirstlane_b32 s%d, v%d' % (S_T + 19, vb))
        a('s_cmp_ge_u32 s%d, %d' % (S_T + 19, target))
        a('s_cbranch_scc1 %s' % Ld)
        if sleep:
            a('s_sleep %d' % int(sleep))
        a('s_sub_u32 s%d, s%d, 1' % (S_SPIN, S_SPIN))
        a('s_cmp_lg_u32 s%d, 0' % S_SPIN)
        a('s_cbranch_scc1 %s' % L)
        a.label(Ld)

    def nonce_make(self, t):
        if self.o.noclr & 8:
            return
        a = self.a
        L = a.uniq('NM')
        a('s_lshl_b32 s7, s2, 4')
        a('s_add_u32 s7, s7, s%d' % S_WAVE)
        a('s_cmp_lg_u32 s7, 8')
        a('s_cbranch_scc1 %s' % L)
        a('s_memrealtime s[%d:%d]' % (S_NON, S_NON + 1))
        mk_srd(a, SRD_DBG, P_DBG, 256)
        a('v_mov_b32 v%d, 0' % t)
        a('s_waitcnt lgkmcnt(0)')
        a('s_or_b32 s%d, s%d, 0x80000000' % (S_NON + 1, S_NON + 1))
        a('v_mov_b32 v%d, s%d' % (t + 2, S_NON))
        a('v_mov_b32 v%d, s%d' % (t + 3, S_NON + 1))
        a('s_mov_b64 exec, 1')
        a('buffer_store_dwordx2 v[%d:%d], v%d, %s, 0 offen sc1' % (t + 2, t + 3, t, srd(SRD_DBG)))
        a('s_mov_b64 exec, -1')
        a.label(L)

    def nonce_get(self, vm, t, sleep=4, dbl=0):
        if self.o.noclr & 8:
            return
        a = self.a
        L, Ld = a.uniq('NG'), a.uniq('NGD')
        a('v_mov_b32 v%d, 0' % t)
        a('s_mov_b32 s%d, %d' % (S_SPIN, self.o.spin))
        if dbl:
            L2 = a.uniq('NG2')
            a('s_mov_b64 exec, 1')
            a('buffer_load_dwordx2 v[%d:%d], v%d, %s, 0 offen sc1' % (t + 4, t + 5, t, srd(SRD_DBG)))
            a('s_sleep %d' % dbl)
            a('buffer_load_dwordx2 v[%d:%d], v%d, %s, 0 offen sc1' % (t + 2, t + 3, t, srd(SRD_DBG)))
            a('s_mov_b64 exec, -1')
            a('s_waitcnt vmcnt(1)')
            a('v_readfirstlane_b32 s%d, v%d' % (S_NON, t + 4))
            a('v_readfirstlane_b32 s%d, v%d' % (S_NON + 1, t + 5))
            a('s_cmp_lg_u32 s%d, 0' % (S_NON + 1))
            a('s_cbranch_scc1 %s' % Ld)
            a('s_branch %s' % L2)
        a.label(L)
        a('s_mov_b64 exec, 1')
        a('buffer_load_dwordx2 v[%d:%d], v%d, %s, 0 offen sc1' % (t + 2, t + 3, t, srd(SRD_DBG)))
        a('s_mov_b64 exec, -1')
        if dbl:
            a.label(L2)
        a('s_waitcnt vmcnt(0)')
        vm.q = []
        a('v_readfirstlane_b32 s%d, v%d' % (S_NON, t + 2))
        a('v_readfirstlane_b32 s%d, v%d' % (S_NON + 1, t + 3))
        a('s_cmp_lg_u32 s%d, 0' % (S_NON + 1))
        a('s_cbranch_scc1 %s' % Ld)
        a('s_sleep %d' % sleep)
        a('s_sub_u32 s%d, s%d, 1' % (S_SPIN, S_SPIN))
        a('s_cmp_lg_u32 s%d, 0' % S_SPIN)
        a('s_cbranch_scc1 %s' % L)
        a.label(Ld)

    def check_in(self, t):
        a = self.a
        a('s_getreg_b32 s%d, hwreg(HW_REG_XCC_ID, 0, 4)' % S_XCC)
        a('s_lshl_b32 s7, s%d, 5' % S_G)
        a('s_add_u32 s7, s7, s%d' % S_SLOT)
        a('s_lshl_b32 s7, s7, 4')
        a('s_add_u32 s7, s7, 0x%x' % WS_CHK)
        a('v_mov_b32 v%d, s7' % t)
        a('v_mov_b32 v%d, s%d' % (t + 2, S_XCC))
        a('v_mov_b32 v%d, 0' % (t + 3))
        self.set_tag(t + 2)
        a('s_mov_b64 exec, 1')
        a('buffer_store_dwordx4 v[%d:%d], v%d, %s, 0 offen' % (t + 2, t + 5, t, srd(SRD_WS)))
        a('s_mov_b64 exec, -1')

    def nonce_share(self, t):
        a = self.a
        a('v_mov_b32 v%d, 0x%x' % (t, NONCE))
        a('v_mov_b32 v%d, s%d' % (t + 2, S_NON))
        a('v_mov_b32 v%d, s%d' % (t + 3, S_NON + 1))
        a('ds_write_b64 v%d, v[%d:%d]' % (t, t + 2, t + 3))
        self.lds_signal(C_N, t, t + 1)

    def nonce_lds(self, t, sleep=2):
        a = self.a
        self.lds_wait(C_N, 1, t, t + 1, sleep=sleep)
        a('v_mov_b32 v%d, 0x%x' % (t, NONCE))
        a('ds_read_b64 v[%d:%d], v%d' % (t + 2, t + 3, t))
        a('s_waitcnt lgkmcnt(0)')
        a('v_readfirstlane_b32 s%d, v%d' % (S_NON, t + 2))
        a('v_readfirstlane_b32 s%d, v%d' % (S_NON + 1, t + 3))

    def bad(self, regs, vt):
        if isinstance(regs, int):
            self.a('v_cmp_ne_u64 vcc, s[%d:%d], v[%d:%d]' % (S_NON, S_NON + 1, regs + 2, regs + 3))
        else:
            self.any_sentinel(regs, vt)

    def set_tag(self, r):
        self.a('v_mov_b32 v%d, s%d' % (r + 2, S_NON))
        self.a('v_mov_b32 v%d, s%d' % (r + 3, S_NON + 1))

    def unpack4(self, dst, src):
        a = self.a
        for k in range(2):
            a('v_lshlrev_b32 v%d, 16, v%d' % (dst + 2 * k, src + k))
            a('v_and_b32 v%d, 0xffff0000, v%d' % (dst + 2 * k + 1, src + k))

    def poll(self, vm, loads, regs, vt, sleep=1, first=None, anyok=False):
        a = self.a
        L, L2, Ld = a.uniq('PO'), a.uniq('PO2'), a.uniq('POD')
        if first:
            for t in loads:
                a(t)
            first()
            a('s_mov_b32 s%d, %d' % (S_SPIN, self.o.spin))
            a('s_branch %s' % L2)
        else:
            a('s_mov_b32 s%d, %d' % (S_SPIN, self.o.spin))
        a.label(L)
        for t in loads:
            a(t)
        a.label(L2)
        a('s_waitcnt vmcnt(0)')
        vm.q = []
        self.bad(regs, vt)
        if anyok:
            a('s_cmp_lg_u64 vcc, -1')
            a('s_cbranch_scc1 %s' % Ld)
        else:
            a('s_cbranch_vccz %s' % Ld)
        if sleep:
            a('s_sleep %d' % sleep)
        a('s_sub_u32 s%d, s%d, 1' % (S_SPIN, S_SPIN))
        a('s_cmp_lg_u32 s%d, 0' % S_SPIN)
        a('s_cbranch_scc1 %s' % L)
        a.label(Ld)

    def poll_sel(self, vm, loads, regs, vt, sleep=1, first=None, late=None, plain=False):
        a = self.a
        sM = S_T + 18
        L, Ld = a.uniq('PS'), a.uniq('PSD')
        for t in loads:
            a(t.replace(' sc1', '') if plain else t)
        if first:
            first()
        a('s_mov_b32 s%d, %d' % (S_SPIN, self.o.spin))
        a.label(L)
        a('s_waitcnt vmcnt(0)')
        vm.q = []
        a('s_mov_b32 s%d, 0' % sM)
        for k, (t, r) in enumerate(zip(loads, regs)):
            Ls = a.uniq('PSS')
            self.bad(r, vt)
            a('s_cbranch_vccz %s' % Ls)
            a(t)
            a('s_mov_b32 s%d, 1' % sM)
            a.label(Ls)
        a('s_cmp_eq_u32 s%d, 0' % sM)
        a('s_cbranch_scc1 %s' % Ld)
        if sleep > 1:
            a('s_sleep %d' % sleep)
        if late:
            Ll = a.uniq('PSL')
            a('s_cmp_lg_u32 s%d, %d' % (S_SPIN, self.o.spin - 16))
            a('s_cbranch_scc1 %s' % Ll)
            late()
            a.label(Ll)
        a('s_sub_u32 s%d, s%d, 1' % (S_SPIN, S_SPIN))
        a('s_cmp_lg_u32 s%d, 0' % S_SPIN)
        a('s_cbranch_scc1 %s' % L)
        a('s_waitcnt vmcnt(0)')
        a.label(Ld)

    def poll_pipe(self, vm, mk_loads, bufs, done, gap=2):
        a = self.a
        L, Ld = a.uniq('PP'), a.uniq('PPD')
        n = len(mk_loads(bufs[0])[0])
        for r in bufs:
            for t in mk_loads(r)[0]:
                a(t)
            if gap:
                a('s_sleep %d' % gap)
        a('s_mov_b32 s%d, %d' % (S_SPIN, self.o.spin))
        a.label(L)
        outs = []
        for r in bufs:
            loads, gran = mk_loads(r)
            Lo = a.uniq('PPO')
            outs.append(Lo)
            a('s_waitcnt vmcnt(%d)' % (n * (len(bufs) - 1)))
            for k, g in enumerate(gran):
                if k == 0:
                    a('v_cmp_ne_u64 vcc, s[%d:%d], v[%d:%d]' % (S_NON, S_NON + 1, g + 2, g + 3))
                else:
                    a('v_cmp_ne_u64 s[%d:%d], s[%d:%d], v[%d:%d]' % (S_EX, S_EX + 1, S_NON, S_NON + 1, g + 2, g + 3))
                    a('s_or_b64 vcc, vcc, s[%d:%d]' % (S_EX, S_EX + 1))
            a('s_cmp_eq_u64 vcc, 0')
            a('s_cbranch_scc1 %s' % Lo)
            for t in loads:
                a(t)
        a('s_sub_u32 s%d, s%d, 1' % (S_SPIN, S_SPIN))
        a('s_cmp_lg_u32 s%d, 0' % S_SPIN)
        a('s_cbranch_scc1 %s' % L)
        for i, (r, Lo) in enumerate(zip(bufs, outs)):
            a.label(Lo)
            done(r)
            if i + 1 < len(bufs):
                a('s_branch %s' % Ld)
        a.label(Ld)
        vm.q = ['x'] * (n * len(bufs))

    def add2(self, d, x, y):
        for k in range(2):
            self.a('v_add_f32 v%d, v%d, v%d' % (d + k, x + k, y + k))

    def pkfma_bcast(self, dst, src, e, first=False):
        a = self.a
        if e % 2 == 0:
            m1 = 'v[%d:%d]' % (e, e + 1)
            if first:
                a('v_pk_mul_f32 v[%d:%d], v[%d:%d], %s op_sel_hi:[1,0]' % (dst, dst + 1, src, src + 1, m1))
            else:
                a('v_pk_fma_f32 v[%d:%d], v[%d:%d], %s, v[%d:%d] op_sel_hi:[1,0,1]' % (
                    dst, dst + 1, src, src + 1, m1, dst, dst + 1))
        else:
            m1 = 'v[%d:%d]' % (e - 1, e)
            if first:
                a('v_pk_mul_f32 v[%d:%d], v[%d:%d], %s op_sel:[0,1] op_sel_hi:[1,1]' % (
                    dst, dst + 1, src, src + 1, m1))
            else:
                a('v_pk_fma_f32 v[%d:%d], v[%d:%d], %s, v[%d:%d] op_sel:[0,1,0] op_sel_hi:[1,1,1]' % (
                    dst, dst + 1, src, src + 1, m1, dst, dst + 1))

    def unpack8(self, dst, src):
        a = self.a
        for k in range(4):
            a('v_lshlrev_b32 v%d, 16, v%d' % (dst + 2 * k, src + k))
            a('v_and_b32 v%d, 0xffff0000, v%d' % (dst + 2 * k + 1, src + k))

    def any_sentinel(self, regs, vt):
        a = self.a
        regs = list(regs)
        a('v_max_u32 v%d, v%d, v%d' % (vt, regs[0], regs[1]))
        i = 2
        while i + 1 < len(regs):
            a('v_max3_u32 v%d, v%d, v%d, v%d' % (vt, vt, regs[i], regs[i + 1]))
            i += 2
        if i < len(regs):
            a('v_max_u32 v%d, v%d, v%d' % (vt, vt, regs[i]))
        a('v_cmp_eq_u32 vcc, -1, v%d' % vt)

    def perm_block(self, dst, src):
        a = self.a
        for k in range(4):
            for e in range(2):
                for p in range(4):
                    a('v_perm_b32 v%d, v%d, v%d, s%d' % (dst + 4 * (2 * k + e) + p, src + 4 * (2 * p + 1) + k,
                                                        src + 4 * (2 * p) + k, S_HI if e else S_LO))

    def row_sum(self, regs, tmp):
        a = self.a
        for sw in ('v_permlane32_swap_b32', 'v_permlane16_swap_b32'):
            for i, r in enumerate(regs):
                a('v_mov_b32 v%d, v%d' % (tmp + i, r))
            for i, r in enumerate(regs):
                a('%s v%d, v%d' % (sw, r, tmp + i))
            for i, r in enumerate(regs):
                a('v_add_f32 v%d, v%d, v%d' % (r, r, tmp + i))

    def entry(self):
        a = self.a
        a('s_load_dwordx16 s[8:23], s[0:1], 0')
        a('s_load_dwordx8 s[24:31], s[0:1], 64')
        a('s_load_dwordx4 s[32:35], s[0:1], 96')
        if self.o.hs:
            a('s_memrealtime s[100:101]')
        a('v_lshrrev_b32 v1, 6, v0')
        a('s_and_b32 s%d, s2, 7' % S_G)
        a('v_readfirstlane_b32 s%d, v1' % S_WAVE)
        a('s_lshr_b32 s%d, s2, 3' % S_SLOT)
        if self.o.xmap:
            a('s_lshr_b32 s%d, s2, 5' % S_G)
            a('s_and_b32 s%d, s2, 31' % S_SLOT)
        a('v_and_b32 v1, 63, v0')
        a('s_and_b32 s7, s%d, 3' % S_SLOT)
        a('s_lshl2_add_u32 s%d, s%d, s7' % (S_H, S_G))
        a('s_cmp_ge_u32 s%d, 32' % (S_G if self.o.xmap else S_SLOT) if not self.o.xmap else 's_cmp_ge_u32 s2, 256')
        a('s_cbranch_scc1 L_END0')
        LA = a.uniq('EA')
        a('s_cmp_ge_u32 s%d, 16' % S_SLOT)
        a('s_cbranch_scc1 %s' % LA)
        LC = a.uniq('EC')
        a('s_cmp_ge_u32 s%d, 8' % S_SLOT)
        a('s_cbranch_scc1 %s' % LC)
        a('s_cmp_ge_u32 s%d, 8' % S_WAVE)
        a('s_cbranch_scc1 L_W2')
        a('s_cmp_ge_u32 s%d, 4' % S_WAVE)
        a('s_cbranch_scc1 L_W1')
        a('s_branch L_W')
        a.label(LC)
        a('s_cmp_ge_u32 s%d, 8' % S_WAVE)
        a('s_cbranch_scc1 L_CSVC')
        a('s_branch L_C')
        a.label(LA)
        a('s_cmp_eq_u32 s%d, 11' % S_WAVE)
        a('s_cbranch_scc1 L_ASVC')
        self.sec('AA', True)

    def post(self):
        self.a('s_mov_b32 s%d, 0x05040100' % S_LO)
        self.a('s_mov_b32 s%d, 0x07060302' % S_HI)
        mk_srd(self.a, SRD_WS, P_WS, WS_SIZE)
        mk_srd(self.a, SRD_DBG, P_DBG, 256)

    def common(self, zero=False, split=False):
        a = self.a
        if split:
            return
        if zero:
            L0 = a.uniq('Z')
            a('s_cmp_lg_u32 s%d, 11' % S_WAVE)
            a('s_cbranch_scc1 %s' % L0)
            a('v_lshlrev_b32 v2, 2, v1')
            a('v_add_u32 v2, 0x%x, v2' % MISC)
            a('v_mov_b32 v3, 0')
            a('ds_write_b32 v2, v3')
            a.label(L0)
        a('s_waitcnt lgkmcnt(0)')
        self.post()

    def a_att(self):
        a, o = self.a, self.o
        vm = VM(a)
        KR, VRING, SC, QV, ACC, TMP = 32, 128, 8, 2, 152, 160
        VK = 6
        sOffK, sOffV, sBias, sLast, sC = [S_T + i for i in range(5)]
        self.common(split=True)
        BU = o.bu
        NB = NQ // BU
        sPos = S_T + 5
        NV = NQ - o.hj

        def setup():
            a('s_lshr_b32 s7, s%d, 2' % S_SLOT)
            a('s_sub_u32 s7, s7, 4')
            a('s_lshl_b32 s7, s7, 5')
            a('s_add_u32 s7, s7, s%d' % S_H)
            a('s_lshl_b32 s7, s7, 20')
            a('s_add_u32 s7, s7, 0xC0000')
            a('v_lshlrev_b32 v%d, 4, v1' % VK)
            a('v_add_u32 v%d, s7, v%d' % (VK, VK))
            if not o.bal:
                a('s_add_u32 s%d, s%d, 3' % (sLast, S_WAVE))
                a('s_cmp_ge_u32 s%d, %d' % (sLast, NS))
                a('s_cselect_b32 s7, %d, 0' % NS)
                a('s_sub_u32 s%d, s%d, s7' % (sBias, sLast))
                a('s_mov_b32 s%d, s%d' % (sPos, sBias))
                assert o.hj == 0 or (BU == 1 and not o.rot)
                a('s_mul_i32 s7, s2, %d' % o.rot)
                a('s_add_u32 s7, s7, s%d' % sBias)
                a('s_mul_i32 s7, s7, %d' % (1024 * BU))
                a('s_and_b32 s%d, s7, 0x3ffff' % sOffK)
                a('s_mov_b32 s%d, s%d' % (sOffV, sOffK))
                nlast = 256 // BU - NS * (NB - 1)
                a('s_add_u32 s%d, s%d, %d' % (sLast, sOffK, (NB - 1) * NS * 1024 * BU))
                a('s_and_b32 s%d, s%d, 0x3ffff' % (sLast, sLast))
                a('s_cmp_lt_u32 s%d, %d' % (sBias, nlast))
                a('s_cselect_b32 s%d, s%d, 0x40000000' % (sLast, sLast))
                a('s_cselect_b32 s%d, 0, 0xff800000' % sBias)
            a('s_mov_b32 s%d, 0x%x' % (sC, f32bits(SCALE_LOG2E)))

            if o.bal:
                assert BU == 1 and not o.hj and not o.rot
                a('s_lshl_b32 s%d, s%d, 10' % (sOffK, S_WAVE))
                a('s_mov_b32 s%d, s%d' % (sOffV, sOffK))
                a('s_cmp_ge_u32 s%d, 8' % S_WAVE)
                a('s_cselect_b32 s7, 4096, 0')
                a('s_sub_u32 s%d, s%d, s7' % (sLast, sOffK))
                a('s_add_u32 s%d, s%d, %d' % (sLast, sLast, 242 * 1024))
                a('s_add_u32 s%d, s%d, 7168' % (sPos, sLast))
                a('s_and_b32 s7, s%d, 12' % S_WAVE)
                a('s_cmp_eq_u32 s7, 4')
                a('s_cselect_b32 s%d, 0xff800000, 0' % sBias)

        def step(s):
            a('s_add_u32 s%d, s%d, %d' % (s, s, NS * 1024 * BU))
            if o.rot:
                a('s_and_b32 s%d, s%d, 0x3ffff' % (s, s))

        def ldk(jb):
            if o.bal:
                so = (sLast, sPos)[jb] if jb < 2 else sOffK
                vm.issue('buffer_load_dwordx4 %s, v%d, %s, s%d offen nt' % (vr(KR + 4 * jb, 4), VK, srd(SRD_A), so), ('K', jb))
                if 2 <= jb < NB - 1:
                    step(sOffK)
                if jb == 1:
                    a.label('L_AK2')
                return
            so = sLast if jb == NB - 1 else sOffK
            for j in range(jb * BU, jb * BU + BU):
                vm.issue('buffer_load_dwordx4 %s, v%d, %s, s%d offen offset:%d nt' % (
                    vr(KR + 4 * j, 4), VK, srd(SRD_A), so, (j % BU) * 1024), ('K', j))
            if jb < NB - 2:
                step(sOffK)

        RV = 4 if BU == 4 else 6

        def vreg(j):
            return VRING + 4 * j if j < RV else KR + 4 * (j - RV)

        nv = [0]

        def ldv():
            jb = nv[0] // BU
            vm.wait_n((o.kdl if jb >= NB - o.knl else o.kd) - BU)
            if o.bal:
                so = (sLast, sPos)[jb - (NB - 2)] if jb >= NB - 2 else sOffV
                vm.issue('buffer_load_dwordx4 %s, v%d, %s, s%d offen nt' % (vr(vreg(jb), 4), VK, srd(SRD_B), so), ('V', jb))
                if jb < NB - 3:
                    step(sOffV)
                nv[0] += 1
                return
            so = sLast if jb == NB - 1 else sOffV
            for j in range(jb * BU, jb * BU + BU):
                vm.issue('buffer_load_dwordx4 %s, v%d, %s, s%d offen offset:%d nt' % (
                    vr(vreg(j), 4), VK, srd(SRD_B), so, (j % BU) * 1024), ('V', j))
            if jb < NB - 2:
                step(sOffV)
            nv[0] += BU

        LK, LJ = a.uniq('AK'), a.uniq('AJ')
        RAW, XR, OP, D = 128, 160, 96, 64
        sOff = S_T + 6
        def rest():
            self.post()
            mk_srd(a, SRD_A, P_K, 134217728)
            mk_srd(a, SRD_B, P_V, 134217728)
            setup()
        a('s_cmp_ge_u32 s%d, 8' % S_WAVE)
        a('s_cbranch_scc1 %s' % LK)
        a('s_and_b32 s7, s%d, 12' % S_SLOT)
        a('s_and_b32 s%d, s%d, 3' % (sOff, S_WAVE))
        a('s_add_u32 s7, s7, s%d' % sOff)
        a('v_lshrrev_b32 v2, 4, v1')
        a('v_lshlrev_b32 v3, 16, v2')
        a('v_and_b32 v4, 15, v1')
        a('v_lshl_add_u32 v3, v4, 4, v3')
        a('s_lshl_b32 s%d, s7, 18' % sOff)
        a('s_lshl_b32 s%d, s%d, 8' % (sOff + 1, S_H))
        a('s_add_u32 s%d, s%d, s%d' % (sOff, sOff, sOff + 1))
        LP = a.uniq('AP')
        a('s_cmp_lt_u32 s%d, 4' % S_WAVE)
        a('s_cbranch_scc1 %s' % LP)
        a('s_barrier')
        a('s_sleep %d' % o.psl)
        a.label(LP)
        a('s_cmp_lt_u32 s%d, 4' % S_WAVE)
        a('s_waitcnt lgkmcnt(0)')
        a('s_cselect_b32 s%d, s%d, s%d' % (S_T + 12, P_BWQ, P_WQ))
        a('s_cselect_b32 s%d, s%d, s%d' % (S_T + 13, P_BWQ + 1, P_WQ + 1))
        a('s_cselect_b32 s%d, s%d, s%d' % (S_T + 10, P_BX, P_AX))
        a('s_cselect_b32 s%d, s%d, s%d' % (S_T + 11, P_BX + 1, P_AX + 1))
        mk_srd(a, SRD_D, S_T + 12, 4194304)
        for i in range(8):
            vm.issue('buffer_load_dwordx4 %s, v3, %s, s%d offen nt' % (vr(RAW + 4 * i, 4), srd(SRD_D), sOff), 'p')
            a('s_addk_i32 s%d, 8192' % sOff)
        self.sec('AB', True)
        a('v_bfe_u32 v4, v1, 2, 2')
        a('v_lshlrev_b32 v4, 10, v4')
        a('v_lshl_add_u32 v4, v2, 4, v4')
        a('s_lshl_b32 s%d, s7, 6' % (sOff + 1))
        mk_srd(a, SRD_C, S_T + 10, 4096)
        vm.issue('buffer_load_dwordx4 %s, v4, %s, s%d offen' % (vr(XR, 4), srd(SRD_C), sOff + 1), 'p')
        rest()
        LP = a.uniq('AP')
        a('s_cmp_ge_u32 s%d, 4' % S_WAVE)
        a('s_cbranch_scc1 %s' % LP)
        a('s_barrier')
        a.label(LP)
        a('s_lshl_b32 s7, s%d, 11' % S_WAVE)
        a('s_add_u32 s7, s7, 0x%x' % PPART)
        a('v_lshl_add_u32 v2, v1, 5, s7')
        a('s_cmp_lt_u32 s%d, 4' % S_WAVE)
        a('s_cselect_b32 s7, 0x%x, 0x%x' % (C_PB - MISC, C_PA - MISC))
        a('s_add_u32 s7, s7, 0x%x' % MISC)
        a('v_mov_b32 v3, s7')
        a('v_mov_b32 v4, 1')
        vm.wait_all()
        self.perm_block(OP, RAW)
        for c in range(8):
            a('v_mfma_f32_16x16x32_bf16 %s, %s, %s, 0' % (vr(D + 4 * c, 4), vr(XR, 4), vr(OP + 4 * c, 4)))
        for c in range(8):
            a('v_mov_b32 v%d, v%d' % (RAW + c, D + 4 * c))
        a('ds_write_b128 v2, %s' % vr(RAW, 4))
        a('ds_write_b128 v2, %s offset:16' % vr(RAW + 4, 4))
        a('s_waitcnt lgkmcnt(0)')
        a('s_mov_b64 exec, 1')
        a('ds_add_u32 v3, v4')
        a('s_mov_b64 exec, -1')
        a('s_branch %s' % LJ)
        a.label(LK)
        a('s_waitcnt lgkmcnt(0)')
        rest()
        a('s_barrier')
        self.touch(8, 'AR')
        self.touch(9, 'AR2')
        a('s_sleep %d' % o.psl8)
        a.label(LJ)
        self.sec('AR', True)
        self.stamp(vm, 0, TMP)
        if o.kh:
            self.lds_wait(C_OK, o.kh, TMP, TMP + 1, sleep=1)
        nk = [0]

        def nxt():
            if nk[0] < NB:
                vm.wait_n((o.kd1 if nk[0] < o.kn1 else o.kd) - BU)
                ldk(nk[0])
                nk[0] += 1
            else:
                ldv()

        def qk(js):
            vm.wait(('K', js[-1]))
            for k in range(4):
                for j in js:
                    a('v_dot2_f32_bf16 v%d, v%d, v%d, %s' % (SC + j, KR + 4 * j + k, QV + k,
                                                            '0' if k == 0 else 'v%d' % (SC + j)))
            for sh in (8, 4, 2, 1):
                for j in js:
                    a('v_add_f32_dpp v%d, v%d, v%d row_ror:%d row_mask:0xf bank_mask:0xf' % (
                        SC + j, SC + j, SC + j, sh))

        if o.bal:
            for k in range(8):
                a('v_mov_b32 v%d, 0' % (KR + k))
            a('s_cmp_lg_u32 s%d, 0' % sBias)
            a('s_cbranch_scc1 L_AK2')
        while nk[0] * BU < o.q0:
            nxt()
        self.stamp(vm, 1, TMP)
        self.lds_wait(C_Q, 1, TMP, TMP + 1)
        a('v_and_b32 v%d, 15, v1' % TMP)
        a('v_lshlrev_b32 v%d, 4, v%d' % (TMP, TMP))
        a('v_add_u32 v%d, 0x%x, v%d' % (TMP, QBUF, TMP))
        a('ds_read_b128 %s, v%d' % (vr(QV, 4), TMP))
        a('s_waitcnt lgkmcnt(0)')
        self.stamp(vm, 2, TMP)
        done = 0
        while done < NQ:
            landed = (nk[0] * BU + nv[0]) - o.kd
            if done + 4 <= landed or nv[0] >= RV + done:
                qk(list(range(done, done + 4)))
                done += 4
                for _ in range(max(1, o.qr // BU) if BU < 4 else (done // 4) & 1):
                    if nv[0] + BU <= RV + done and nv[0] < NV:
                        nxt()
            else:
                nxt()
        for j in ((0, 1) if o.bal else range(NQ - BU, NQ)):
            a('v_add_f32 v%d, s%d, v%d' % (SC + j, sBias, SC + j))
        M, M2 = TMP, TMP + 1
        a('v_max3_f32 v%d, v%d, v%d, v%d' % (M, SC, SC + 1, SC + 2))
        j = 3
        while j + 1 < NQ:
            a('v_max3_f32 v%d, v%d, v%d, v%d' % (M, M, SC + j, SC + j + 1))
            j += 2
        if j < NQ:
            a('v_max_f32 v%d, v%d, v%d' % (M, M, SC + j))
        for sw in ('v_permlane32_swap_b32', 'v_permlane16_swap_b32'):
            a('v_mov_b32 v%d, v%d' % (M2, M))
            a('%s v%d, v%d' % (sw, M, M2))
            a('v_max_f32 v%d, v%d, v%d' % (M, M, M2))
        a('v_mul_f32 v%d, s%d, v%d' % (M, sC, M))
        for j in range(NQ):
            a('v_fma_f32 v%d, v%d, s%d, -v%d' % (SC + j, SC + j, sC, M))
        for j in range(NQ):
            a('v_exp_f32 v%d, v%d' % (SC + j, SC + j))
        if BU < 4:
            ldv()
        L, L2 = TMP + 2, TMP + 3
        a('v_add_f32 v%d, v%d, v%d' % (L, SC, SC + 1))
        a('v_add_f32 v%d, v%d, v%d' % (L2, SC + 2, SC + 3))
        for j in range(4, NQ, 2):
            a('v_add_f32 v%d, v%d, v%d' % (L, L, SC + j))
            a('v_add_f32 v%d, v%d, v%d' % (L2, L2, SC + j + 1))
        a('v_add_f32 v%d, v%d, v%d' % (L, L, L2))
        a('v_mov_b32 v%d, v%d' % (L2, L))
        a('v_permlane32_swap_b32 v%d, v%d' % (L, L2))
        a('v_add_f32 v%d, v%d, v%d' % (L, L, L2))
        a('v_mov_b32 v%d, v%d' % (L2, L))
        a('v_permlane16_swap_b32 v%d, v%d' % (L, L2))
        a('v_add_f32 v%d, v%d, v%d' % (M + 1, L, L2))
        a('s_lshl_b32 s7, s%d, 3' % S_WAVE)
        a('s_add_u32 s7, s7, 0x%x' % MLBUF)
        a('v_mov_b32 v%d, s7' % (TMP + 4))
        a('ds_write_b64 v%d, v[%d:%d]' % (TMP + 4, M, M + 1))
        if o.hj:
            a('s_lshl_b32 s7, s%d, 4' % sPos)
            a('s_add_u32 s7, s7, 0x%x' % PT)
            a('v_lshrrev_b32 v%d, 4, v1' % (TMP + 5))
            a('v_lshl_add_u32 v%d, v%d, 2, s7' % (TMP + 5, TMP + 5))
            for jj in range(o.hj):
                a('ds_write_b32 v%d, v%d offset:%d' % (TMP + 5, SC + NV + jj, NS * 16 * jj))
        self.lds_signal(C_ML, TMP + 4, TMP + 5)
        VO = QV
        a('v_and_b32 v%d, 15, v1' % VO)
        a('v_lshlrev_b32 v%d, 5, v%d' % (VO, VO))
        a('v_bfe_u32 v%d, v1, 5, 1' % (VO + 1))
        a('v_lshl_add_u32 v%d, v%d, 4, v%d' % (VO, VO + 1, VO))
        a('v_bfe_u32 v%d, v1, 4, 1' % (VO + 1))
        a('v_lshl_add_u32 v%d, v%d, 3, v%d' % (VO, VO + 1, VO))
        a('s_lshl_b32 s7, s%d, 9' % S_WAVE)
        a('s_add_u32 s7, s7, 0x%x' % OPART)
        a('v_add_u32 v%d, s7, v%d' % (VO, VO))
        self.stamp(vm, 3, TMP)
        def pv(j):
            vm.wait(('V', j))
            self.unpack8(TMP, vreg(j))
            for k in range(4):
                self.pkfma_bcast(ACC + 2 * k, TMP + 2 * k, SC + ((j + 2) % NQ if o.bal else j), first=(j == 0))
        j = 0
        while j < NV:
            if o.bal and nv[0] == NV - 2:
                LL = a.uniq('AL')
                a('s_cmp_eq_u32 s%d, 0' % sBias)
                a('s_cbranch_scc1 %s' % LL)
                keep = list(vm.q)
                for jj in range(j, NV - 2):
                    pv(jj)
                a('s_branch L_AFIN')
                vm.q = keep
                a.label(LL)
            if nv[0] < NV:
                ldv()
                n = min(2 * BU, nv[0] - len([t for t in vm.q if t != 'ts']) - j)
            else:
                n = NV - j
            for _ in range(max(n, 0)):
                pv(j)
                j += 1
        a.label('L_AFIN')
        a('s_nop 1')
        self.stamp(vm, 4, TMP)
        for k in range(4):
            a('v_permlane32_swap_b32 v%d, v%d' % (ACC + k, ACC + k + 4))
        for k in range(4):
            a('v_add_f32 v%d, v%d, v%d' % (ACC + k, ACC + k, ACC + k + 4))
        for k in range(2):
            a('v_permlane16_swap_b32 v%d, v%d' % (ACC + k, ACC + k + 2))
        for k in range(2):
            a('v_add_f32 v%d, v%d, v%d' % (ACC + k, ACC + k, ACC + k + 2))
        a('ds_write_b64 v%d, v[%d:%d]' % (VO, ACC, ACC + 1))
        a('s_waitcnt lgkmcnt(0)')
        if o.hs:
            a('s_memrealtime s[98:99]')
        a('s_barrier')
        self.stamp(vm, 5, TMP)
        self.end(have=True)

    def a_svc(self):
        a, o = self.a, self.o
        vm = VM(a)
        self.sec('ASVC')
        a.label('L_ASVC')
        self.common(True)
        T = 100
        sB = S_T
        a('s_setprio 3')
        a('s_lshr_b32 s%d, s%d, 2' % (sB, S_SLOT))
        a('s_sub_u32 s%d, s%d, 4' % (sB, sB))
        a('s_barrier')
        if o.cut & 4:
            a('s_branch L_ACUT')
        a('s_lshl_b32 s7, s%d, 2' % S_H)
        a('s_add_u32 s7, s7, s%d' % sB)
        a('s_lshl_b32 s7, s7, 11')
        a('v_lshl_add_u32 v3, v1, 4, s7')
        a('v_add_u32 v5, 0x%x, v3' % WS_QBP)
        a('v_add_u32 v3, 0x%x, v3' % WS_QAP)
        a('s_lshl_b32 s7, s%d, 5' % S_H)
        a('s_add_u32 s7, s7, s%d' % sB)
        a('s_lshl_b32 s7, s7, 8')
        a('s_add_u32 s7, s7, 0x%x' % WS_QAP)
        a('v_lshrrev_b32 v6, 4, v1')
        a('v_lshlrev_b32 v6, 11, v6')
        a('v_and_b32 v%d, 15, v1' % T)
        a('v_lshl_add_u32 v6, v%d, 4, v6' % T)
        a('v_add_u32 v6, s7, v6')
        if o.pw:
            for k in range(4):
                a('v_mov_b32 v%d, 0' % (112 + k))
            for V in (5, 6):
                for e in range(2):
                    a('buffer_store_dwordx4 v[112:115], v%d, %s, 0 offen offset:%d' % (V, srd(SRD_WS), 1024 * e))
        if o.nsl:
            a('s_sleep %d' % o.nsl)
        self.nonce_get(vm, 90, dbl=o.ndb)
        self.stamp(vm, 4, T)
        if o.cut & 64:
            a('s_branch L_ACUT')
        a('v_lshlrev_b32 v7, 5, v1')
        for r in (112, 116, 120, 124):
            self.set_tag(r)
        for cnt, base, V in ((C_PB, PPART, 5), (C_PA, PPART + 8192, 6)):
            self.lds_wait(cnt, 4, T, T + 1, sleep=0)
            for w in range(4):
                a('ds_read_b128 %s, v7 offset:%d' % (vr(16 + 8 * w, 4), base + 2048 * w))
                a('ds_read_b128 %s, v7 offset:%d' % (vr(20 + 8 * w, 4), base + 2048 * w + 16))
            a('s_waitcnt lgkmcnt(0)')
            for st in (16, 8):
                for k in range(0, st, 2):
                    self.add2(16 + k, 16 + k, 16 + k + st)
            r = 112 if V == 5 else 120
            for k in range(4):
                a('v_cvt_pk_bf16_f32 v%d, v%d, v%d' % (r + 4 * (k >> 1) + (k & 1), 16 + 2 * k, 17 + 2 * k))
            for e in range(0 if (o.cut & 128 and V == 5) or (o.cut & 256 and V == 6) else 2):
                a('buffer_store_dwordx4 %s, v%d, %s, 0 offen offset:%d%s' % (
                    vr(r + 4 * e, 4), V, srd(SRD_WS), 1024 * e, '' if o.l2 else ' sc1'))
            self.lds_signal(C_OK, T, T + 1)
            self.stamp(vm, V, T)
        a('v_mov_b32 v110, v5')
        a('v_mov_b32 v111, v6')
        if o.l2:
            self.check_in(T)

        def through():
            for r, V in ((112, 110), (120, 111)):
                for e in range(2):
                    a('buffer_store_dwordx4 %s, v%d, %s, 0 offen offset:%d sc1' % (vr(r + 4 * e, 4), V, srd(SRD_WS), 1024 * e))
        if o.cut & 32:
            a('s_branch L_ACUT')
        a('s_sleep %d' % o.asl)
        self.poll_sel(vm, ['buffer_load_dwordx4 %s, v3, %s, 0 offen offset:%d sc1' % (vr(32 + 4 * e, 4), srd(SRD_WS), 1024 * e)
                           for e in range(2)], [32, 36], T, sleep=8, late=through if o.l2 else None)
        self.unpack4(16, 32)
        self.unpack4(20, 36)
        self.row_sum(list(range(16, 24)), 24)
        for k in range(4):
            a('v_cvt_pk_bf16_f32 v%d, v%d, v%d' % (8 + k, 16 + 2 * k, 17 + 2 * k))
        a('v_and_b32 v%d, 15, v1' % T)
        a('v_lshlrev_b32 v%d, 4, v%d' % (T, T))
        a('v_add_u32 v%d, 0x%x, v%d' % (T, QBUF, T))
        a('ds_write_b128 v%d, v[8:11]' % T)
        a.label('L_ACUT')
        if o.cut:
            self.lds_signal(C_OK, T, T + 1)
            self.lds_signal(C_OK, T, T + 1)
        self.lds_signal(C_Q, T, T + 1)
        self.stamp(vm, 1, T)
        self.lds_wait(C_ML, NS, T, T + 1, sleep=8)
        if o.l2:
            a('v_and_b32 v%d, 31, v1' % T)
            a('s_lshl_b32 s7, s%d, 9' % S_G)
            a('s_add_u32 s7, s7, 0x%x' % WS_CHK)
            a('v_lshl_add_u32 v%d, v%d, 4, s7' % (T, T))
            a('buffer_load_dwordx4 v[32:35], v%d, %s, 0 offen sc1' % (T, srd(SRD_WS)))
            a('s_waitcnt vmcnt(0)')
            self.bad(32, T)
            a('v_cmp_ne_u32 s[%d:%d], s%d, v32' % (S_MK, S_MK + 1, S_XCC))
            a('s_or_b32 s%d, vcc_lo, s%d' % (S_FAR, S_MK))
            a('s_and_b32 s%d, s%d, 0xffff00ff' % (S_FAR, S_FAR))
            LN = a.uniq('AF')
            a('s_cbranch_scc0 %s' % LN)
            through()
            a.label(LN)
        ML = 8
        a('v_mov_b32 v%d, 0x%x' % (T, MLBUF))
        for k in range(6):
            a('ds_read_b128 %s, v%d offset:%d' % (vr(ML + 4 * k, 4), T, 16 * k))
        a('s_waitcnt lgkmcnt(0)')
        Mx, Ls = T, T + 1
        a('v_max3_f32 v%d, v%d, v%d, v%d' % (Mx, ML, ML + 2, ML + 4))
        for k in range(3, NS, 2):
            a('v_max3_f32 v%d, v%d, v%d, v%d' % (Mx, Mx, ML + 2 * k, ML + 2 * k + 2))
        for k in range(NS):
            a('v_sub_f32 v%d, v%d, v%d' % (ML + 2 * k, ML + 2 * k, Mx))
        for k in range(NS):
            a('v_exp_f32 v%d, v%d' % (ML + 2 * k, ML + 2 * k))
        a('v_mul_f32 v%d, v%d, v%d' % (Ls, ML, ML + 1))
        for k in range(1, NS):
            a('v_fmac_f32 v%d, v%d, v%d' % (Ls, ML + 2 * k, ML + 2 * k + 1))
        a('v_rcp_f32 v%d, v%d' % (Ls, Ls))
        for k in range(NS):
            a('v_mul_f32 v%d, v%d, v%d' % (ML + 2 * k, ML + 2 * k, Ls))
        if o.hj:
            a('v_lshlrev_b32 v2, 4, v1')
            a('v_add_u32 v3, 0x%x, v2' % PT)
            a('ds_read_b128 v[32:35], v3')
            a('v_mul_u32_u24 v4, 47, v1')
            a('v_lshrrev_b32 v4, 9, v4')
            a('v_mul_u32_u24 v4, %d, v4' % NS)
            a('v_sub_u32 v4, v1, v4')
            a('v_mov_b32 v5, v%d' % ML)
            for k in range(1, NS):
                a('v_cmp_eq_u32 vcc, %d, v4' % ((k + 3) % NS))
                a('v_cndmask_b32 v5, v5, v%d, vcc' % (ML + 2 * k))
            a('s_lshl_b32 s7, s%d, 2' % S_H)
            a('s_add_u32 s7, s7, s%d' % sB)
            a('s_lshl_b32 s7, s7, 10')
            a('s_add_u32 s7, s7, 0x%x' % WS_PH)
            self.set_tag(36)
            a('s_waitcnt lgkmcnt(0)')
            for k in range(4):
                a('v_mul_f32 v%d, v%d, v5' % (32 + k, 32 + k))
            a('v_cvt_pk_bf16_f32 v36, v32, v33')
            a('v_cvt_pk_bf16_f32 v37, v34, v35')
            if o.l2:
                LN = a.uniq('AF')
                a('buffer_store_dwordx4 v[36:39], v2, %s, s7 offen' % srd(SRD_WS))
                a('s_cmp_eq_u32 s%d, 0' % S_FAR)
                a('s_cbranch_scc1 %s' % LN)
            a('buffer_store_dwordx4 v[36:39], v2, %s, s7 offen sc1' % srd(SRD_WS))
            if o.l2:
                a.label(LN)
        a('v_and_b32 v%d, 15, v1' % T)
        a('v_bfe_u32 v%d, v1, 4, 1' % (T + 1))
        a('v_lshlrev_b32 v3, 5, v%d' % T)
        a('v_lshl_add_u32 v3, v%d, 4, v3' % (T + 1))
        a('v_add_u32 v3, 0x%x, v3' % OPART)
        a('s_lshl_b32 s7, s%d, 3' % S_H)
        a('s_add_u32 s7, s7, s%d' % sB)
        a('s_lshl_b32 s7, s7, 8')
        a('s_add_u32 s7, s7, 0x%x' % WS_OA)
        a('v_lshlrev_b32 v2, 4, v%d' % T)
        a('v_lshl_add_u32 v2, v%d, 10, v2' % (T + 1))
        a('v_add_u32 v2, s7, v2')
        if o.pw:
            for k in range(4):
                a('v_mov_b32 v%d, 0' % (4 + k))
            a('s_mov_b64 exec, 0xffffffff')
            a('buffer_store_dwordx4 v[4:7], v2, %s, 0 offen' % srd(SRD_WS))
            a('s_mov_b64 exec, -1')
        self.set_tag(4)
        self.stamp(vm, 2, T)
        a('s_barrier')
        X, AC = 40, 32
        for k in range(NS):
            a('ds_read_b128 %s, v3 offset:%d' % (vr(X + 4 * k, 4), 512 * k))
        for k in range(NS):
            a('s_waitcnt lgkmcnt(%d)' % (NS - 1 - k))
            for p in range(2):
                self.pkfma_bcast(AC + 4 * (k & 1) + 2 * p, X + 4 * k + 2 * p, ML + 2 * k, first=(k < 2))
        for p in range(2):
            a('v_pk_add_f32 v[%d:%d], v[%d:%d], v[%d:%d]' % (AC + 2 * p, AC + 2 * p + 1, AC + 2 * p, AC + 2 * p + 1,
                                                          AC + 4 + 2 * p, AC + 5 + 2 * p))
        a('v_cvt_pk_bf16_f32 v4, v%d, v%d' % (AC, AC + 1))
        a('v_cvt_pk_bf16_f32 v5, v%d, v%d' % (AC + 2, AC + 3))
        a('s_mov_b64 exec, 0xffffffff')
        if o.l2:
            LN = a.uniq('AF')
            a('buffer_store_dwordx4 v[4:7], v2, %s, 0 offen' % srd(SRD_WS))
            a('s_cmp_eq_u32 s%d, 0' % S_FAR)
            a('s_cbranch_scc1 %s' % LN)
        a('buffer_store_dwordx4 v[4:7], v2, %s, 0 offen sc1' % srd(SRD_WS))
        if o.l2:
            a.label(LN)
        a('s_mov_b64 exec, -1')
        self.stamp(vm, 3, T)
        self.end()

    def w_role(self):
        a, o = self.a, self.o
        self.sec('W0')
        a.label('L_W')
        self.common()
        if o.cpf:
            a('s_getpc_b64 s[98:99]')
            a.label('L_PC')
            a('s_sub_u32 s98, s98, L_PC-%s_kernel' % NAME)
            a('s_subb_u32 s99, s99, 0')
            a('s_lshl_b32 s7, s%d, 2' % S_SLOT)
            a('s_add_u32 s7, s7, s%d' % S_WAVE)
            a('s_lshl_b32 s7, s7, 11')
            a('v_lshl_add_u32 v4, v1, 4, s7')
            a('s_mov_b32 s7, L_CODE_END-%s_kernel-16' % NAME)
            for k in range(2):
                a('v_add_u32 v5, %d, v4' % (k * 1024))
                a('v_min_u32 v5, s7, v5')
                a('v_mov_b32 v7, s99')
                a('v_add_co_u32 v6, vcc, s98, v5')
                a('v_addc_co_u32 v7, vcc, 0, v7, vcc')
                a('global_load_dwordx4 v[8:11], v[6:7], off')
        T = 160
        a('s_barrier')
        self.touch(0, 'U1')
        self.touch(1, 'W2R')
        a('s_cmp_ge_u32 s%d, 4' % S_SLOT)
        a('s_cbranch_scc1 %s' % ('L_PF' if o.pf else 'L_END'))
        self.lds_wait(C_QA if o.hold else C_UK, 4, T, T + 1, sleep=4)
        a('s_branch L_U1')
        if o.pf:
            a.label('L_PF')
            mk_srd(a, SRD_A, P_CKV, 16777216)
            a('s_lshl_b32 s7, s%d, 2' % S_G)
            a('s_add_u32 s7, s7, s%d' % S_SLOT)
            a('s_sub_u32 s7, s7, 4')
            a('s_lshl_b32 s7, s7, 19')
            a('s_lshl_b32 s%d, s%d, 10' % (S_T, S_WAVE))
            a('s_add_u32 s%d, s%d, s7' % (S_T, S_T))
            a('s_add_u32 s%d, s%d, %d' % (S_T, S_T, (256 - o.pf) * 1024))
            a('s_add_u32 s%d, s%d, 0x40000' % (S_T + 1, S_T))
            a('v_lshlrev_b32 v2, 4, v1')
            self.lds_wait(C_UK if o.pfe else C_QA, 4, T, T + 1, sleep=4)
            a('s_mov_b32 s%d, %d' % (S_T + 2, o.pf // 4))
            Lp = a.uniq('PF')
            a.label(Lp)
            for k in range(2):
                a('s_waitcnt vmcnt(%d)' % (o.pfd - 1))
                a('buffer_load_dwordx4 v[4:7], v2, %s, s%d offen' % (srd(SRD_A), S_T + k))
                a('s_add_u32 s%d, s%d, 4096' % (S_T + k, S_T + k))
            a('s_sub_u32 s%d, s%d, 1' % (S_T + 2, S_T + 2))
            a('s_cmp_lg_u32 s%d, 0' % (S_T + 2))
            a('s_cbranch_scc1 %s' % Lp)
            self.lds_signal(C_PF, T, T + 1)
            if o.hj:
                self.v_help()
            else:
                a('s_waitcnt vmcnt(0)')
                a('s_branch L_END')

        a.label('L_W1')
        self.common()
        vm = VM(a)
        sHH, sW = S_T + 1, S_T + 2
        VA, VG = 2, 3
        FR, GQ, U, QB, D = 8, 72, 104, 136, 104
        a('s_setprio 3')
        a('s_barrier')
        if o.cut & 8:
            self.lds_wait(C_UK, 4, T, T + 1, sleep=4)
            a('s_sleep %d' % o.cutsl)
            self.lds_signal(C_QA, T, T + 1)
            a('s_cmp_ge_u32 s%d, 4' % S_SLOT)
            a('s_cbranch_scc1 L_END')
            a('s_branch L_U1')
        LN = a.uniq('W4')
        a('s_cmp_lg_u32 s%d, 4' % S_WAVE)
        a('s_cbranch_scc1 %s' % LN)
        a('s_sleep %d' % o.nsl)
        self.nonce_get(vm, 152, dbl=o.ndb)
        self.nonce_share(T)
        if o.l2:
            self.check_in(T)
        self.stamp(vm, 8, T)
        a.label(LN)
        a('s_sub_u32 s%d, s%d, 4' % (sW, S_WAVE))
        a('s_lshl_b32 s%d, s%d, 2' % (sHH, S_G))
        a('s_add_u32 s%d, s%d, s%d' % (sHH, sHH, sW))
        a('v_lshrrev_b32 v%d, 4, v1' % (T + 2))
        a('v_and_b32 v%d, 15, v1' % (T + 1))
        a('v_lshlrev_b32 v%d, 16, v%d' % (VA, T + 2))
        a('v_lshl_add_u32 v%d, v%d, 4, v%d' % (VA, T + 1, VA))
        a('s_lshl_b32 s7, s%d, 3' % sHH)
        a('s_add_u32 s7, s7, s%d' % S_SLOT)
        a('s_lshl_b32 s7, s7, 8')
        a('s_add_u32 s7, s7, 0x%x' % WS_QABS)
        a('v_add_u32 v%d, s7, v%d' % (VA, VA))
        a('v_lshlrev_b32 v%d, 6, v%d' % (VG, T + 1))
        a('v_lshl_add_u32 v%d, v%d, 4, v%d' % (VG, T + 2, VG))
        a('s_lshl_b32 s7, s%d, 13' % sHH)
        a('s_add_u32 s7, s7, 0x%x' % WS_QBP)
        a('v_add_u32 v%d, s7, v%d' % (VG, VG))
        a('v_xor_b32 v5, v%d, v%d' % (T + 2, T + 1))
        a('v_lshlrev_b32 v5, 4, v5')
        a('v_lshl_add_u32 v4, v%d, 12, v5' % (T + 1))
        a('s_lshl_b32 s7, s%d, 8' % sW)
        a('v_add_u32 v4, s7, v4')
        self.nonce_lds(T)
        a('s_sleep %d' % o.wsl)
        self.stamp(vm, 0, T)
        a('s_mov_b32 s%d, 4096' % (S_T + 3))
        loads = ['buffer_load_dwordx4 %s, v%d, %s, %s offen offset:%d sc1' % (
            vr(GQ + 4 * r, 4), VG, srd(SRD_WS), '0' if r < 4 else 's%d' % (S_T + 3), (r & 3) * 1024) for r in range(8)]

        def frags():
            self.lds_wait(C_UK, 4, T, T + 1, sleep=1)
            for ks in range(4):
                a('v_xor_b32 v%d, 0x%x, v4' % (T + ks, ks << 6))
            for t in range(4):
                for ks in range(4):
                    a('ds_read_b128 %s, v%d offset:%d' % (vr(FR + 16 * t + 4 * ks, 4), T + ks, t * 1024))
            if o.dev:
                self.stamp(vm, 9, T + 4)
                a('s_waitcnt vmcnt(1)')
                self.stamp(vm, 10, T + 4)
        self.poll_sel(vm, loads, [GQ + 4 * r for r in range(8)], T + 4, first=frags)
        self.stamp(vm, 1, T)
        for r in range(4):
            u = U + 8 + 8 * (r & 1) if r else U
            self.unpack4(u, GQ + 8 * r)
            self.unpack4(u + 4, GQ + 8 * r + 4)
            if r:
                for k in range(4):
                    self.add2(U + 2 * k, U + 2 * k, u + 2 * k)
        for k in range(4):
            a('v_cvt_pk_bf16_f32 v%d, v%d, v%d' % (QB + k, U + 2 * k, U + 2 * k + 1))
        for r in range(1, 4):
            for k in range(4):
                a('v_mov_b32_dpp v%d, v%d quad_perm:[%d,%d,%d,%d] row_mask:0xf bank_mask:0xf' % (
                    QB + 4 * r + k, QB + k, r & 3, (r + 1) & 3, (r + 2) & 3, (r + 3) & 3))
        self.set_tag(GQ)
        a('s_waitcnt lgkmcnt(0)')
        for r in range(4):
            for t in range(4):
                a('v_mfma_f32_16x16x32_bf16 %s, %s, %s, %s' % (
                    vr(D + 4 * t, 4), vr(QB + 4 * r, 4), vr(FR + 16 * t + 4 * ((t + r) & 3), 4),
                    '0' if r == 0 else vr(D + 4 * t, 4)))
        a('v_cvt_pk_bf16_f32 v%d, v%d, v%d' % (GQ, D, D + 5))
        a('v_cvt_pk_bf16_f32 v%d, v%d, v%d' % (GQ + 1, D + 10, D + 15))
        vm.issue('buffer_store_dwordx4 %s, v%d, %s, 0 offen sc1' % (vr(GQ, 4), VA, srd(SRD_WS)), 'qa')
        self.lds_signal(C_QA, T, T + 1)
        self.stamp(vm, 2, T)
        a('s_setprio 0')
        a('s_cmp_ge_u32 s%d, 4' % S_SLOT)
        a('s_cbranch_scc1 %s' % ('L_VH' if o.hj else 'L_END'))
        self.u_stage1()
        self.w_stage2()

    def v_help(self):
        a, o = self.a, self.o
        vm = VM(a)
        vm.q = ['old'] * 8
        a.label('L_VH')
        q0 = NS * (NQ - o.hj)
        n = (256 - q0 + 1) // 2
        VR, P, ACC, G, T = 40, 8, 152, 148, 160
        assert VR + 4 * n <= 148 and P + n <= VR
        sOff = S_T
        mk_srd(a, SRD_B, P_V, 134217728)
        a('s_lshr_b32 s7, s%d, 1' % S_WAVE)
        a('s_lshl_b32 s%d, s7, 5' % sOff)
        a('s_add_u32 s%d, s%d, s%d' % (sOff, sOff, S_H))
        a('s_lshl_b32 s%d, s%d, 20' % (sOff, sOff))
        a('s_and_b32 s%d, s%d, 1' % (sOff + 1, S_WAVE))
        a('s_lshl_b32 s%d, s%d, 10' % (sOff + 2, sOff + 1))
        a('s_add_u32 s%d, s%d, s%d' % (sOff, sOff, sOff + 2))
        a('s_add_u32 s%d, s%d, 0x%x' % (sOff, sOff, 0xC0000 + q0 * 1024))
        a('v_lshlrev_b32 v2, 4, v1')
        a('s_lshl_b32 s%d, s%d, 2' % (sOff + 2, S_H))
        a('s_add_u32 s7, s7, s%d' % (sOff + 2))
        a('s_lshl_b32 s7, s7, 10')
        a('s_add_u32 s7, s7, 0x%x' % WS_PH)
        a('v_add_u32 v3, s7, v2')
        self.lds_wait(C_PF, 4, T, T + 1, sleep=8)
        odd = (256 - q0) & 1
        for i in range(n):
            vm.wait_n(o.vhd - 1)
            if odd and i == n - 1:
                a('s_cmp_eq_u32 s%d, 0' % (sOff + 1))
                a('s_cselect_b32 s%d, s%d, 0x40000000' % (sOff, sOff))
            vm.issue('buffer_load_dwordx4 %s, v2, %s, s%d offen nt' % (vr(VR + 4 * i, 4), srd(SRD_B), sOff), 'v')
            a('s_add_u32 s%d, s%d, 2048' % (sOff, sOff))
        self.nonce_lds(T)
        a('s_lshl_b32 s7, s%d, 9' % S_WAVE)
        a('s_add_u32 s7, s7, 0x%x' % PHL)
        a('v_lshl_add_u32 v4, v1, 3, s7')
        a('s_lshl_b32 s%d, s%d, 3' % (sOff + 1, sOff + 1))
        a('s_add_u32 s7, s7, s%d' % (sOff + 1))
        a('v_lshrrev_b32 v5, 4, v1')
        a('v_lshl_add_u32 v5, v5, 1, s7')
        for i in range(n):
            a('v_mov_b32 v%d, 0' % (P + i))
        a('v_and_b32 v6, 15, v1')
        a('v_lshlrev_b32 v6, 4, v6')
        a('v_bfe_u32 v7, v1, 5, 1')
        a('v_lshl_add_u32 v6, v7, 3, v6')
        a('v_bfe_u32 v7, v1, 4, 1')
        a('v_lshl_add_u32 v6, v7, 2, v6')
        a('s_lshl_b32 s7, s%d, 8' % S_WAVE)
        a('s_add_u32 s7, s7, 0x%x' % OHB)
        a('v_add_u32 v6, s7, v6')
        self.stamp(vm, 3, T)
        self.poll(vm, ['buffer_load_dwordx4 %s, v3, %s, 0 offen sc1' % (vr(G, 4), srd(SRD_WS))], G, T, sleep=8)
        a('ds_write_b64 v4, v[%d:%d]' % (G, G + 1))
        for i in range(n):
            if i == 12:
                a('s_waitcnt lgkmcnt(0)')
            a('ds_read_u16_d16_hi v%d, v5 offset:%d' % (P + i, 16 * i))
        a('s_waitcnt lgkmcnt(0)')
        for i in range(n):
            self.unpack8(T, VR + 4 * i)
            for k in range(4):
                self.pkfma_bcast(ACC + 2 * k, T + 2 * k, P + i, first=(i == 0))
        for k in range(4):
            a('v_permlane32_swap_b32 v%d, v%d' % (ACC + k, ACC + k + 4))
        for k in range(4):
            a('v_add_f32 v%d, v%d, v%d' % (ACC + k, ACC + k, ACC + k + 4))
        for k in range(2):
            a('v_permlane16_swap_b32 v%d, v%d' % (ACC + k, ACC + k + 2))
        for k in range(2):
            a('v_add_f32 v%d, v%d, v%d' % (ACC + k, ACC + k, ACC + k + 2))
        a('v_cvt_pk_bf16_f32 v%d, v%d, v%d' % (ACC, ACC, ACC + 1))
        a('ds_write_b32 v6, v%d' % ACC)
        self.lds_signal(C_VH, T, T + 1)
        self.stamp(vm, 4, T)
        self.end()

    def y_addr(self, V, Vt, sCg):
        a = self.a
        a('v_lshrrev_b32 v%d, 4, v1' % V)
        a('v_lshlrev_b32 v%d, 16, v%d' % (V, V))
        a('v_bfe_u32 v%d, v1, 3, 1' % Vt)
        a('v_lshl_add_u32 v%d, v%d, 13, v%d' % (V, Vt, V))
        a('v_and_b32 v%d, 7, v1' % Vt)
        a('v_lshl_add_u32 v%d, v%d, 4, v%d' % (V, Vt, V))
        a('s_cmp_lt_u32 s%d, 4' % S_SLOT)
        a('s_cselect_b32 s7, 0x%x, 0x%x' % (0x40000 >> 7, 0))
        a('s_add_u32 s7, s7, s%d' % S_H)
        a('s_lshl_b32 s7, s7, 7')
        a('s_add_u32 s7, s7, 0x%x' % WS_Y)
        a('v_add_u32 v%d, s7, v%d' % (V, V))
        a('s_lshl_b32 s7, s%d, 14' % sCg)
        a('v_add_u32 v%d, s7, v%d' % (V, V))

    def u_stage1(self):
        a, o = self.a, self.o
        vm = VM(a)
        vm.q = ['old', 'old', 'old']
        self.sec('U1', True)
        T = 160
        VW, VM_, VC, VP = 2, 3, 4, 5
        RAW, FW, X, U, AC, WJ, D = 8, 40, 8, 104, 120, 136, 104
        sOff = S_T + 10
        mk_srd(a, SRD_B, P_WUV, 4194304)
        a('v_lshrrev_b32 v%d, 4, v1' % (T + 2))
        a('v_lshlrev_b32 v%d, 16, v%d' % (VW, T + 2))
        a('v_and_b32 v%d, 15, v1' % T)
        a('v_lshl_add_u32 v%d, v%d, 4, v%d' % (VW, T, VW))
        a('s_lshl_b32 s7, s%d, 8' % S_H)
        a('v_add_u32 v%d, s7, v%d' % (VW, VW))
        a('s_lshl_b32 s%d, s%d, 19' % (sOff, S_WAVE))
        for kb in range(2):
            for i in range(8):
                vm.wait_n(o.ud - 1)
                vm.issue('buffer_load_dwordx4 %s, v%d, %s, s%d offen nt' % (
                    vr((RAW, 104)[kb] + 4 * i, 4), VW, srd(SRD_B), sOff), ('w', kb))
                a('s_add_u32 s%d, s%d, %d' % (sOff, sOff, 8192 if i < 7 else 25 * 8192))
        a('v_lshlrev_b32 v%d, 4, v1' % VM_)
        a('v_add_u32 v%d, 0x%x, v%d' % (VM_, MLS, VM_))
        a('v_lshrrev_b32 v%d, 1, v%d' % (VC, T))
        a('v_lshlrev_b32 v%d, 18, v%d' % (VC, VC))
        a('v_lshl_add_u32 v%d, v%d, 4, v%d' % (VC, T + 2, VC))
        a('v_and_b32 v%d, 1, v1' % (T + 3))
        a('v_lshl_add_u32 v%d, v%d, 6, v%d' % (VC, T + 3, VC))
        a('v_cmp_eq_u32 s[%d:%d], 1, v%d' % (S_MK, S_MK + 1, T + 3))
        a('s_lshl_b32 s7, s%d, 5' % S_WAVE)
        a('s_add_u32 s7, s7, s%d' % S_H)
        a('s_lshl_b32 s7, s7, 7')
        a('s_add_u32 s7, s7, 0x%x' % WS_CTX)
        a('v_add_u32 v%d, s7, v%d' % (VC, VC))
        a('s_lshl_b32 s7, s%d, 11' % S_WAVE)
        a('s_add_u32 s7, s7, 0x%x' % OPART)
        a('v_lshl_add_u32 v%d, v1, 5, s7' % VP)
        vm.wait(('w', 0))
        self.perm_block(FW, RAW)
        vm.wait(('w', 1))
        self.perm_block(FW + 32, 104)
        self.stamp(vm, 3, T)
        if o.cut & 1:
            a('s_branch L_END')
        self.nonce_lds(T)
        self.lds_wait(C_OK2, 1, T, T + 1, sleep=4)
        a('s_setprio 3')
        loads = ['s_mov_b32 s%d, %d\nbuffer_load_dwordx4 %s, v%d, %s, s%d offen sc1' % (
            sOff, 32768 * n, vr(X + 4 * n, 4), VC, srd(SRD_WS), sOff) for n in range(8)]
        WN = 148
        Lp, Lpd = a.uniq('UM'), a.uniq('UMD')
        a('s_mov_b64 s[%d:%d], 0' % (S_MK2, S_MK2 + 1))
        a('s_mov_b32 s%d, %d' % (S_SPIN, o.spin * 8))
        a.label(Lp)
        a('ds_read_b128 %s, v%d' % (vr(WJ, 4), VM_))
        a('s_waitcnt lgkmcnt(0)')
        self.bad(WJ, T)
        a('s_or_b64 s[%d:%d], vcc, s[%d:%d]' % (S_MK3, S_MK3 + 1, S_MK2, S_MK2 + 1))
        for n in range(8):
            Ls = a.uniq('UMS')
            m = (0xAAAA if n >> 2 else 0x5555) << (16 * (n & 1))
            hi = (n >> 1) & 1
            a('s_and_b32 s7, s%d, 0x%x' % (S_MK3 + hi, m))
            a('s_cbranch_scc1 %s' % Ls)
            a(loads[n])
            a('s_or_b32 s%d, s%d, 0x%x' % (S_MK2 + hi, S_MK2 + hi, m))
            a.label(Ls)
        a('s_cbranch_vccz %s' % Lpd)
        a('s_sleep 1')
        a('s_sub_u32 s%d, s%d, 1' % (S_SPIN, S_SPIN))
        a('s_cmp_lg_u32 s%d, 0' % S_SPIN)
        a('s_cbranch_scc1 %s' % Lp)
        a.label(Lpd)
        self.stamp(vm, 4, T)

        def weights():
            M, Lx = WJ, WJ + 1
            mx = WJ + 2
            a('v_max_f32_dpp v%d, v%d, v%d quad_perm:[1,0,3,2] row_mask:0xf bank_mask:0xf' % (mx, M, M))
            a('v_max_f32_dpp v%d, v%d, v%d quad_perm:[2,3,0,1] row_mask:0xf bank_mask:0xf' % (mx, mx, mx))
            for sw in ('v_permlane32_swap_b32', 'v_permlane16_swap_b32'):
                a('v_mov_b32 v%d, v%d' % (mx + 1, mx))
                a('%s v%d, v%d' % (sw, mx, mx + 1))
                a('v_max_f32 v%d, v%d, v%d' % (mx, mx, mx + 1))
            a('v_sub_f32 v%d, v%d, v%d' % (M, M, mx))
            a('v_exp_f32 v%d, v%d' % (M, M))
            a('v_mul_f32 v%d, v%d, v%d' % (Lx, Lx, M))
            a('v_add_f32_dpp v%d, v%d, v%d quad_perm:[1,0,3,2] row_mask:0xf bank_mask:0xf' % (Lx, Lx, Lx))
            a('v_add_f32_dpp v%d, v%d, v%d quad_perm:[2,3,0,1] row_mask:0xf bank_mask:0xf' % (Lx, Lx, Lx))
            self.row_sum([Lx], mx)
            a('v_rcp_f32 v%d, v%d' % (Lx, Lx))
            a('v_mul_f32 v%d, v%d, v%d' % (WJ, M, Lx))
            a('v_mov_b32 v%d, v%d' % (WJ + 1, WJ))
            a('v_permlane16_swap_b32 v%d, v%d' % (WJ, WJ + 1))
            a('v_mov_b32 v%d, v%d' % (WJ + 2, WJ))
            a('v_mov_b32 v%d, v%d' % (WJ + 3, WJ + 1))
            a('v_permlane32_swap_b32 v%d, v%d' % (WJ, WJ + 2))
            a('v_permlane32_swap_b32 v%d, v%d' % (WJ + 1, WJ + 3))
            for e in range(2):
                for jj in range(4):
                    a('v_mov_b32_dpp v%d, v%d quad_perm:[%d,%d,%d,%d] row_mask:0xf bank_mask:0xf' % (
                        WN + 4 * e + jj, WJ + jj, e, e, 2 + e, 2 + e))
        weights()
        a('s_waitcnt vmcnt(0)')
        self.stamp(vm, 5, T)
        OPN = 140
        for n in range(8):
            u = U + 8 * (n & 1)
            self.unpack8(u, X + 4 * n)
            for e in range(8):
                a('%s v%d, v%d, v%d' % ('v_fmac_f32' if n else 'v_mul_f32', AC + e, u + e, WN + n))
        for k in range(4):
            a('v_cvt_pk_bf16_f32 v%d, v%d, v%d' % (AC + 8 + k, AC + 2 * k, AC + 2 * k + 1))
        for k in range(4):
            a('v_cndmask_b32 v%d, v%d, 0, s[%d:%d]' % (OPN + k, AC + 8 + k, S_MK, S_MK + 1))
            a('v_cndmask_b32 v%d, 0, v%d, s[%d:%d]' % (OPN + 4 + k, AC + 8 + k, S_MK, S_MK + 1))
        if o.dump & 2:
            a('s_lshl_b32 s7, s%d, 3' % S_H)
            a('s_add_u32 s7, s7, s%d' % S_WAVE)
            a('s_lshl_b32 s7, s7, 15')
            a('s_add_u32 s7, s7, 0x800000')
            a('v_lshl_add_u32 v%d, v1, 4, s7' % T)
            for k in range(8):
                a('s_mov_b32 s7, %d' % (1024 * (21 + k)))
                a('buffer_store_dwordx4 %s, v%d, %s, s7 offen' % (vr(X + 4 * k, 4), T, srd(SRD_WS)))
            a('s_waitcnt vmcnt(0)')
        D = 8
        for kb in range(2):
            for c in range(8):
                a('v_mfma_f32_16x16x32_bf16 %s, %s, %s, %s' % (
                    vr(D + 4 * c, 4), vr(OPN + 4 * kb, 4), vr(FW + 32 * kb + 4 * c, 4),
                    '0' if kb == 0 else vr(D + 4 * c, 4)))
        R = 104
        for c in range(8):
            self.add2(D + 4 * c, D + 4 * c, D + 4 * c + 2)
        for c in range(8):
            a('v_add_f32 v%d, v%d, v%d' % (R + c, D + 4 * c, D + 4 * c + 1))
        a('ds_write_b128 v%d, %s' % (VP, vr(R, 4)))
        a('ds_write_b128 v%d, %s offset:16' % (VP, vr(R + 4, 4)))
        if o.dump:
            a('s_lshl_b32 s7, s%d, 3' % S_H)
            a('s_add_u32 s7, s7, s%d' % S_WAVE)
            a('s_lshl_b32 s7, s7, 15')
            a('s_add_u32 s7, s7, 0x800000')
            a('v_lshl_add_u32 v%d, v1, 4, s7' % T)
            regs = [R, R + 4, AC + 8, WN, WN + 4] + [AC, AC + 4, AC + 12, OPN, OPN + 4] + [FW + 4 * k for k in range(11)]
            for k, r in enumerate(regs):
                a('s_mov_b32 s7, %d' % (1024 * k))
                a('buffer_store_dwordx4 %s, v%d, %s, s7 offen' % (vr(r, 4), T, srd(SRD_WS)))
        a('v_and_b32 v%d, 31, v1' % T)
        a('s_lshl_b32 s7, s%d, 8' % S_WAVE)
        a('s_add_u32 s7, s7, 0x%x' % OPART)
        a('v_lshl_add_u32 v%d, v%d, 3, s7' % (VP, T))
        a('s_lshl_b32 s7, s%d, 7' % S_WAVE)
        a('s_add_u32 s7, s7, 0x%x' % OBUF)
        a('v_lshl_add_u32 v%d, v%d, 2, s7' % (VC, T))
        a('s_waitcnt lgkmcnt(0)')
        a('s_barrier')
        for k in range(8):
            a('ds_read_b64 v[%d:%d], v%d offset:%d' % (D + 2 * k, D + 2 * k + 1, VP, 2048 * k))
        a('s_waitcnt lgkmcnt(0)')
        for st in (8, 4, 2):
            for k in range(0, st, 2):
                self.add2(D + k, D + k, D + k + st)
        a('v_cvt_pk_bf16_f32 v%d, v%d, v%d' % (D, D, D + 1))
        a('ds_write_b32 v%d, v%d' % (VC, D))
        a('s_waitcnt lgkmcnt(0)')
        a('s_barrier')
        self.stamp(vm, 6, T)
        self.end()

    def w_stage2(self):
        a, o = self.a, self.o
        vm = VM(a)
        self.sec('W2A')
        a.label('L_W2')
        self.common(True, split=True)
        sW, sOff, sM0 = S_T + 2, S_T + 10, S_T + 11
        VW, VY, VO, T = 2, 3, 4, 4
        a('s_sub_u32 s%d, s%d, 8' % (sW, S_WAVE))
        a('s_lshl_b32 s7, s%d, 2' % S_SLOT)
        a('s_add_u32 s7, s7, s%d' % sW)
        a('s_lshl_b32 s7, s7, 17')
        a('s_lshl_b32 s%d, s%d, 10' % (sOff, S_G))
        a('s_add_u32 s%d, s%d, s7' % (sOff, sOff))
        a('s_lshl_b32 s%d, s%d, 14' % (sM0, sW))
        a('v_lshlrev_b32 v%d, 4, v1' % VW)
        a('s_lshl_b32 s7, s%d, 6' % sW)
        a('v_xor_b32 v%d, s7, v%d' % (T, VW))
        for k in range(1, 4):
            a('v_xor_b32 v%d, %d, v%d' % (T + k, k << 4, T))
        a('s_waitcnt lgkmcnt(0)')
        self.nonce_make(8)
        vm.q.append('nonce')
        mk_srd(a, SRD_C, P_WUK, 4194304)
        for i in range(16):
            vt = T + (i >> 2)
            if i == o.ukd:
                self.sec('W2B', True)
                self.common(True)
                a('s_barrier')
            a('s_mov_b32 m0, s%d' % sM0)
            if i >= o.ukd:
                vm.wait_n(o.ukd - 1)
            vm.issue('buffer_load_dwordx4 v%d, %s, s%d offen nt lds' % (vt, srd(SRD_C), sOff), 'uk')
            a('s_addk_i32 s%d, 8192' % sOff)
            a('s_addk_i32 s%d, 1024' % sM0)
        self.sec('W2R', True)
        a('s_cmp_lt_u32 s%d, 4' % S_SLOT)
        a('s_cselect_b32 s%d, s%d, s%d' % (S_T + 12, P_BWO, P_WO))
        a('s_cselect_b32 s%d, s%d, s%d' % (S_T + 13, P_BWO + 1, P_WO + 1))
        mk_srd(a, SRD_D, S_T + 12, 4194304)
        a('v_lshrrev_b32 v%d, 4, v1' % T)
        a('v_lshlrev_b32 v%d, 13, v%d' % (VW, T))
        a('v_and_b32 v%d, 15, v1' % T)
        a('v_lshl_add_u32 v%d, v%d, 4, v%d' % (VW, T, VW))
        a('s_lshl_b32 s7, s%d, 17' % S_H)
        a('s_lshl_b32 s%d, s%d, 8' % (sOff, sW))
        a('s_add_u32 s7, s7, s%d' % sOff)
        a('v_add_u32 v%d, s7, v%d' % (VW, VW))
        self.y_addr(VY, T, sW)
        vm.wait_all()
        self.lds_signal(C_UK, T, T + 1)
        self.stamp(vm, 0, T)
        LU, LJ = a.uniq('S2U'), a.uniq('S2J')

        def stream(depth):
            q0 = list(vm.q)
            for kb in range(4):
                for i in range(8):
                    if i & 3 == 0:
                        vm.wait_n(depth)
                    vm.issue('buffer_load_dwordx4 %s, v%d, %s, s%d offen offset:%d nt' % (
                        vr(40 + 32 * kb + 4 * i, 4), VW, srd(SRD_D), sOff, (i & 3) * 1024), ('w', kb))
                    if i == 3:
                        a('s_add_u32 s%d, s%d, 4096' % (sOff, sOff))
                    if i == 7:
                        a('s_add_u32 s%d, s%d, %d' % (sOff, sOff, 32768 - 4096))
            vm.wait_all()
            vm.q = q0
        a('s_mov_b32 s%d, 0' % sOff)
        if o.hold:
            self.lds_wait(C_QA, 4, T, T + 1, sleep=4)
        a('s_cmp_lt_u32 s%d, 4' % S_SLOT)
        a('s_cbranch_scc1 %s' % LU)
        if o.pf:
            self.lds_wait(C_PF, 4, T, T + 1, sleep=8)
        stream(o.sdx)
        a('s_branch %s' % LJ)
        a.label(LU)
        stream(o.sdu)
        a.label(LJ)
        vm.q = []
        for kb in range(4):
            self.perm_block(8 + 32 * kb, 40 + 32 * kb)
        OP, D0, T = 136, 152, 160
        self.stamp(vm, 1, T)
        if o.cut & 1:
            a('s_branch L_END')
        self.nonce_lds(T)
        LX, LM = a.uniq('S2X'), a.uniq('S2M')
        a('v_bfe_u32 v%d, v1, 2, 2' % VO)
        a('v_lshlrev_b32 v%d, 8, v%d' % (VO, VO))
        a('v_lshrrev_b32 v%d, 4, v1' % T)
        a('v_lshl_add_u32 v%d, v%d, 4, v%d' % (VO, T, VO))
        a('s_mov_b32 s%d, 4096' % sOff)
        a('s_cmp_ge_u32 s%d, 4' % S_SLOT)
        a('s_cbranch_scc1 %s' % LX)
        a('v_add_u32 v%d, 0x%x, v%d' % (VO, OBUF, VO))
        LN = a.uniq('U8')
        a('s_cmp_lg_u32 s%d, 8' % S_WAVE)
        a('s_cbranch_scc1 %s' % LN)
        a('v_and_b32 v5, 15, v1')
        a('v_lshl_add_u32 v5, v5, 2, v%d' % T)
        a('s_lshl_b32 s7, s%d, 4' % S_H)
        a('s_add_u32 s7, s7, 0x%x' % WS_MLB)
        a('v_lshl_add_u32 v5, v5, 9, s7')
        a('v_lshlrev_b32 v6, 4, v1')
        a('v_add_u32 v6, 0x%x, v6' % MLS)
        bufs = [OP, OP + 4, OP + 8][:o.upp]

        def mld(r):
            return 'buffer_load_dwordx4 %s, v5, %s, 0 offen sc1' % (vr(r, 4), srd(SRD_WS))
        self.poll(vm, [mld(OP)], OP, T, sleep=o.usl, anyok=True)
        a('s_setprio 3')
        a('ds_write_b128 v6, %s' % vr(OP, 4))
        self.lds_signal(C_OK2, T, T + 1)
        Lp, Lpd = a.uniq('U8P'), a.uniq('U8D')
        a('s_cbranch_vccz %s' % Lpd)
        for r in bufs:
            a(mld(r))
            a('s_sleep 4')
        a('s_mov_b32 s%d, %d' % (S_SPIN, o.spin))
        a.label(Lp)
        for r in bufs:
            a('s_waitcnt vmcnt(%d)' % (len(bufs) - 1))
            a('ds_write_b128 v6, %s' % vr(r, 4))
            self.bad(r, T)
            a('s_cbranch_vccz %s' % Lpd)
            a('s_waitcnt lgkmcnt(0)')
            a(mld(r))
        a('s_sub_u32 s%d, s%d, 1' % (S_SPIN, S_SPIN))
        a('s_cmp_lg_u32 s%d, 0' % S_SPIN)
        a('s_cbranch_scc1 %s' % Lp)
        a.label(Lpd)
        a('s_waitcnt vmcnt(0)')
        a.label(LN)
        a('s_setprio 3')
        a('s_barrier')
        a('s_barrier')
        for kb in range(4):
            a('ds_read_b128 %s, v%d offset:%d' % (vr(OP + 4 * kb, 4), VO, 64 * kb))
        a('s_waitcnt lgkmcnt(0)')
        a('s_branch %s' % LM)
        a.label(LX)
        if o.hj:
            a('v_bfe_u32 v5, v1, 2, 2')
            a('v_lshl_add_u32 v5, v5, 8, v%d' % VO)
            a('v_add_u32 v6, 1, v1')
            a('v_and_b32 v6, 1, v6')
            a('v_lshl_add_u32 v5, v6, 8, v5')
            a('v_add_u32 v5, 0x%x, v5' % OHB)
            a('v_and_b32 v6, 3, v1')
            a('v_cmp_ne_u32 s[%d:%d], 0, v6' % (S_MK, S_MK + 1))
            self.lds_wait(C_VH, 8, T, T + 1, sleep=4)
            for kb in range(4):
                a('ds_read_b128 %s, v5 offset:%d' % (vr(OP + 4 * kb, 4), 64 * kb))
            a('s_waitcnt lgkmcnt(0)')
            self.stamp(vm, 4, T)
        a('v_and_b32 v%d, 3, v1' % T)
        a('v_lshl_add_u32 v%d, v%d, 6, v%d' % (VO, T, VO))
        a('s_lshl_b32 s7, s%d, 11' % S_H)
        a('s_add_u32 s7, s7, 0x%x' % WS_OA)
        a('v_add_u32 v%d, s7, v%d' % (VO, VO))
        ld = ['buffer_load_dwordx4 %s, v%d, %s, 0 offen offset:%d sc1' % (vr(D0 + 4 * e, 4), VO, srd(SRD_WS), 1024 * e)
              for e in range(2)]
        self.poll(vm, ld[:1], D0, T, sleep=o.xsl, anyok=True)
        a('s_setprio 3')

        def mk(r):
            return (['buffer_load_dwordx4 %s, v%d, %s, 0 offen offset:%d sc1' % (vr(r + 4 * e, 4), VO, srd(SRD_WS), 1024 * e)
                     for e in range(2)], [r, r + 4])

        def spread(r):
            if o.hj:
                a('s_mov_b64 vcc, s[%d:%d]' % (S_MK, S_MK + 1))
            for kb in range(4):
                for k in range(4):
                    d, x = OP + 4 * kb + k, r + 4 * (k >> 1) + (k & 1)
                    if o.hj:
                        a('v_cndmask_b32_dpp v%d, v%d, v%d, vcc quad_perm:[%d,%d,%d,%d] row_mask:0xf bank_mask:0xf' % (
                            d, x, d, kb, kb, kb, kb))
                    else:
                        a('v_mov_b32_dpp v%d, v%d quad_perm:[%d,%d,%d,%d] row_mask:0xf bank_mask:0xf' % (d, x, kb, kb, kb, kb))
        if o.xpp:
            self.poll_pipe(vm, mk, [D0, D0 + 8], spread, gap=o.xpp)
        else:
            self.poll_sel(vm, ld, [D0, D0 + 4], T)
            spread(D0)
        a.label(LM)
        a('s_nop 1')
        T = 4
        self.stamp(vm, 2, T)

        def D(c):
            return 4 if c == 0 else 8 + 4 * (c - 1)
        for c in range(8):
            for kb in range(4):
                a('v_mfma_f32_16x16x32_bf16 %s, %s, %s, %s' % (
                    vr(D(c), 4), vr(OP + 4 * kb, 4), vr(8 + 32 * kb + 4 * c, 4), '0' if kb == 0 else vr(D(c), 4)))
        T = 48
        if o.hj:
            LN = a.uniq('S2A')
            a('s_cmp_lt_u32 s%d, 4' % S_SLOT)
            a('s_cbranch_scc1 %s' % LN)
            for k in (1, 2):
                for c in range(8):
                    a('v_add_f32 v%d, v%d, v%d' % (D(c), D(c), D(c) + k))
            a.label(LN)
            a('s_nop 7')
        Y = 40
        for e in range(2):
            self.set_tag(Y + 4 * e)
            for m in range(2):
                a('v_cvt_pk_bf16_f32 v%d, v%d, v%d' % (Y + 4 * e + m, D(4 * e + 2 * m), D(4 * e + 2 * m + 1)))
            a('buffer_store_dwordx4 %s, v%d, %s, %s offen sc1' % (
                vr(Y + 4 * e, 4), VY, srd(SRD_WS), 's%d' % sOff if e else '0'))
        self.stamp(vm, 3, T)
        self.end()

    def build(self):
        a = self.a
        hdr = open(os.path.join(os.path.dirname(os.path.abspath(__file__)), '..', NAME + '.s.ref')).read()
        head = []
        for line in hdr.split('\n'):
            if line.startswith('; @launch'):
                if self.o.hs:
                    head.append('; @launch kernel=%s_kernel grid=(256,1,1) block=(768,1,1) lds=%d' % (NAME, LDS_BYTES))
                    head.append('; @launch kernel=hs_kernel grid=(1,1,1) block=(64,1,1) lds=0')
                else:
                    head.append('; @launch grid=(256,1,1) block=(768,1,1) lds=%d' % LDS_BYTES)
            elif line.startswith(';'):
                head.append(line)
            else:
                break
        a.raw('\n'.join(head))
        a.raw('.amdgcn_target "amdgcn-amd-amdhsa--gfx950"\n.text\n.globl %s_kernel\n.p2align 12\n.p2align 8\n'
              '.type %s_kernel,@function\n%s_kernel:' % (NAME, NAME, NAME))
        self.sec('ENTRY')
        self.entry()
        self.a_att()
        self.a_svc()
        self.w_role()
        from gen3_c import c_role
        c_role(self)
        self.sec('END')
        a.label('L_END')
        self.end()
        a.label('L_END0')
        a('s_endpgm')
        self.sec('TAIL')
        a.label('L_CODE_END')
        a.raw('''.section .rodata,"a"
.p2align 6
.amdhsa_kernel %s_kernel
  .amdhsa_next_free_vgpr 168
  .amdhsa_next_free_sgpr 102
  .amdhsa_accum_offset 168
  .amdhsa_group_segment_fixed_size 0
  .amdhsa_kernarg_size 112
  .amdhsa_user_sgpr_count 2
  .amdhsa_user_sgpr_kernarg_segment_ptr 1
  .amdhsa_system_sgpr_workgroup_id_x 1
  .amdhsa_float_denorm_mode_32 3
.end_amdhsa_kernel
''' % NAME)
        if self.o.hs:
            from hs import hs_kernel
            a.raw(hs_kernel(WS_HS, 256 * 12, self.o.hs))
        return layout(a.text()) if self.o.lay else a.text()


ORD = os.environ.get('ORD', 'W2A,AA,CA').split(',')


def sizes_of(lines):
    import subprocess, tempfile, re
    txt = []
    for l in lines:
        txt.append(l)
        if l.startswith(';@SEC TAIL'):
            txt += ['LT_%s:' % p for p in ('AR', 'AR2', 'U1', 'W2R', 'CR', 'CR2')]
    with tempfile.TemporaryDirectory() as d:
        open(d + '/t.s', 'w').write('\n'.join(txt))
        subprocess.check_call(['clang', '-x', 'assembler', '-target', 'amdgcn-amd-amdhsa', '-mcpu=gfx950',
                               '-c', d + '/t.s', '-o', d + '/t.o'])
        dis = subprocess.check_output(['llvm-objdump', '-d', '--mcpu=gfx950', d + '/t.o']).decode()
    sz = [4 * len(m.group(1).split()) for m in re.finditer(r'// [0-9A-F]+: ((?:[0-9A-F]{8} ?)+)', dis)]
    out, k = [], 0
    for l in lines:
        if l.startswith('    ') and not l.strip().startswith(';'):
            out.append(sz[k])
            k += 1
        else:
            out.append(0)
    return out


def layout(text):
    lines = text.split('\n')
    sz = sizes_of(lines)
    secs, cur = {}, 'HEAD'
    for l, n in zip(lines, sz):
        if l.startswith(';@SEC '):
            cur = l.split()[1]
            continue
        secs.setdefault(cur, []).append((l, n))

    def size(n):
        return sum(x[1] for x in secs[n])

    def body(n):
        return [x[0] for x in secs[n]]

    def stub(p):
        return ['.p2align 12', 'LT_%s:' % p, '    s_branch LR_%s' % p]

    def split(n):
        out, pos, done = [], 4, False
        for l, k in secs[n]:
            if not done and k and pos + k + 4 > 4096:
                out += ['    s_branch LC_%s' % n] + stub(n + '2') + ['LC_%s:' % n]
                done, pos = True, 4
            out.append(l)
            pos += k
        assert done
        return out, pos
    out = body('HEAD')
    p0 = ['ENTRY'] + ORD + ['AB', 'W2B', 'CB', 'END']
    print('first bursts:', [(n, size(n)) for n in p0])
    for n in p0:
        out += body(n)
    ar, rest = split('AR')
    out += stub('AR') + ar + body('ASVC')
    out += ['.p2align 12'] + body('W0') + body('CSVC')
    out += stub('U1') + body('U1') + stub('W2R') + body('W2R')
    cr, crest = split('CR')
    out += stub('CR') + cr + body('TAIL')
    print('layout: page0 %d (+768 harness), AR2+ASVC %d, W0+CSVC %d, U1 %d, W2R %d, CR2 %d' % (
        sum(map(size, p0)), rest + size('ASVC'), size('W0') + size('CSVC'), size('U1'), size('W2R'), crest))
    return '\n'.join(out)


if __name__ == '__main__':
    import gen3
    opt = gen3.Opt()
    out = os.path.join(os.path.dirname(os.path.abspath(__file__)), '..', NAME + '.s')
    for arg in sys.argv[1:]:
        if arg.startswith('out='):
            out = arg[4:]
        else:
            k, v = arg.split('=')
            assert hasattr(opt, k), k
            setattr(opt, k, int(v))
    g = gen3.Gen(opt)
    txt = g.build()
    open(out, 'w').write(txt)
    print('wrote', out, len(txt), 'bytes; auto nops:', g.a.nops)
```

```python
from asmlib import vr
import gen3 as G
from gen3 import (VM, mk_srd, srd, f32bits, S_T, S_G, S_SLOT, S_WAVE, S_SPIN, S_MK, S_MK2, S_MK3,
                  SRD_WS, SRD_A, SRD_C, P_CKV, P_OUT, P_V, S_H)


def ci(a, s):
    a('s_lshl_b32 s%d, s%d, 3' % (s, S_G))
    a('s_add_u32 s%d, s%d, s%d' % (s, s, S_SLOT))
    a('s_sub_u32 s%d, s%d, 8' % (s, s))


def c_role(g):
    a = g.a
    g.sec('CA')
    a.label('L_C')
    c_att(g)
    c_svc(g)


def c_att(g):
    a, o = g.a, g.o
    vm = VM(a)
    g.common(split=True)
    (sBi, sBq, sJ, sCh, sKt, sHh, sOff, sC, sM0, sX, sBase) = [S_T + i for i in range(11)]
    Q, ST2, ACC = 32, 96, 128
    ST1 = ACC
    VB8, VB4 = 2, 3
    T = 160

    def sync():
        a('s_waitcnt lgkmcnt(0)')
        a('s_barrier')

    ci(a, sBi)
    a('v_lshlrev_b32 v%d, 4, v1' % T)
    a('s_and_b32 s7, s%d, 3' % S_WAVE)
    a('s_lshl_b32 s7, s7, 2')
    a('s_lshr_b32 s%d, s%d, 2' % (sOff, S_WAVE))
    a('s_or_b32 s7, s7, s%d' % sOff)
    sSw = sJ
    a('s_lshl_b32 s%d, s7, 4' % sSw)
    a('v_xor_b32 v%d, s%d, v%d' % (VB8, sSw, T))
    a('v_xor_b32 v%d, 32, v%d' % (VB4, VB8))
    a('s_lshl_b32 s%d, s%d, 18' % (sBase, sBi))

    def thr():
        vm.wait_n(o.bd - 1)

    a('s_lshl_b32 s%d, s%d, 10' % (sM0, S_WAVE))
    sLd = sBq
    a('s_add_u32 s%d, s%d, s%d' % (sLd, sBase, sM0))

    a('s_waitcnt lgkmcnt(0)')
    mk_srd(a, SRD_A, P_CKV, 16777216)
    for i in range(24):
        vt = VB4 if i & 1 else VB8
        if i < 12:
            a('s_mov_b32 m0, s%d' % sM0)
            thr()
            vm.issue('buffer_load_dwordx4 v%d, %s, s%d offen nt lds' % (vt, srd(SRD_A), sLd), 'q0')
            a('s_addk_i32 s%d, 8192' % sM0)
        else:
            thr()
            r = ST1 + 4 * (i - 12) if i < 16 else ST2 + 4 * (i - 16)
            vm.issue('buffer_load_dwordx4 %s, v%d, %s, s%d offen nt' % (vr(r, 4), vt, srd(SRD_A), sLd),
                     'st1' if i < 16 else 'st2')
        if i == o.bd - 1:
            g.sec('CB', True)
            g.post()
            a('s_lshr_b32 s%d, s%d, 1' % (sKt, S_WAVE))
            a('s_and_b32 s%d, s%d, 1' % (sHh, S_WAVE))
            a('s_mov_b32 s%d, 0x%x' % (sC, f32bits(G.SCALE_LOG2E)))
            a('s_barrier')
        a('s_addk_i32 s%d, 8192' % sLd)
        if i == o.qev:
            g.lds_signal(G.C_OK, T, T + 1)
    if o.spf:
        a('s_lshl_b32 s7, s%d, 10' % S_WAVE)
        a('s_add_u32 s7, s7, 131072')
        a('s_mov_b32 m0, s7')
        a('s_mov_b32 s7, s%d' % sLd)
        for i in range(o.spf):
            vm.wait_n(o.spd - 1)
            vm.issue('buffer_load_dwordx4 v%d, %s, s7 offen lds' % (VB8, srd(SRD_A)), 'pf')
            a('s_addk_i32 s7, 8192')
    g.sec('CR', True)
    g.stamp(vm, 0, T)
    VA, VA1, VTM, VP, VPB, VAL, VQ = 4, 2, 5, 6, 7, 8, 3
    VTR = 9
    MRUN, LRUN = 13, 14
    S8 = 16
    a('v_and_b32 v%d, 15, v1' % T)
    a('v_lshlrev_b32 v%d, 10, v%d' % (VA, T))
    a('v_lshrrev_b32 v%d, 4, v1' % (T + 1))
    a('v_lshl_add_u32 v%d, v%d, 8, v%d' % (VA, T + 1, VA))
    a('v_lshl_add_u32 v%d, v%d, 4, v%d' % (VQ, T, VA))
    a('s_lshl_b32 s7, s%d, 14' % sHh)
    a('s_add_u32 s7, s7, 0x%x' % G.QST)
    a('v_add_u32 v%d, s7, v%d' % (VQ, VQ))
    a('v_and_b32 v%d, 3, v1' % (T + 2))
    a('v_lshl_add_u32 v%d, v%d, 6, v%d' % (VA, T + 2, VA))
    a('v_bfe_u32 v%d, v1, 2, 2' % (T + 2))
    a('v_lshl_add_u32 v%d, v%d, 4, v%d' % (VA, T + 2, VA))
    a('s_lshl_b32 s7, s%d, 14' % sKt)
    a('v_add_u32 v%d, s7, v%d' % (VA, VA))
    a('v_add_u32 v%d, 0x10000, v%d' % (VA1, VA))
    a('s_lshl_b32 s7, s%d, 6' % sHh)
    a('s_add_u32 s7, s7, 0x%x' % G.TMAX)
    a('v_lshl_add_u32 v%d, v%d, 2, s7' % (VTM, T))
    a('s_lshl_b32 s7, s%d, 10' % sKt)
    a('s_lshl_b32 s%d, s%d, 9' % (sOff, sHh))
    a('s_add_u32 s7, s7, s%d' % sOff)
    a('s_add_u32 s7, s7, 0x%x' % G.PBUF)
    a('v_lshl_add_u32 v%d, v%d, 5, s7' % (VP, T))
    a('v_lshl_add_u32 v%d, v%d, 3, v%d' % (VP, T + 1, VP))
    a('v_and_b32 v%d, 31, v1' % (T + 2))
    a('v_lshlrev_b32 v%d, 5, v%d' % (VPB, T + 2))
    a('v_lshrrev_b32 v%d, 5, v1' % (T + 3))
    a('v_lshl_add_u32 v%d, v%d, 4, v%d' % (VPB, T + 3, VPB))
    a('v_add_u32 v%d, 0x%x, v%d' % (VPB, G.PBUF, VPB))
    a('v_lshlrev_b32 v%d, 2, v%d' % (VAL, T + 2))
    a('v_add_u32 v%d, 0x%x, v%d' % (VAL, G.ALPHA, VAL))
    a('v_bfe_u32 v%d, v1, 2, 2' % (T + 2))
    a('v_lshl_add_u32 v%d, v%d, 3, v%d' % (T + 4, T + 3, T + 2))
    a('v_lshlrev_b32 v%d, 10, v%d' % (T + 4, T + 4))
    a('v_and_b32 v%d, 1, v1' % (T + 5))
    a('v_lshl_add_u32 v%d, v%d, 3, v%d' % (T + 4, T + 5, T + 4))
    a('s_lshl_b32 s7, s%d, 8' % sKt)
    a('v_add_u32 v%d, s7, v%d' % (T + 4, T + 4))
    a('v_bfe_u32 v%d, v1, 4, 1' % (T + 5))
    a('v_lshlrev_b32 v%d, 1, v%d' % (T + 5, T + 5))
    a('v_bfe_u32 v%d, v1, 1, 1' % T)
    a('v_or_b32 v%d, v%d, v%d' % (T + 5, T + 5, T))
    a('s_lshl_b32 s7, s%d, 3' % sHh)
    a('v_or_b32 v%d, s7, v%d' % (T + 5, T + 5))
    a('v_lshlrev_b32 v%d, 2, v%d' % (T + 2, T + 2))
    a('v_xor_b32 v%d, v%d, v%d' % (T + 5, T + 5, T + 2))
    a('v_lshlrev_b32 v%d, 1, v%d' % (T + 3, T + 3))
    a('v_xor_b32 v%d, v%d, v%d' % (T + 5, T + 5, T + 3))
    for hf in range(2):
        for ct in range(2):
            a('v_xor_b32 v%d, %d, v%d' % (T, (4 * ct) ^ hf, T + 5))
            a('v_lshl_add_u32 v%d, v%d, 4, v%d' % (VTR + 2 * hf + ct, T, T + 4))
            if hf:
                a('v_add_u32 v%d, 0x1000, v%d' % (VTR + 2 * hf + ct, VTR + 2 * hf + ct))
    a('v_mov_b32 v%d, 0xff800000' % MRUN)
    a('v_mov_b32 v%d, 0' % LRUN)
    a('v_cmp_gt_u32 s[%d:%d], 16, v1' % (S_MK, S_MK + 1))
    a('s_cmp_eq_u32 s%d, 0' % sKt)
    a('s_cselect_b32 s%d, 0xffff, 0' % S_MK2)
    a('s_mov_b32 s%d, 0' % (S_MK2 + 1))
    vm.wait('st1')
    g.stamp(vm, 1, T)
    a('s_barrier')
    if o.cut & 2:
        a('s_branch L_END')
    g.stamp(vm, 2, T)
    for ks in range(16):
        a('v_xor_b32 v%d, 0x%x, v%d' % (T + (ks & 1), ks << 4, VQ))
        a('ds_read_b128 %s, v%d' % (vr(Q + 4 * ks, 4), T + (ks & 1)))
    a('s_lshl_b32 s7, s%d, 10' % S_WAVE)
    a('s_add_u32 s7, s7, 0x%x' % G.QST)
    a('v_lshl_add_u32 v%d, v1, 4, s7' % VQ)
    sync()
    for i in range(4):
        a('ds_write_b128 v%d, %s offset:%d' % (VQ, vr(ST1 + 4 * i, 4), i * 8192))
    g.stamp(vm, 3, T)

    sPv = S_T + 15

    def pre_setup(off):
        mk_srd(a, G.SRD_B, P_V, 134217728)
        a('s_bfe_u32 s7, s%d, 0x10002' % S_SLOT)
        a('s_lshl1_add_u32 s7, s7, s%d' % sHh)
        a('s_lshl_b32 s7, s7, 5')
        a('s_add_u32 s7, s7, s%d' % S_H)
        a('s_lshl_b32 s7, s7, 20')
        a('s_lshl_b32 s%d, s%d, 10' % (sPv, sKt))
        a('s_add_u32 s%d, s%d, s7' % (sPv, sPv))
        a('s_add_u32 s%d, s%d, 0x%x' % (sPv, sPv, 0xC0000 + off * 1024))
        a('s_lshl_b32 s7, s%d, 10' % S_WAVE)
        a('s_add_u32 s7, s7, 131072')
        a('s_mov_b32 m0, s7')
        a('v_lshlrev_b32 v15, 4, v1')

    def pre_load():
        vm.issue('buffer_load_dwordx4 v15, %s, s%d offen lds' % (srd(G.SRD_B), sPv), 'pre')
        a('s_addk_i32 s%d, 4096' % sPv)

    def scores2(order, mid, AOB, pre=None):
        nb = len(AOB)
        for t in order:
            if t == order[1]:
                mid()

            def rd(n):
                vt = T + (n % 3)
                a('v_xor_b32 v%d, 0x%x, v%d' % (vt, n << 4, VA1 if t else VA))
                a('ds_read_b128 %s, v%d' % (vr(AOB[n % nb], 4), vt))
            for n in range(nb - 1):
                rd(n)
            for ks in range(16):
                if pre and (16 * (t != order[0]) + ks) in pre:
                    pre_load()
                if ks + nb - 1 < 16:
                    rd(ks + nb - 1)
                    a('s_waitcnt lgkmcnt(%d)' % (nb - 1))
                else:
                    a('s_waitcnt lgkmcnt(%d)' % (15 - ks))
                a('v_mfma_f32_16x16x32_bf16 %s, %s, %s, %s' % (
                    vr(S8 + 4 * t, 4), vr(AOB[ks % nb], 4), vr(Q + 4 * ks, 4), '0' if ks == 0 else vr(S8 + 4 * t, 4)))
        a('v_max3_f32 v%d, v%d, v%d, v%d' % (T, S8, S8 + 1, S8 + 2))
        a('v_max3_f32 v%d, v%d, v%d, v%d' % (T, T, S8 + 3, S8 + 4))
        a('v_max3_f32 v%d, v%d, v%d, v%d' % (T, T, S8 + 5, S8 + 6))
        a('v_max_f32 v%d, v%d, v%d' % (T, T, S8 + 7))
        a('v_mov_b32 v%d, v%d' % (T + 1, T))
        a('v_permlane32_swap_b32 v%d, v%d' % (T, T + 1))
        a('v_max_f32 v%d, v%d, v%d' % (T, T, T + 1))
        a('v_mov_b32 v%d, v%d' % (T + 1, T))
        a('v_permlane16_swap_b32 v%d, v%d' % (T, T + 1))
        a('v_max_f32 v%d, v%d, v%d' % (T, T, T + 1))
        a('s_lshl_b32 s7, s%d, 7' % sKt)
        a('v_add_u32 v%d, s7, v%d' % (T + 1, VTM))
        a('s_mov_b64 exec, s[%d:%d]' % (S_MK, S_MK + 1))
        a('ds_write_b32 v%d, v%d' % (T + 1, T))
        a('s_mov_b64 exec, -1')

    def softmax(last):
        for k in range(4):
            a('ds_read_b32 v%d, v%d offset:%d' % (T + k, VTM, k * 128))
        a('s_waitcnt lgkmcnt(0)')
        a('v_max3_f32 v%d, v%d, v%d, v%d' % (T, T, T + 1, T + 2))
        a('v_max_f32 v%d, v%d, v%d' % (T, T, T + 3))
        a('v_mul_f32 v%d, s%d, v%d' % (T, sC, T))
        a('v_max_f32 v%d, v%d, v%d' % (T, T, MRUN))
        a('v_sub_f32 v%d, v%d, v%d' % (T + 1, MRUN, T))
        a('v_exp_f32 v%d, v%d' % (T + 1, T + 1))
        a('v_mov_b32 v%d, v%d' % (MRUN, T))
        for k in range(8):
            a('v_fma_f32 v%d, v%d, s%d, -v%d' % (S8 + k, S8 + k, sC, T))
        for k in range(8):
            a('v_exp_f32 v%d, v%d' % (S8 + k, S8 + k))
        for k in range(4):
            a('v_cvt_pk_bf16_f32 v%d, v%d, v%d' % (24 + k, S8 + 2 * k, S8 + 2 * k + 1))
        a('ds_write_b64 v%d, v[24:25]' % VP)
        a('ds_write_b64 v%d, v[26:27] offset:4096' % VP)
        a('v_add_u32 v%d, 0x%x, v%d' % (T + 2, (G.ALPHA - G.TMAX) & 0xffffffff, VTM))
        a('s_mov_b64 exec, s[%d:%d]' % (S_MK2, S_MK2 + 1))
        a('ds_write_b32 v%d, v%d' % (T + 2, T + 1))
        a('s_mov_b64 exec, -1')
        a('v_mul_f32 v%d, v%d, v%d' % (LRUN, LRUN, T + 1))
        for st in (4, 2, 1):
            for k in range(st):
                a('v_add_f32 v%d, v%d, v%d' % (S8 + k, S8 + k, S8 + k + st))
        a('v_add_f32 v%d, v%d, v%d' % (LRUN, LRUN, S8))
        if last:
            a('v_mov_b32 v%d, v%d' % (T, LRUN))
            a('v_permlane32_swap_b32 v%d, v%d' % (LRUN, T))
            a('v_add_f32 v%d, v%d, v%d' % (LRUN, LRUN, T))
            a('v_mov_b32 v%d, v%d' % (T, LRUN))
            a('v_permlane16_swap_b32 v%d, v%d' % (LRUN, T))
            a('v_add_f32 v%d, v%d, v%d' % (LRUN, LRUN, T))
            a('s_lshl_b32 s7, s%d, 7' % sKt)
            a('s_add_u32 s7, s7, 0x%x' % (G.LBUF - G.TMAX))
            a('v_add_u32 v%d, s7, v%d' % (T + 1, VTM))
            a('v_add_u32 v%d, 0x%x, v%d' % (T + 2, G.MBUF - G.TMAX, VTM))
            a('s_mov_b64 exec, s[%d:%d]' % (S_MK, S_MK + 1))
            a('ds_write_b32 v%d, v%d' % (T + 1, LRUN))
            a('s_mov_b64 exec, s[%d:%d]' % (S_MK2, S_MK2 + 1))
            a('ds_write_b32 v%d, v%d' % (T + 2, MRUN))
            a('s_mov_b64 exec, -1')

    def ctx(first):
        PB = 16
        CO = [24, 28, T, T + 4]
        if not first:
            a('ds_read_b32 v15, v%d' % VAL)

        def rd(kk):
            if kk == 4:
                for v in range(4):
                    a('v_add_u32 v%d, 0x10000, v%d' % (VTR + v, VTR + v))
            a('ds_read_b128 %s, v%d offset:%d' % (vr(PB + 4 * (kk & 1), 4), VPB, kk * 1024))
            for ct in range(2):
                c = CO[(2 * kk + ct) & 3]
                a('ds_read_b64_tr_b16 v[%d:%d], v%d offset:%d' % (c, c + 1, VTR + ct, (kk & 3) * 16384))
                a('ds_read_b64_tr_b16 v[%d:%d], v%d offset:%d' % (c + 2, c + 3, VTR + 2 + ct, (kk & 3) * 16384))
        rd(0)
        if not first:
            a('s_waitcnt lgkmcnt(5)')
            for k in range(32):
                a('v_mul_f32 v%d, v15, v%d' % (ACC + k, ACC + k))
        for kk in range(8):
            if kk == 4:
                a('s_barrier')
            if first and kk in (4, 5) and not o.q3r:
                for i in range(4 * (kk - 4), 4 * (kk - 4) + 4):
                    a('s_mov_b32 m0, s%d' % sM0)
                    a('s_add_u32 s%d, s%d, 8192' % (sM0, sM0))
                    vm.issue('buffer_load_dwordx4 v%d, %s, s%d offen nt lds' % (15 if i & 1 else 3, srd(SRD_A), sLd), 'q3')
                    a('s_add_u32 s%d, s%d, 8192' % (sLd, sLd))
            if kk < 7:
                rd(kk + 1)
                a('s_waitcnt lgkmcnt(7)')
            else:
                a('s_waitcnt lgkmcnt(2)')
            for ct in range(2):
                if ct == 1:
                    a('s_waitcnt lgkmcnt(%d)' % (5 if kk < 7 else 0))
                c = CO[(2 * kk + ct) & 3]
                a('v_mfma_f32_32x32x16_bf16 %s, %s, %s, %s' % (
                    vr(ACC + 16 * ct, 16), vr(c, 4), vr(PB + 4 * (kk & 1), 4),
                    '0' if (first and kk == 0) else vr(ACC + 16 * ct, 16)))
        if first:
            for v in range(4):
                a('v_add_u32 v%d, 0xffff0000, v%d' % (VTR + v, VTR + v))

    if o.pw1:
        pre_setup(o.po1)
    scores2((0, 1), sync, [24, 28, T + 4] + [ACC + 16 + 4 * k for k in range(o.nb - 3)], [o.pws * k for k in range(o.pw1)])
    g.stamp(vm, 8, T + 2)
    sync()
    softmax(False)
    a('v_lshlrev_b32 v3, 4, v1')
    a('v_xor_b32 v3, s%d, v3' % sSw)
    a('v_xor_b32 v15, 32, v3')
    a('s_lshl_b32 s%d, s%d, 10' % (sM0, S_WAVE))
    sync()
    g.stamp(vm, 11, T + 2)
    ctx(True)
    a('s_lshl_b32 s7, s%d, 10' % S_WAVE)
    a('s_add_u32 s7, s7, 0x%x' % G.RING1)
    a('v_lshl_add_u32 v3, v1, 4, s7')
    vm.wait('st2')
    a('s_barrier')
    g.stamp(vm, 4, T + 2)
    for i in range(8):
        a('ds_write_b128 v3, %s offset:%d' % (vr(ST2 + 4 * i, 4), i * 8192))
    if not o.q3r:
        sync()
    else:
        a('s_waitcnt lgkmcnt(%d)' % (8 - (o.nb - 3)))
    g.stamp(vm, 5, T + 2)

    def mid2():
        vm.wait('q3')
        a('s_barrier')
    if o.pw2:
        pre_setup(o.po2)
    scores2((0, 1) if o.q3r else (1, 0), mid2, [24, 28, T + 4] + [ST2 + 4 * k for k in range(o.nb - 3)], [o.pws * k for k in range(o.pw2)])
    g.stamp(vm, 13, T + 2)
    sync()
    softmax(True)
    VC = 98
    a('v_and_b32 v%d, 31, v1' % T)
    a('v_lshlrev_b32 v%d, 7, v%d' % (VC, T))
    a('v_lshrrev_b32 v%d, 5, v1' % (T + 1))
    a('v_and_b32 v%d, 7, v1' % T)
    a('v_xor_b32 v%d, v%d, v%d' % (T + 1, T, T + 1))
    a('v_lshl_add_u32 v%d, v%d, 4, v%d' % (VC, T + 1, VC))
    a('s_lshl_b32 s7, s%d, 12' % S_WAVE)
    a('v_add_u32 v%d, s7, v%d' % (VC, VC))
    a('v_lshl_add_u32 v99, v1, 4, s7')
    a('v_lshrrev_b32 v%d, 3, v1' % (T + 1))
    a('v_xor_b32 v%d, v%d, v%d' % (T, T, T + 1))
    a('v_lshlrev_b32 v100, 7, v%d' % (T + 1))
    a('v_lshl_add_u32 v100, v%d, 4, v100' % T)
    a('s_lshl_b32 s%d, s%d, 15' % (sX, sBi))
    a('s_add_u32 s%d, s%d, s7' % (sX, sX))
    a('s_add_u32 s%d, s%d, 0x%x' % (sX, sX, G.WS_CTX))
    sync()
    ctx(False)
    g.stamp(vm, 6, T)
    for ct in range(2):
        for k in range(2):
            r0, r1 = ACC + 16 * ct + 8 * k, ACC + 16 * ct + 8 * k + 4
            for e in range(4):
                a('v_permlane32_swap_b32 v%d, v%d' % (r0 + e, r1 + e))
            d = 16 + 4 * (2 * ct + k)
            a('v_cvt_pk_bf16_f32 v%d, v%d, v%d' % (d, r0, r0 + 1))
            a('v_cvt_pk_bf16_f32 v%d, v%d, v%d' % (d + 1, r0 + 2, r0 + 3))
            a('v_cvt_pk_bf16_f32 v%d, v%d, v%d' % (d + 2, r1, r1 + 1))
            a('v_cvt_pk_bf16_f32 v%d, v%d, v%d' % (d + 3, r1 + 2, r1 + 3))
            a('v_xor_b32 v%d, 0x%x, v%d' % (T + ((2 * ct + k) & 1), (4 * ct + 2 * k) << 4, VC))
            a('ds_write_b128 v%d, %s' % (T + ((2 * ct + k) & 1), vr(d, 4)))
    for i in range(4):
        a('ds_read_b128 %s, v99 offset:%d' % (vr(32 + 4 * i, 4), i * 1024))
    for i in range(4):
        a('s_waitcnt lgkmcnt(%d)' % (3 - i))
        vm.issue('buffer_store_dwordx4 %s, v100, %s, s%d offen offset:%d sc1%s' % (
            vr(32 + 4 * i, 4), srd(SRD_WS), sX, i * 1024, ' nt' if o.cnt & 1 else ''), 'ctx')
    g.stamp(vm, 7, T)
    g.nonce_lds(T)
    a('v_and_b32 v%d, 31, v1' % T)
    a('v_lshlrev_b32 v3, 2, v%d' % T)
    a('v_add_u32 v3, 0x%x, v3' % G.LBUF)
    a('s_lshl_b32 s7, s%d, 9' % sBi)
    a('s_add_u32 s7, s7, 0x%x' % G.WS_MLB)
    a('s_cmp_eq_u32 s%d, 0' % S_WAVE)
    a('s_cselect_b32 s7, s7, 0x40000000')
    a('v_lshl_add_u32 v4, v%d, 4, s7' % T)
    g.set_tag(20)
    for k in range(4):
        a('ds_read_b32 v%d, v3 offset:%d' % (16 + k, k * 128))
    a('ds_read_b32 v20, v3 offset:%d' % (G.MBUF - G.LBUF))
    a('s_waitcnt lgkmcnt(0)')
    a('v_add_f32 v16, v16, v17')
    a('v_add_f32 v18, v18, v19')
    a('v_add_f32 v21, v16, v18')
    vm.wait_all()
    a('s_barrier')
    if o.cut & 1:
        a('s_branch L_END')
    a('s_mov_b64 exec, 0xffffffff')
    a('buffer_store_dwordx4 v[20:23], v4, %s, 0 offen sc1' % srd(SRD_WS))
    a('s_mov_b64 exec, -1')
    g.stamp(vm, 9, T)
    a('v_lshlrev_b32 v2, 4, v1')
    if o.pv:
        mk_srd(a, SRD_A, P_V, 134217728)
        a('s_bfe_u32 s7, s%d, 0x10002' % S_SLOT)
        a('s_lshl_b32 s7, s7, 6')
        a('s_add_u32 s7, s7, s%d' % S_H)
        a('s_lshl_b32 s7, s7, 20')
        a('s_lshl_b32 s%d, s%d, 10' % (S_T + 12, S_WAVE))
        a('s_add_u32 s%d, s%d, s7' % (S_T + 12, S_T + 12))
        a('s_add_u32 s%d, s%d, %d' % (S_T + 12, S_T + 12, 0xC0000 + (G.NS * (G.NQ - o.hj) if o.hj else 256) * 1024 - 8192))
        a('s_add_u32 s%d, s%d, 0x2000000' % (S_T + 13, S_T + 12))
        a('s_mov_b32 s%d, %d' % (S_T + 14, o.pv // 8))
        if o.xr:
            a('s_and_b32 s7, s%d, 4' % S_SLOT)
            a('s_add_u32 s7, s7, s%d' % S_SLOT)
            a('s_add_u32 s%d, s7, 8' % (S_T + 16))
            a('s_add_u32 s%d, s7, 12' % (S_T + 17))
            g.xkey(S_T + 16, S_T + 16)
            g.xkey(S_T + 17, S_T + 17)
        a('s_sleep %d' % o.pvs)
        Lp = a.uniq('PV')
        a.label(Lp)
        for k in range(2):
            a('s_waitcnt vmcnt(%d)' % (o.pvd - 1))
            if o.xr:
                a('s_xor_b32 s7, s%d, s%d' % (S_T + 12 + k, S_T + 16 + k))
            a('buffer_load_dwordx4 v[8:11], v2, %s, s%d offen%s' % (srd(SRD_A), 7 if o.xr else S_T + 12 + k, G.PFL[o.pfl]))
            a('s_sub_u32 s%d, s%d, 8192' % (S_T + 12 + k, S_T + 12 + k))
        a('s_sub_u32 s%d, s%d, 1' % (S_T + 14, S_T + 14))
        a('s_cmp_lg_u32 s%d, 0' % (S_T + 14))
        a('s_cbranch_scc1 %s' % Lp)
    mk_srd(a, SRD_C, P_OUT, 8192)
    a('s_lshl_b32 s7, s%d, 3' % sBi)
    a('s_add_u32 s7, s7, s%d' % S_WAVE)
    a('s_lshl_b32 s7, s7, 10')
    a('s_add_u32 s7, s7, 0x%x' % G.WS_Y)
    a('v_add_u32 v4, s7, v2')
    a('s_bfe_u32 s7, s%d, 0x20003' % sBi)
    a('s_lshl_b32 s7, s7, 11')
    a('s_lshr_b32 s%d, s%d, 5' % (sOff, sBi))
    a('s_lshl_b32 s%d, s%d, 10' % (sOff, sOff))
    a('s_add_u32 s7, s7, s%d' % sOff)
    a('s_and_b32 s%d, s%d, 7' % (sOff, sBi))
    a('s_lshl_b32 s%d, s%d, 7' % (sOff, sOff))
    a('s_add_u32 s7, s7, s%d' % sOff)
    a('v_and_b32 v5, 7, v1')
    a('v_lshl_add_u32 v5, v5, 4, s7')
    a('v_lshrrev_b32 v6, 4, v1')
    a('v_lshl_add_u32 v5, v6, 2, v5')
    a('s_mov_b32 s%d, 0x00ff00ff' % S_MK3)
    a('s_mov_b32 s%d, 0x00ff00ff' % (S_MK3 + 1))
    a('s_lshl_b32 s7, s%d, 10' % S_WAVE)
    a('s_add_u32 s7, s7, 0x%x' % G.PBUF)
    a('v_add_u32 v6, s7, v2')

    def mk(r):
        return (['buffer_load_dwordx4 %s, v4, %s, 0 offen sc1' % (vr(r, 4), srd(SRD_WS))], [r])
    g.poll(vm, mk(32)[0], 32, T, sleep=o.rsl, anyok=True)
    g.stamp(vm, 10, T)
    LR = a.uniq('RD')
    g.unpack4(64, 32)
    a('s_cbranch_vccz %s' % LR)
    g.poll_pipe(vm, mk, [32, 36, 40][:o.rpn], lambda r: g.unpack4(64, r), gap=o.rpp)
    a.label(LR)
    a('ds_write_b128 v6, v[64:67]')
    g.stamp(vm, 12, T)
    sync()
    a('s_cmp_lg_u32 s%d, 0' % S_WAVE)
    a('s_cbranch_scc1 L_END')
    Y = 64
    for i in range(8):
        a('ds_read_b128 %s, v6 offset:%d' % (vr(Y + 4 * i, 4), 1024 * i))
    for e in range(2):
        y = Y + 16 * e
        a('s_waitcnt lgkmcnt(%d)' % (4 - 4 * e))
        for st in (8, 4):
            for k in range(0, st, 2):
                a('v_pk_add_f32 v[%d:%d], v[%d:%d], v[%d:%d]' % (y + k, y + k + 1, y + k, y + k + 1, y + k + st, y + k + st + 1))
    for k in range(4):
        a('v_permlane32_swap_b32 v%d, v%d' % (Y + k, Y + 16 + k))
    for k in range(4):
        a('v_add_f32 v%d, v%d, v%d' % (Y + k, Y + k, Y + 16 + k))
    for k in range(2):
        a('v_permlane16_swap_b32 v%d, v%d' % (Y + k, Y + 2 + k))
    for k in range(2):
        a('v_add_f32 v%d, v%d, v%d' % (Y + k, Y + k, Y + 2 + k))
    for k in range(2):
        a('v_add_f32_dpp v%d, v%d, v%d row_ror:8 row_mask:0xf bank_mask:0xf' % (Y + k, Y + k, Y + k))
    a('v_cvt_pk_bf16_f32 v8, v%d, v%d' % (Y, Y + 1))
    a('s_mov_b64 exec, s[%d:%d]' % (S_MK3, S_MK3 + 1))
    a('buffer_store_dword v8, v5, %s, 0 offen%s' % (srd(SRD_C), G.PFL[o.ofl]))
    a('s_mov_b64 exec, -1')
    g.end()


def c_svc(g):
    a, o = g.a, g.o
    vm = VM(a)
    g.sec('CSVC')
    a.label('L_CSVC')
    g.common(True)
    sS, sOff, sBi = S_T, S_T + 3, S_T + 4
    VT = 6
    ST3, GQ = 32, 96
    T = 160
    a('s_setprio 3')
    a('s_sub_u32 s%d, s%d, 8' % (sS, S_WAVE))
    ci(a, sBi)
    a('v_lshlrev_b32 v2, 4, v1')
    a('s_barrier')
    g.touch(9, 'CR')
    g.touch(10, 'CR2')
    L0 = a.uniq('C8')
    a('s_cmp_lg_u32 s%d, 0' % sS)
    a('s_cbranch_scc1 %s' % L0)
    a('s_sleep %d' % o.csl)
    if o.tlb & 4:
        mk_srd(a, SRD_C, P_OUT, 8192)
        a('v_mov_b32 v8, 0')
        a('s_lshl_b32 s7, s%d, 15' % sBi)
        a('s_add_u32 s7, s7, 0x%x' % G.WS_CTX)
        a('s_mov_b64 exec, 1')
        a('buffer_load_dword v9, v8, %s, 0 offen nt' % srd(SRD_C))
        if o.tlb & 8:
            a('buffer_load_dword v10, v8, %s, s7 offen nt' % srd(SRD_WS))
        a('s_mov_b64 exec, -1')
    g.nonce_get(vm, T)
    g.nonce_share(T)
    a.label(L0)
    a('s_lshr_b32 s7, s%d, 4' % sBi)
    a('s_lshl_b32 s7, s7, 16')
    a('s_lshl_b32 s%d, s%d, 14' % (sOff, sS))
    a('s_add_u32 s7, s7, s%d' % sOff)
    a('s_add_u32 s7, s7, 0x%x' % G.WS_QABS)
    a('v_lshl_add_u32 v4, v1, 4, s7')
    a('s_and_b32 s7, s%d, 1' % sS)
    a('s_lshl_b32 s7, s7, 7')
    a('v_lshlrev_b32 v3, 3, v1')
    a('v_xor_b32 v3, s7, v3')
    a('s_lshl_b32 s7, s%d, 13' % sS)
    a('s_add_u32 s7, s7, 0x%x' % G.QST)
    a('v_add_u32 v3, s7, v3')
    if o.q3r:
        mk_srd(a, SRD_A, P_CKV, 16777216)
        a('s_lshl_b32 s7, s%d, 18' % sBi)
        a('s_lshl_b32 s%d, s%d, 10' % (S_T + 5, sS))
        a('s_add_u32 s%d, s%d, s7' % (S_T + 5, S_T + 5))
        a('s_add_u32 s%d, s%d, %d' % (S_T + 5, S_T + 5, 192 * 1024))
        a('s_lshl_b32 s7, s%d, 6' % sS)
        a('v_xor_b32 v12, s7, v2')
        for k in range(1, 4):
            a('v_xor_b32 v%d, %d, v12' % (12 + k, k << 4))
    if o.cut & 16:
        a('s_branch L_CCUT')
    g.nonce_lds(T, sleep=4)
    g.stamp(vm, 1, T)
    if o.qev:
        g.lds_wait(G.C_OK, 8, T, T + 1, sleep=2)
    a('s_sleep %d' % o.csl2)
    for k in range(1, 4):
        a('s_mov_b32 s%d, %d' % (S_T + 6 + k, 4096 * k))
    loads = ['buffer_load_dwordx4 %s, v4, %s, %s offen offset:%d sc1' % (
        vr(GQ + 4 * i, 4), srd(SRD_WS), '0' if i < 4 else 's%d' % (S_T + 6 + (i >> 2)), (i & 3) * 1024) for i in range(16)]
    if o.cpre:
        g.poll(vm, loads[:1], GQ, T, sleep=o.cpre, anyok=bool(o.cany))
    g.stamp(vm, 0, T)
    g.poll_sel(vm, loads, [GQ + 4 * i for i in range(16)], T, plain=bool(o.qpl))
    sL3 = S_T + 5

    def q3(i0, i1):
        for i in range(i0, i1):
            vm.issue('buffer_load_dwordx4 %s, v%d, %s, s%d offen nt' % (
                vr(ST3 + 4 * i, 4), 12 + (i & 3), srd(SRD_A), sL3), ('st3', i))
            a('s_addk_i32 s%d, 4096' % sL3)
    if o.q3r:
        q3(0, 8)
    for i in range(16):
        if i & 1 == 0:
            a('v_xor_b32 v%d, 0x%x, v3' % (VT + ((i >> 1) & 1), (i >> 1) << 4))
        a('ds_write_b64 v%d, %s offset:%d' % (VT + ((i >> 1) & 1), vr(GQ + 4 * i, 2), i * 512))
    a.label('L_CCUT')
    a('s_waitcnt lgkmcnt(0)')
    a('s_barrier')
    g.stamp(vm, 3, T)
    if o.q3r:
        a('s_setprio 0')
        for k in range(5):
            if k == o.q3b:
                q3(8, 16)
            a('s_barrier')
        a('s_setprio 3')
        a('s_lshl_b32 s7, s%d, 10' % sS)
        a('v_add_u32 v3, s7, v2')
        for i in range(16):
            vm.wait(('st3', i))
            a('ds_write_b128 v3, %s offset:%d' % (vr(ST3 + 4 * i, 4), i * 4096))
        a('s_waitcnt lgkmcnt(0)')
        g.stamp(vm, 4, T)
    g.end()
```

```python
import sys
import os
sys.path.insert(0, os.path.dirname(os.path.abspath(__file__)))
from asmlib import Asm, vr, sr
import struct

NAME = 'concat_heads__sliding_block_cached__compressed_kv_cla__decode'


class Opt:
    dev = 0
    hs = 0
    spin = 200000
    kd = 3
    kd1 = 4
    kn1 = 0
    rot = 0
    bd = 4
    ud = 3
    sdu = 2
    sdx = 0
    xmap = 0
    bap = 0
    noswz = 0
    rsl = 20
    xsl = 2
    hold = 1
    hx = 2
    bx = 6
    kw = 0
    kwl = 4
    knb = 0
    qb = 4
    pax = 0
    pad = 8
    pah = 1
    xdl = 3
    udl = 0
    vdl = 0
    q3r = 1
    q3b = 2
    hnt = 0
    cnt = 0
    xr = 0
    xm = 1
    pw1 = 0
    pw2 = 0
    po1 = 8
    po2 = 130
    pws = 5
    wbx = 0
    wb = 0
    ofl = 0
    tlb = 0
    tls = 16
    srot = 0
    spf = 0
    spd = 2
    pfl = 0
    lay = 1
    psl8 = 40
    dump = 0
    kdl = 5
    knl = 0
    bal = 1
    hj = 0
    vhd = 3
    cpf = 0
    n2b = 2
    n2s = 4
    n3b = 0
    q3sl = 8
    kh = 0
    qpl = 0
    qev = 21
    pw = 0
    q3p = 3
    cany = 1
    xpp = 4
    upp = 2
    rpp = 4
    pf = 0
    pfe = 0
    pfd = 8
    ndb = 16
    n3 = 0
    bd3e = 2
    swp = 0
    n2 = 8
    nb = 7
    cpre = 0
    l2 = 1
    pv = 32
    pvd = 4
    rpn = 2
    pvs = 60
    cutsl = 1
    csl2 = 1
    asl = 16
    usl = 16
    cut = 0
    q0 = 16
    qr = 2
    bu = 1
    noclr = 0
    psl = 26
    wfe = 0
    nsl = 8
    ukd = 8
    ukd1 = 8
    ukn1 = 0
    bd3 = 8
    csl = 24
    wsl = 4
    wsl2 = 4


NW = 12
NS = 11
NQ = 24

WS_QABS = 0x000000
WS_QBP = 0x040000
WS_QAP = 0x080000
WS_CHK = 0x0C0000
WS_OA = 0x0D0000
WS_MLB = 0x0E0000
WS_PH = 0x200000
WS_Y = 0x100000
WS_CTX = 0x500000
WS_TS = 0x800000
WS_HS = 0xF00000
WS_SIZE = 0x1000000

RING0 = 0
RING1 = 65536
QST = 98304
MISC = 147456
C_CLR = MISC + 0
C_Q = MISC + 4
C_ML = MISC + 8
C_O = MISC + 12
C_ATT = MISC + 16
C_UK = MISC + 20
C_OK = MISC + 24
C_OK2 = MISC + 28
C_OB = MISC + 32
C_FL = MISC + 36
C_QST = MISC + 40
C_S0 = MISC + 44
C_Q3 = MISC + 48
C_X1 = MISC + 52
C_X2 = MISC + 56
C_X3 = MISC + 60
C_PA = MISC + 64
C_PB = MISC + 68
C_QA = MISC + 72
C_N = MISC + 76
C_PUB = MISC + 88
C_PF = MISC + 92
C_VH = MISC + 96
NONCE = MISC + 80
QBUF = MISC + 256
MLBUF = MISC + 512
OBUF = MISC + 1024
PT = MISC + 2048
PHL = MISC + 4096
OHB = MISC + 8192
MLS = MISC + 2048
PBUF = MISC + 4608
TMAX = MISC + 12800
LBUF = MISC + 13312
ALPHA = MISC + 15872
MBUF = MISC + 16000
PPART = 0
OPART = 65536
LDS_BYTES = 163840

SCALE_LOG2E = 0.08838834764831845 * 1.4426950408889634


def f32bits(x):
    return struct.unpack('<I', struct.pack('<f', x))[0]


P_AX, P_K, P_V, P_WQ, P_WO, P_BX, P_CKV, P_BWQ, P_WUK, P_WUV, P_BWO, P_OUT, P_DBG, P_WS = [8 + 2 * i for i in range(14)]
S_WAVE, S_G, S_SLOT, S_H = 3, 4, 5, 6
SRD_WS, SRD_DBG = 36, 40
SRD_A, SRD_B, SRD_C, SRD_D = 44, 48, 52, 56
S_T = 60
S_SPIN = 80
S_TS = 82
S_EX = 84
S_MK = 86
S_MK2 = 88
S_MK3 = 90
S_LO, S_HI = 92, 93
S_XCC = 96
S_FAR = 97
S_NON = 94


PFL = ['', ' nt', ' sc0', ' sc1', ' sc0 sc1', ' sc0 nt', ' sc1 nt', ' sc0 sc1 nt']


class VM:
    def __init__(self, a):
        self.a = a
        self.q = []

    def issue(self, text, tag=None):
        self.a(text)
        self.q.append(tag)

    def wait(self, tag):
        if tag not in self.q:
            return
        idx = max(i for i, t in enumerate(self.q) if t == tag)
        n = len(self.q) - 1 - idx
        self.a('s_waitcnt vmcnt(%d)' % n)
        self.q = self.q[idx + 1:]

    def wait_n(self, n):
        if len(self.q) > n:
            self.a('s_waitcnt vmcnt(%d)' % n)
            self.q = self.q[len(self.q) - n:]

    def wait_all(self):
        self.a('s_waitcnt vmcnt(0)')
        self.q = []


def mk_srd(a, d, p, nbytes):
    a('s_mov_b32 s%d, s%d' % (d, p))
    a('s_and_b32 s%d, s%d, 0xffff' % (d + 1, p + 1))
    a('s_mov_b32 s%d, 0x%x' % (d + 2, nbytes))
    a('s_mov_b32 s%d, 0x20000' % (d + 3))


def srd(d):
    return 's[%d:%d]' % (d, d + 3)


class Gen:
    def __init__(self, opt):
        self.o = opt
        self.a = Asm()

    def stamp(self, vm, idx, vt):
        if not self.o.dev:
            return
        a = self.a
        a('s_memrealtime s[%d:%d]' % (S_TS, S_TS + 1))
        a('s_waitcnt lgkmcnt(0)')
        a('v_mov_b32 v%d, s%d' % (vt, S_TS))
        a('v_mov_b32 v%d, s%d' % (vt + 1, S_TS + 1))
        a('s_lshl3_add_u32 s%d, s%d, s%d' % (S_TS, S_SLOT, S_G))
        a('s_mul_i32 s%d, s%d, 12' % (S_TS, S_TS))
        a('s_add_u32 s%d, s%d, s%d' % (S_TS, S_TS, S_WAVE))
        a('s_lshl_b32 s%d, s%d, 7' % (S_TS, S_TS))
        a('s_add_u32 s%d, s%d, 0x%x' % (S_TS, S_TS, WS_TS + idx * 8))
        a('v_mov_b32 v%d, s%d' % (vt + 2, S_TS))
        a('s_mov_b64 s[%d:%d], exec' % (S_EX, S_EX + 1))
        a('s_mov_b64 exec, 1')
        vm.issue('buffer_store_dwordx2 v[%d:%d], v%d, %s, 0 offen' % (vt, vt + 1, vt + 2, srd(SRD_WS)), 'ts')
        a('s_mov_b64 exec, s[%d:%d]' % (S_EX, S_EX + 1))

    def sec(self, name, jump=False):
        if jump:
            self.a('s_branch L_%s' % name)
        self.a.raw(';@SEC %s' % name)
        if jump:
            self.a.label('L_%s' % name)

    def touch(self, wave, page):
        a = self.a
        if not self.o.lay:
            return
        a('s_cmp_eq_u32 s%d, %d' % (S_WAVE, wave))
        a('s_cbranch_scc1 LT_%s' % page)
        a.label('LR_%s' % page)

    def xkey(self, d, slot):
        a = self.a
        a('s_lshl3_add_u32 s%d, s%d, s%d' % (d, slot, S_G))
        a('s_mul_i32 s%d, s%d, %d' % (d, d, self.o.xm))
        a('s_lshl_b32 s%d, s%d, %d' % (d, d, self.o.xr))
        a('s_and_b32 s%d, s%d, 0x3ffff' % (d, d))

    def end(self, have=False):
        a = self.a
        if self.o.hs:
            a('s_mov_b64 exec, 1')
            if not have:
                a('s_memrealtime s[98:99]')
            a('s_lshl3_add_u32 s7, s%d, s%d' % (S_SLOT, S_G))
            a('s_mul_i32 s7, s7, 12')
            a('s_add_u32 s7, s7, s%d' % S_WAVE)
            a('s_lshl_b32 s7, s7, 3')
            a('s_add_u32 s7, s7, 0x%x' % WS_HS)
            a('v_mov_b32 v2, s7')
            a('s_waitcnt lgkmcnt(0)')
            a('v_mov_b32 v4, s100')
            a('v_mov_b32 v5, s98')
            a('buffer_store_dwordx2 v[4:5], v2, %s, 0 offen' % srd(SRD_WS))
        a('s_endpgm')

    def lds_signal(self, addr, va, vb):
        a = self.a
        a('v_mov_b32 v%d, 0x%x' % (va, addr))
        a('v_mov_b32 v%d, 1' % vb)
        a('s_waitcnt lgkmcnt(0)')
        a('s_mov_b64 exec, 1')
        a('ds_add_u32 v%d, v%d' % (va, vb))
        a('s_mov_b64 exec, -1')

    def lds_wait(self, addr, target, va, vb, sleep=4):
        a = self.a
        L = a.uniq('LW')
        Ld = a.uniq('LWD')
        a('v_mov_b32 v%d, 0x%x' % (va, addr))
        a('s_mov_b32 s%d, %d' % (S_SPIN, self.o.spin * 8))
        a.label(L)
        a('ds_read_b32 v%d, v%d' % (vb, va))
        a('s_waitcnt lgkmcnt(0)')
        a('v_readfirstlane_b32 s%d, v%d' % (S_T + 19, vb))
        a('s_cmp_ge_u32 s%d, %d' % (S_T + 19, target))
        a('s_cbranch_scc1 %s' % Ld)
        if sleep:
            a('s_sleep %d' % int(sleep))
        a('s_sub_u32 s%d, s%d, 1' % (S_SPIN, S_SPIN))
        a('s_cmp_lg_u32 s%d, 0' % S_SPIN)
        a('s_cbranch_scc1 %s' % L)
        a.label(Ld)

    def nonce_make(self, t):
        if self.o.noclr & 8:
            return
        a = self.a
        L = a.uniq('NM')
        a('s_lshl_b32 s7, s2, 4')
        a('s_add_u32 s7, s7, s%d' % S_WAVE)
        a('s_cmp_lg_u32 s7, %d' % (8 + (2048 if self.o.srot == 1 else 0)))
        a('s_cbranch_scc1 %s' % L)
        a('s_memrealtime s[%d:%d]' % (S_NON, S_NON + 1))
        mk_srd(a, SRD_DBG, P_DBG, 256)
        a('v_mov_b32 v%d, 0' % t)
        a('s_waitcnt lgkmcnt(0)')
        a('s_or_b32 s%d, s%d, 0x80000000' % (S_NON + 1, S_NON + 1))
        a('v_mov_b32 v%d, s%d' % (t + 2, S_NON))
        a('v_mov_b32 v%d, s%d' % (t + 3, S_NON + 1))
        a('s_mov_b64 exec, 1')
        a('buffer_store_dwordx2 v[%d:%d], v%d, %s, 0 offen sc1' % (t + 2, t + 3, t, srd(SRD_DBG)))
        a('s_mov_b64 exec, -1')
        a.label(L)

    def nonce_get(self, vm, t, sleep=4, dbl=0):
        if self.o.noclr & 8:
            return
        a = self.a
        L, Ld = a.uniq('NG'), a.uniq('NGD')
        a('v_mov_b32 v%d, 0' % t)
        a('s_mov_b32 s%d, %d' % (S_SPIN, self.o.spin))
        if dbl:
            L2 = a.uniq('NG2')
            a('s_mov_b64 exec, 1')
            a('buffer_load_dwordx2 v[%d:%d], v%d, %s, 0 offen sc1' % (t + 4, t + 5, t, srd(SRD_DBG)))
            a('s_sleep %d' % dbl)
            a('buffer_load_dwordx2 v[%d:%d], v%d, %s, 0 offen sc1' % (t + 2, t + 3, t, srd(SRD_DBG)))
            a('s_mov_b64 exec, -1')
            a('s_waitcnt vmcnt(1)')
            a('v_readfirstlane_b32 s%d, v%d' % (S_NON, t + 4))
            a('v_readfirstlane_b32 s%d, v%d' % (S_NON + 1, t + 5))
            a('s_cmp_lg_u32 s%d, 0' % (S_NON + 1))
            a('s_cbranch_scc1 %s' % Ld)
            a('s_branch %s' % L2)
        a.label(L)
        a('s_mov_b64 exec, 1')
        a('buffer_load_dwordx2 v[%d:%d], v%d, %s, 0 offen sc1' % (t + 2, t + 3, t, srd(SRD_DBG)))
        a('s_mov_b64 exec, -1')
        if dbl:
            a.label(L2)
        a('s_waitcnt vmcnt(0)')
        vm.q = []
        a('v_readfirstlane_b32 s%d, v%d' % (S_NON, t + 2))
        a('v_readfirstlane_b32 s%d, v%d' % (S_NON + 1, t + 3))
        a('s_cmp_lg_u32 s%d, 0' % (S_NON + 1))
        a('s_cbranch_scc1 %s' % Ld)
        a('s_sleep %d' % sleep)
        a('s_sub_u32 s%d, s%d, 1' % (S_SPIN, S_SPIN))
        a('s_cmp_lg_u32 s%d, 0' % S_SPIN)
        a('s_cbranch_scc1 %s' % L)
        a.label(Ld)

    def check_in(self, t):
        a = self.a
        a('s_getreg_b32 s%d, hwreg(HW_REG_XCC_ID, 0, 4)' % S_XCC)
        a('s_lshl_b32 s7, s%d, 5' % S_G)
        a('s_add_u32 s7, s7, s%d' % S_SLOT)
        a('s_lshl_b32 s7, s7, 4')
        a('s_add_u32 s7, s7, 0x%x' % WS_CHK)
        a('v_mov_b32 v%d, s7' % t)
        a('v_mov_b32 v%d, s%d' % (t + 2, S_XCC))
        a('v_mov_b32 v%d, 0' % (t + 3))
        self.set_tag(t + 2)
        a('s_mov_b64 exec, 1')
        a('buffer_store_dwordx4 v[%d:%d], v%d, %s, 0 offen' % (t + 2, t + 5, t, srd(SRD_WS)))
        a('s_mov_b64 exec, -1')

    def far_check(self, t, r):
        a = self.a
        a('v_and_b32 v%d, 31, v1' % t)
        a('s_lshl_b32 s7, s%d, 9' % S_G)
        a('s_add_u32 s7, s7, 0x%x' % WS_CHK)
        a('v_lshl_add_u32 v%d, v%d, 4, s7' % (t, t))
        a('buffer_load_dwordx4 %s, v%d, %s, 0 offen sc1' % (vr(r, 4), t, srd(SRD_WS)))
        a('s_waitcnt vmcnt(0)')
        self.bad(r, t)
        a('v_cmp_ne_u32 s[%d:%d], s%d, v%d' % (S_MK, S_MK + 1, S_XCC, r))
        a('s_or_b32 s%d, vcc_lo, s%d' % (S_FAR, S_MK))
        a('s_and_b32 s%d, s%d, 0xffff00ff' % (S_FAR, S_FAR))

    def nonce_share(self, t):
        a = self.a
        a('v_mov_b32 v%d, 0x%x' % (t, NONCE))
        a('v_mov_b32 v%d, s%d' % (t + 2, S_NON))
        a('v_mov_b32 v%d, s%d' % (t + 3, S_NON + 1))
        a('ds_write_b64 v%d, v[%d:%d]' % (t, t + 2, t + 3))
        self.lds_signal(C_N, t, t + 1)

    def nonce_lds(self, t, sleep=2):
        a = self.a
        self.lds_wait(C_N, 1, t, t + 1, sleep=sleep)
        a('v_mov_b32 v%d, 0x%x' % (t, NONCE))
        a('ds_read_b64 v[%d:%d], v%d' % (t + 2, t + 3, t))
        a('s_waitcnt lgkmcnt(0)')
        a('v_readfirstlane_b32 s%d, v%d' % (S_NON, t + 2))
        a('v_readfirstlane_b32 s%d, v%d' % (S_NON + 1, t + 3))

    def bad(self, regs, vt):
        if isinstance(regs, int):
            self.a('v_cmp_ne_u64 vcc, s[%d:%d], v[%d:%d]' % (S_NON, S_NON + 1, regs + 2, regs + 3))
        else:
            self.any_sentinel(regs, vt)

    def set_tag(self, r):
        self.a('v_mov_b32 v%d, s%d' % (r + 2, S_NON))
        self.a('v_mov_b32 v%d, s%d' % (r + 3, S_NON + 1))

    def unpack4(self, dst, src):
        a = self.a
        for k in range(2):
            a('v_lshlrev_b32 v%d, 16, v%d' % (dst + 2 * k, src + k))
            a('v_and_b32 v%d, 0xffff0000, v%d' % (dst + 2 * k + 1, src + k))

    def poll(self, vm, loads, regs, vt, sleep=1, first=None, anyok=False):
        a = self.a
        L, L2, Ld = a.uniq('PO'), a.uniq('PO2'), a.uniq('POD')
        if first:
            for t in loads:
                a(t)
            first()
            a('s_mov_b32 s%d, %d' % (S_SPIN, self.o.spin))
            a('s_branch %s' % L2)
        else:
            a('s_mov_b32 s%d, %d' % (S_SPIN, self.o.spin))
        a.label(L)
        for t in loads:
            a(t)
        a.label(L2)
        a('s_waitcnt vmcnt(0)')
        vm.q = []
        self.bad(regs, vt)
        if anyok:
            a('s_cmp_lg_u64 vcc, -1')
            a('s_cbranch_scc1 %s' % Ld)
        else:
            a('s_cbranch_vccz %s' % Ld)
        if sleep:
            a('s_sleep %d' % sleep)
        a('s_sub_u32 s%d, s%d, 1' % (S_SPIN, S_SPIN))
        a('s_cmp_lg_u32 s%d, 0' % S_SPIN)
        a('s_cbranch_scc1 %s' % L)
        a.label(Ld)

    def poll_sel(self, vm, loads, regs, vt, sleep=1, first=None, late=None, plain=False):
        a = self.a
        sM = S_T + 18
        L, Ld = a.uniq('PS'), a.uniq('PSD')
        for t in loads:
            a(t.replace(' sc1', '') if plain else t)
        if first:
            first()
        a('s_mov_b32 s%d, %d' % (S_SPIN, self.o.spin))
        a.label(L)
        a('s_waitcnt vmcnt(0)')
        vm.q = []
        a('s_mov_b32 s%d, 0' % sM)
        for k, (t, r) in enumerate(zip(loads, regs)):
            Ls = a.uniq('PSS')
            self.bad(r, vt)
            a('s_cbranch_vccz %s' % Ls)
            a(t)
            a('s_mov_b32 s%d, 1' % sM)
            a.label(Ls)
        a('s_cmp_eq_u32 s%d, 0' % sM)
        a('s_cbranch_scc1 %s' % Ld)
        if sleep > 1:
            a('s_sleep %d' % sleep)
        if late:
            Ll = a.uniq('PSL')
            a('s_cmp_lg_u32 s%d, %d' % (S_SPIN, self.o.spin - 16))
            a('s_cbranch_scc1 %s' % Ll)
            late()
            a.label(Ll)
        a('s_sub_u32 s%d, s%d, 1' % (S_SPIN, S_SPIN))
        a('s_cmp_lg_u32 s%d, 0' % S_SPIN)
        a('s_cbranch_scc1 %s' % L)
        a('s_waitcnt vmcnt(0)')
        a.label(Ld)

    def poll_pipe(self, vm, mk_loads, bufs, done, gap=2):
        a = self.a
        L, Ld = a.uniq('PP'), a.uniq('PPD')
        n = len(mk_loads(bufs[0])[0])
        for r in bufs:
            for t in mk_loads(r)[0]:
                a(t)
            if gap:
                a('s_sleep %d' % gap)
        a('s_mov_b32 s%d, %d' % (S_SPIN, self.o.spin))
        a.label(L)
        outs = []
        for r in bufs:
            loads, gran = mk_loads(r)
            Lo = a.uniq('PPO')
            outs.append(Lo)
            a('s_waitcnt vmcnt(%d)' % (n * (len(bufs) - 1)))
            for k, g in enumerate(gran):
                if k == 0:
                    a('v_cmp_ne_u64 vcc, s[%d:%d], v[%d:%d]' % (S_NON, S_NON + 1, g + 2, g + 3))
                else:
                    a('v_cmp_ne_u64 s[%d:%d], s[%d:%d], v[%d:%d]' % (S_EX, S_EX + 1, S_NON, S_NON + 1, g + 2, g + 3))
                    a('s_or_b64 vcc, vcc, s[%d:%d]' % (S_EX, S_EX + 1))
            a('s_cmp_eq_u64 vcc, 0')
            a('s_cbranch_scc1 %s' % Lo)
            for t in loads:
                a(t)
        a('s_sub_u32 s%d, s%d, 1' % (S_SPIN, S_SPIN))
        a('s_cmp_lg_u32 s%d, 0' % S_SPIN)
        a('s_cbranch_scc1 %s' % L)
        for i, (r, Lo) in enumerate(zip(bufs, outs)):
            a.label(Lo)
            done(r)
            if i + 1 < len(bufs):
                a('s_branch %s' % Ld)
        a.label(Ld)
        vm.q = ['x'] * (n * len(bufs))

    def add2(self, d, x, y):
        for k in range(2):
            self.a('v_add_f32 v%d, v%d, v%d' % (d + k, x + k, y + k))

    def pkfma_bcast(self, dst, src, e, first=False):
        a = self.a
        if e % 2 == 0:
            m1 = 'v[%d:%d]' % (e, e + 1)
            if first:
                a('v_pk_mul_f32 v[%d:%d], v[%d:%d], %s op_sel_hi:[1,0]' % (dst, dst + 1, src, src + 1, m1))
            else:
                a('v_pk_fma_f32 v[%d:%d], v[%d:%d], %s, v[%d:%d] op_sel_hi:[1,0,1]' % (
                    dst, dst + 1, src, src + 1, m1, dst, dst + 1))
        else:
            m1 = 'v[%d:%d]' % (e - 1, e)
            if first:
                a('v_pk_mul_f32 v[%d:%d], v[%d:%d], %s op_sel:[0,1] op_sel_hi:[1,1]' % (
                    dst, dst + 1, src, src + 1, m1))
            else:
                a('v_pk_fma_f32 v[%d:%d], v[%d:%d], %s, v[%d:%d] op_sel:[0,1,0] op_sel_hi:[1,1,1]' % (
                    dst, dst + 1, src, src + 1, m1, dst, dst + 1))

    def unpack8(self, dst, src):
        a = self.a
        for k in range(4):
            a('v_lshlrev_b32 v%d, 16, v%d' % (dst + 2 * k, src + k))
            a('v_and_b32 v%d, 0xffff0000, v%d' % (dst + 2 * k + 1, src + k))

    def any_sentinel(self, regs, vt):
        a = self.a
        regs = list(regs)
        a('v_max_u32 v%d, v%d, v%d' % (vt, regs[0], regs[1]))
        i = 2
        while i + 1 < len(regs):
            a('v_max3_u32 v%d, v%d, v%d, v%d' % (vt, vt, regs[i], regs[i + 1]))
            i += 2
        if i < len(regs):
            a('v_max_u32 v%d, v%d, v%d' % (vt, vt, regs[i]))
        a('v_cmp_eq_u32 vcc, -1, v%d' % vt)

    def perm_block(self, dst, src):
        a = self.a
        for k in range(4):
            for e in range(2):
                for p in range(4):
                    a('v_perm_b32 v%d, v%d, v%d, s%d' % (dst + 4 * (2 * k + e) + p, src + 4 * (2 * p + 1) + k,
                                                        src + 4 * (2 * p) + k, S_HI if e else S_LO))

    def row_sum(self, regs, tmp):
        a = self.a
        for sw in ('v_permlane32_swap_b32', 'v_permlane16_swap_b32'):
            for i, r in enumerate(regs):
                a('v_mov_b32 v%d, v%d' % (tmp + i, r))
            for i, r in enumerate(regs):
                a('%s v%d, v%d' % (sw, r, tmp + i))
            for i, r in enumerate(regs):
                a('v_add_f32 v%d, v%d, v%d' % (r, r, tmp + i))

    def entry(self):
        a = self.a
        a('s_load_dwordx16 s[8:23], s[0:1], 0')
        a('s_load_dwordx8 s[24:31], s[0:1], 64')
        a('s_load_dwordx4 s[32:35], s[0:1], 96')
        if self.o.hs:
            a('s_memrealtime s[100:101]')
        a('v_lshrrev_b32 v1, 6, v0')
        a('s_and_b32 s%d, s2, 7' % S_G)
        a('v_readfirstlane_b32 s%d, v1' % S_WAVE)
        a('s_lshr_b32 s%d, s2, 3' % S_SLOT)
        if self.o.xmap:
            a('s_lshr_b32 s%d, s2, 5' % S_G)
            a('s_and_b32 s%d, s2, 31' % S_SLOT)
        a('v_and_b32 v1, 63, v0')
        a('s_and_b32 s7, s%d, 3' % S_SLOT)
        a('s_lshl2_add_u32 s%d, s%d, s7' % (S_H, S_G))
        a('s_cmp_ge_u32 s%d, 32' % S_SLOT if not self.o.xmap else 's_cmp_ge_u32 s2, 256')
        a('s_cbranch_scc1 L_END0')
        if self.o.srot == 1:
            a('s_xor_b32 s%d, s%d, 16' % (S_SLOT, S_SLOT))
        if self.o.srot == 2:
            a('s_add_u32 s7, s%d, 8' % S_SLOT)
            a('s_cmp_ge_u32 s%d, 8' % S_SLOT)
            a('s_cselect_b32 s%d, s7, s%d' % (S_SLOT, S_SLOT))
            a('s_sub_u32 s7, s%d, 24' % S_SLOT)
            a('s_cmp_ge_u32 s%d, 32' % S_SLOT)
            a('s_cselect_b32 s%d, s7, s%d' % (S_SLOT, S_SLOT))
        LA = a.uniq('EA')
        a('s_cmp_ge_u32 s%d, 16' % S_SLOT)
        a('s_cbranch_scc1 %s' % LA)
        LC = a.uniq('EC')
        a('s_cmp_ge_u32 s%d, 8' % S_SLOT)
        a('s_cbranch_scc1 %s' % LC)
        a('s_cmp_ge_u32 s%d, 8' % S_WAVE)
        a('s_cbranch_scc1 L_W2')
        a('s_cmp_ge_u32 s%d, 4' % S_WAVE)
        a('s_cbranch_scc1 L_W1')
        a('s_branch L_W')
        a.label(LC)
        a('s_cmp_ge_u32 s%d, 8' % S_WAVE)
        a('s_cbranch_scc1 L_CSVC')
        a('s_branch L_C')
        a.label(LA)
        a('s_cmp_eq_u32 s%d, 11' % S_WAVE)
        a('s_cbranch_scc1 L_ASVC')
        self.sec('AA', True)

    def post(self):
        self.a('s_mov_b32 s%d, 0x05040100' % S_LO)
        self.a('s_mov_b32 s%d, 0x07060302' % S_HI)
        mk_srd(self.a, SRD_WS, P_WS, WS_SIZE)
        mk_srd(self.a, SRD_DBG, P_DBG, 256)

    def common(self, zero=False, split=False):
        a = self.a
        if split:
            return
        if zero:
            L0 = a.uniq('Z')
            a('s_cmp_lg_u32 s%d, 11' % S_WAVE)
            a('s_cbranch_scc1 %s' % L0)
            a('v_lshlrev_b32 v2, 2, v1')
            a('v_add_u32 v2, 0x%x, v2' % MISC)
            a('v_mov_b32 v3, 0')
            a('ds_write_b32 v2, v3')
            a.label(L0)
        a('s_waitcnt lgkmcnt(0)')
        self.post()

    def a_att(self):
        a, o = self.a, self.o
        vm = VM(a)
        KR, VRING, SC, QV, ACC, TMP = 32, 128, 8, 2, 152, 160
        VK = 6
        sOffK, sOffV, sBias, sLast, sC = [S_T + i for i in range(5)]
        self.common(split=True)
        BU = o.bu
        NB = NQ // BU
        sPos = S_T + 5
        NV = NQ - o.hj

        sKey = S_T + 8

        def setup():
            if o.xr:
                self.xkey(sKey, S_SLOT)
            a('s_lshr_b32 s7, s%d, 2' % S_SLOT)
            a('s_sub_u32 s7, s7, 4')
            a('s_lshl_b32 s7, s7, 5')
            a('s_add_u32 s7, s7, s%d' % S_H)
            a('s_lshl_b32 s7, s7, 20')
            a('s_add_u32 s7, s7, 0xC0000')
            a('v_lshlrev_b32 v%d, 4, v1' % VK)
            a('v_add_u32 v%d, s7, v%d' % (VK, VK))
            if not o.bal:
                a('s_add_u32 s%d, s%d, 3' % (sLast, S_WAVE))
                a('s_cmp_ge_u32 s%d, %d' % (sLast, NS))
                a('s_cselect_b32 s7, %d, 0' % NS)
                a('s_sub_u32 s%d, s%d, s7' % (sBias, sLast))
                a('s_mov_b32 s%d, s%d' % (sPos, sBias))
                assert o.hj == 0 or (BU == 1 and not o.rot)
                a('s_mul_i32 s7, s2, %d' % o.rot)
                a('s_add_u32 s7, s7, s%d' % sBias)
                a('s_mul_i32 s7, s7, %d' % (1024 * BU))
                a('s_and_b32 s%d, s7, 0x3ffff' % sOffK)
                a('s_mov_b32 s%d, s%d' % (sOffV, sOffK))
                nlast = 256 // BU - NS * (NB - 1)
                a('s_add_u32 s%d, s%d, %d' % (sLast, sOffK, (NB - 1) * NS * 1024 * BU))
                a('s_and_b32 s%d, s%d, 0x3ffff' % (sLast, sLast))
                a('s_cmp_lt_u32 s%d, %d' % (sBias, nlast))
                a('s_cselect_b32 s%d, s%d, 0x40000000' % (sLast, sLast))
                a('s_cselect_b32 s%d, 0, 0xff800000' % sBias)
            a('s_mov_b32 s%d, 0x%x' % (sC, f32bits(SCALE_LOG2E)))

            if o.bx:
                s0, ns = (3, 5) if o.bx == 6 else (6, 2)
                a('s_lshl_b32 s%d, s%d, 12' % (sOffK, S_WAVE))
                a('s_mov_b32 s%d, s%d' % (sOffV, sOffK))
                a('s_cmp_ge_u32 s%d, 8' % S_WAVE)
                a('s_cselect_b32 s7, %d, 0' % ns)
                a('s_sub_u32 s7, s%d, s7' % S_WAVE)
                a('s_mul_i32 s7, s7, %d' % (o.bx * 1024))
                a('s_add_u32 s%d, s7, %d' % (sLast, 220 * 1024))
                a('s_add_u32 s%d, s%d, 4096' % (sPos, sLast))
                a('s_sub_u32 s7, s%d, %d' % (S_WAVE, s0))
                a('s_cmp_lt_u32 s7, %d' % ns)
                a('s_cselect_b32 s%d, 0xff800000, 0' % sBias)
            elif o.bal:
                assert BU == 1 and o.hj != 1 and not o.rot
                a('s_lshl_b32 s%d, s%d, 10' % (sOffK, S_WAVE))
                a('s_mov_b32 s%d, s%d' % (sOffV, sOffK))
                a('s_cmp_ge_u32 s%d, %d' % (S_WAVE, 4 if o.pax else 8))
                a('s_cselect_b32 s7, 4096, 0')
                a('s_sub_u32 s%d, s%d, s7' % (sLast, sOffK))
                a('s_add_u32 s%d, s%d, %d' % (sLast, sLast, 242 * 1024))
                a('s_add_u32 s%d, s%d, 7168' % (sPos, sLast))
                a('s_and_b32 s7, s%d, 12' % S_WAVE)
                a('s_cmp_eq_u32 s7, %d' % (0 if o.pax else 4))
                a('s_cselect_b32 s%d, 0xff800000, 0' % sBias)

        def step(s):
            a('s_add_u32 s%d, s%d, %d' % (s, s, NS * 1024 * BU))
            if o.rot:
                a('s_and_b32 s%d, s%d, 0x3ffff' % (s, s))

        def ldk(jb):
            if o.bal:
                so = (sLast, sPos)[jb] if jb < 2 else sOffK
                if o.xr:
                    a('s_xor_b32 s7, s%d, s%d' % (so, sKey))
                    so = 7
                vm.issue('buffer_load_dwordx4 %s, v%d, %s, s%d offen nt' % (vr(KR + 4 * jb, 4), VK, srd(SRD_A), so), ('K', jb))
                if 2 <= jb < NB - 1:
                    step(sOffK)
                if jb == 1:
                    a.label('L_AK2')
                return
            so = sLast if jb == NB - 1 else sOffK
            for j in range(jb * BU, jb * BU + BU):
                vm.issue('buffer_load_dwordx4 %s, v%d, %s, s%d offen offset:%d nt' % (
                    vr(KR + 4 * j, 4), VK, srd(SRD_A), so, (j % BU) * 1024), ('K', j))
            if jb < NB - 2:
                step(sOffK)

        RV = 4 if BU == 4 else 6

        def vreg(j):
            return VRING + 4 * j if j < RV else KR + 4 * (j - RV)

        nv = [0]

        def ldv():
            jb = nv[0] // BU
            vm.wait_n((o.kdl if jb >= NB - o.knl else o.kd) - BU)
            if o.bal:
                so = (sLast, sPos)[jb - (NB - 2)] if jb >= NB - 2 else sOffV
                if o.xr:
                    a('s_xor_b32 s7, s%d, s%d' % (so, sKey))
                    so = 7
                vm.issue('buffer_load_dwordx4 %s, v%d, %s, s%d offen nt' % (vr(vreg(jb), 4), VK, srd(SRD_B), so), ('V', jb))
                if jb < NB - 3:
                    step(sOffV)
                nv[0] += 1
                return
            so = sLast if jb == NB - 1 else sOffV
            for j in range(jb * BU, jb * BU + BU):
                vm.issue('buffer_load_dwordx4 %s, v%d, %s, s%d offen offset:%d nt' % (
                    vr(vreg(j), 4), VK, srd(SRD_B), so, (j % BU) * 1024), ('V', j))
            if jb < NB - 2:
                step(sOffV)
            nv[0] += BU

        LK, LJ = a.uniq('AK'), a.uniq('AJ')
        RAW, XR, OP, D = 128, 160, 96, 64
        sOff = S_T + 6
        def rest():
            self.post()
            mk_srd(a, SRD_A, P_K, 134217728)
            mk_srd(a, SRD_B, P_V, 134217728)
            setup()
        a('s_cmp_ge_u32 s%d, %d' % (S_WAVE, 4 if o.pax else 8))
        a('s_cbranch_scc1 %s' % LK)
        a('s_and_b32 s7, s%d, 12' % S_SLOT)
        a('s_and_b32 s%d, s%d, 3' % (sOff, S_WAVE))
        a('s_add_u32 s7, s7, s%d' % sOff)
        a('v_lshrrev_b32 v2, 4, v1')
        a('v_lshlrev_b32 v3, 16, v2')
        a('v_and_b32 v4, 15, v1')
        a('v_lshl_add_u32 v3, v4, 4, v3')
        a('s_lshl_b32 s%d, s7, 18' % sOff)
        a('s_lshl_b32 s%d, s%d, 8' % (sOff + 1, S_H))
        a('s_add_u32 s%d, s%d, s%d' % (sOff, sOff, sOff + 1))
        LP = a.uniq('AP')
        a('s_cmp_lt_u32 s%d, 4' % S_WAVE)
        a('s_cbranch_scc1 %s' % LP)
        if o.hx:
            a('s_xor_b32 s%d, s%d, %d' % (sOff, sOff, o.hx << 8))
        a('s_barrier')
        a('s_sleep %d' % o.psl)
        a.label(LP)
        a('s_cmp_lt_u32 s%d, 4' % S_WAVE)
        a('s_waitcnt lgkmcnt(0)')
        a('s_cselect_b32 s%d, s%d, s%d' % (S_T + 12, P_BWQ, P_WQ))
        a('s_cselect_b32 s%d, s%d, s%d' % (S_T + 13, P_BWQ + 1, P_WQ + 1))
        a('s_cselect_b32 s%d, s%d, s%d' % (S_T + 10, P_BX, P_AX))
        a('s_cselect_b32 s%d, s%d, s%d' % (S_T + 11, P_BX + 1, P_AX + 1))
        mk_srd(a, SRD_D, S_T + 12, 4194304)
        for i in range(8):
            vm.issue('buffer_load_dwordx4 %s, v3, %s, s%d offen nt' % (vr(RAW + 4 * i, 4), srd(SRD_D), sOff), 'p')
            a('s_addk_i32 s%d, 8192' % sOff)
        self.sec('AB', True)
        a('v_bfe_u32 v4, v1, 2, 2')
        a('v_lshlrev_b32 v4, 10, v4')
        a('v_lshl_add_u32 v4, v2, 4, v4')
        a('s_lshl_b32 s%d, s7, 6' % (sOff + 1))
        mk_srd(a, SRD_C, S_T + 10, 4096)
        vm.issue('buffer_load_dwordx4 %s, v4, %s, s%d offen' % (vr(XR, 4), srd(SRD_C), sOff + 1), 'p')
        rest()
        LP = a.uniq('AP')
        a('s_cmp_ge_u32 s%d, 4' % S_WAVE)
        a('s_cbranch_scc1 %s' % LP)
        a('s_barrier')
        a.label(LP)
        a('s_lshl_b32 s7, s%d, 11' % S_WAVE)
        a('s_add_u32 s7, s7, 0x%x' % PPART)
        a('v_lshl_add_u32 v2, v1, 5, s7')
        a('s_cmp_lt_u32 s%d, 4' % S_WAVE)
        a('s_cselect_b32 s7, 0x%x, 0x%x' % (C_PB - MISC, C_PA - MISC))
        a('s_add_u32 s7, s7, 0x%x' % MISC)
        a('v_mov_b32 v3, s7')
        a('v_mov_b32 v4, 1')
        vm.wait_all()
        self.perm_block(OP, RAW)
        for c in range(8):
            a('v_mfma_f32_16x16x32_bf16 %s, %s, %s, 0' % (vr(D + 4 * c, 4), vr(XR, 4), vr(OP + 4 * c, 4)))
        for c in range(8):
            a('v_mov_b32 v%d, v%d' % (RAW + c, D + 4 * c))
        a('ds_write_b128 v2, %s' % vr(RAW, 4))
        a('ds_write_b128 v2, %s offset:16' % vr(RAW + 4, 4))
        a('s_waitcnt lgkmcnt(0)')
        a('s_mov_b64 exec, 1')
        a('ds_add_u32 v3, v4')
        a('s_mov_b64 exec, -1')
        a('s_branch %s' % LJ)
        a.label(LK)
        a('s_waitcnt lgkmcnt(0)')
        rest()
        a('s_barrier')
        self.touch(8, 'AR')
        self.touch(9, 'AR2')
        a('s_sleep %d' % o.psl8)
        a.label(LJ)
        self.sec('AR', True)
        self.stamp(vm, 0, TMP)
        if o.kh:
            self.lds_wait(C_OK, o.kh, TMP, TMP + 1, sleep=1)
        if o.bx:
            self.a_stream2(vm)
            return
        nk = [0]

        def nxt():
            if nk[0] < NB:
                vm.wait_n((o.kd1 if nk[0] < o.kn1 else o.kd) - BU)
                ldk(nk[0])
                nk[0] += 1
            else:
                ldv()

        def qk(js):
            vm.wait(('K', js[-1]))
            for k in range(4):
                for j in js:
                    a('v_dot2_f32_bf16 v%d, v%d, v%d, %s' % (SC + j, KR + 4 * j + k, QV + k,
                                                            '0' if k == 0 else 'v%d' % (SC + j)))
            for sh in (8, 4, 2, 1):
                for j in js:
                    a('v_add_f32_dpp v%d, v%d, v%d row_ror:%d row_mask:0xf bank_mask:0xf' % (
                        SC + j, SC + j, SC + j, sh))

        if o.bal:
            for k in range(8):
                a('v_mov_b32 v%d, 0' % (KR + k))
            a('s_cmp_lg_u32 s%d, 0' % sBias)
            a('s_cbranch_scc1 L_AK2')
        while nk[0] * BU + nv[0] < o.q0:
            nxt()
        self.stamp(vm, 1, TMP)
        self.lds_wait(C_Q, 1, TMP, TMP + 1)
        a('v_and_b32 v%d, 15, v1' % TMP)
        a('v_lshlrev_b32 v%d, 4, v%d' % (TMP, TMP))
        a('v_add_u32 v%d, 0x%x, v%d' % (TMP, QBUF, TMP))
        a('ds_read_b128 %s, v%d' % (vr(QV, 4), TMP))
        a('s_waitcnt lgkmcnt(0)')
        self.stamp(vm, 2, TMP)
        done = 0
        while done < NQ:
            landed = (nk[0] * BU + nv[0]) - o.kd
            if done + 4 <= landed or nv[0] >= RV + done:
                qk(list(range(done, done + 4)))
                done += 4
                for _ in range(max(1, o.qr // BU) if BU < 4 else (done // 4) & 1):
                    if nv[0] + BU <= RV + done and nv[0] < NV:
                        nxt()
            else:
                nxt()
        for j in ((0, 1) if o.bal else range(NQ - BU, NQ)):
            a('v_add_f32 v%d, s%d, v%d' % (SC + j, sBias, SC + j))
        M, M2 = TMP, TMP + 1
        a('v_max3_f32 v%d, v%d, v%d, v%d' % (M, SC, SC + 1, SC + 2))
        j = 3
        while j + 1 < NQ:
            a('v_max3_f32 v%d, v%d, v%d, v%d' % (M, M, SC + j, SC + j + 1))
            j += 2
        if j < NQ:
            a('v_max_f32 v%d, v%d, v%d' % (M, M, SC + j))
        for sw in ('v_permlane32_swap_b32', 'v_permlane16_swap_b32'):
            a('v_mov_b32 v%d, v%d' % (M2, M))
            a('%s v%d, v%d' % (sw, M, M2))
            a('v_max_f32 v%d, v%d, v%d' % (M, M, M2))
        a('v_mul_f32 v%d, s%d, v%d' % (M, sC, M))
        for j in range(NQ):
            a('v_fma_f32 v%d, v%d, s%d, -v%d' % (SC + j, SC + j, sC, M))
        for j in range(NQ):
            a('v_exp_f32 v%d, v%d' % (SC + j, SC + j))
        if BU < 4:
            ldv()
        L, L2 = TMP + 2, TMP + 3
        a('v_add_f32 v%d, v%d, v%d' % (L, SC, SC + 1))
        a('v_add_f32 v%d, v%d, v%d' % (L2, SC + 2, SC + 3))
        for j in range(4, NQ, 2):
            a('v_add_f32 v%d, v%d, v%d' % (L, L, SC + j))
            a('v_add_f32 v%d, v%d, v%d' % (L2, L2, SC + j + 1))
        a('v_add_f32 v%d, v%d, v%d' % (L, L, L2))
        a('v_mov_b32 v%d, v%d' % (L2, L))
        a('v_permlane32_swap_b32 v%d, v%d' % (L, L2))
        a('v_add_f32 v%d, v%d, v%d' % (L, L, L2))
        a('v_mov_b32 v%d, v%d' % (L2, L))
        a('v_permlane16_swap_b32 v%d, v%d' % (L, L2))
        a('v_add_f32 v%d, v%d, v%d' % (M + 1, L, L2))
        a('s_lshl_b32 s7, s%d, 3' % S_WAVE)
        a('s_add_u32 s7, s7, 0x%x' % MLBUF)
        a('v_mov_b32 v%d, s7' % (TMP + 4))
        a('ds_write_b64 v%d, v[%d:%d]' % (TMP + 4, M, M + 1))
        if o.hj and o.bal:
            a('s_lshl_b32 s7, s%d, 4' % S_WAVE)
            a('s_add_u32 s7, s7, 0x%x' % PT)
            a('v_lshrrev_b32 v%d, 4, v1' % (TMP + 6))
            a('v_lshl_add_u32 v%d, v%d, 2, s7' % (TMP + 5, TMP + 6))
            for r in range(o.hj - 2):
                a('ds_write_b32 v%d, v%d offset:%d' % (TMP + 5, SC + NQ - (o.hj - 2) + r, NS * 16 * r))
            a('s_lshr_b32 s7, s%d, 6' % sLast)
            a('s_add_u32 s7, s7, 0x%x' % (PT + 16 * (NS * (o.hj - 2) - 242)))
            a('s_cmp_lg_u32 s%d, 0' % sBias)
            a('s_cselect_b32 s7, 0x%x, s7' % (PT + 16 * 56))
            a('v_lshl_add_u32 v%d, v%d, 2, s7' % (TMP + 5, TMP + 6))
            for j in range(2):
                a('ds_write_b32 v%d, v%d offset:%d' % (TMP + 5, SC + j, 7 * 16 * j))
        elif o.hj:
            a('s_lshl_b32 s7, s%d, 4' % sPos)
            a('s_add_u32 s7, s7, 0x%x' % PT)
            a('v_lshrrev_b32 v%d, 4, v1' % (TMP + 5))
            a('v_lshl_add_u32 v%d, v%d, 2, s7' % (TMP + 5, TMP + 5))
            for jj in range(o.hj):
                a('ds_write_b32 v%d, v%d offset:%d' % (TMP + 5, SC + NV + jj, NS * 16 * jj))
        self.lds_signal(C_ML, TMP + 4, TMP + 5)
        VO = QV
        a('v_and_b32 v%d, 15, v1' % VO)
        a('v_lshlrev_b32 v%d, 5, v%d' % (VO, VO))
        a('v_bfe_u32 v%d, v1, 5, 1' % (VO + 1))
        a('v_lshl_add_u32 v%d, v%d, 4, v%d' % (VO, VO + 1, VO))
        a('v_bfe_u32 v%d, v1, 4, 1' % (VO + 1))
        a('v_lshl_add_u32 v%d, v%d, 3, v%d' % (VO, VO + 1, VO))
        a('s_lshl_b32 s7, s%d, 9' % S_WAVE)
        a('s_add_u32 s7, s7, 0x%x' % OPART)
        a('v_add_u32 v%d, s7, v%d' % (VO, VO))
        self.stamp(vm, 3, TMP)
        def pv(j):
            vm.wait(('V', j))
            self.unpack8(TMP, vreg(j))
            for k in range(4):
                self.pkfma_bcast(ACC + 2 * k, TMP + 2 * k, SC + ((j + 2) % NQ if o.bal else j), first=(j == 0))
        j = 0
        while j < NV:
            if o.bal and not o.hj and nv[0] == NV - 2:
                LL = a.uniq('AL')
                a('s_cmp_eq_u32 s%d, 0' % sBias)
                a('s_cbranch_scc1 %s' % LL)
                keep = list(vm.q)
                for jj in range(j, NV - 2):
                    pv(jj)
                a('s_branch L_AFIN')
                vm.q = keep
                a.label(LL)
            if nv[0] < NV:
                ldv()
                n = min(2 * BU, nv[0] - len([t for t in vm.q if t != 'ts']) - j)
            else:
                n = NV - j
            for _ in range(max(n, 0)):
                pv(j)
                j += 1
        a.label('L_AFIN')
        a('s_nop 1')
        self.stamp(vm, 4, TMP)
        for k in range(4):
            a('v_permlane32_swap_b32 v%d, v%d' % (ACC + k, ACC + k + 4))
        for k in range(4):
            a('v_add_f32 v%d, v%d, v%d' % (ACC + k, ACC + k, ACC + k + 4))
        for k in range(2):
            a('v_permlane16_swap_b32 v%d, v%d' % (ACC + k, ACC + k + 2))
        for k in range(2):
            a('v_add_f32 v%d, v%d, v%d' % (ACC + k, ACC + k, ACC + k + 2))
        a('ds_write_b64 v%d, v[%d:%d]' % (VO, ACC, ACC + 1))
        a('s_waitcnt lgkmcnt(0)')
        if o.hs:
            a('s_memrealtime s[98:99]')
        a('s_barrier')
        self.stamp(vm, 5, TMP)
        self.end(have=True)

    def a_stream2(self, vm):
        a, o = self.a, self.o
        X = o.bx
        N = 20 + X
        SC, QV, ACC, TMP, VK = 8, 2, 152, 160, 6
        KR = SC + N
        assert KR % 2 == 0 and KR + 4 * N <= ACC
        sOffK, sOffV, sBias, sLast, sC, sPos = [S_T + i for i in range(6)]
        kb = [list(range(X))] + [list(range(X + 4 * r, X + 4 * r + 4)) for r in range(5)]
        vb = kb[1:] + kb[:1]
        vorder = [j for b in vb for j in b]
        st = {'k': 0, 'v': 0, 'nv': 0}

        def burst(slots, regs, sr, soff, tag, last):
            vm.wait_n(o.kwl if last else o.kw)
            for i, j in enumerate(slots):
                so = soff if j >= X else (sLast if i < 4 else sPos)
                vm.issue('buffer_load_dwordx4 %s, v%d, %s, s%d offen offset:%d nt' % (
                    vr(regs[i], 4), VK, srd(sr), so, (i & 3) * 1024), (tag, j))
            if slots[0] >= X:
                a('s_add_u32 s%d, s%d, %d' % (soff, soff, NS * 4096))

        def ldk():
            b = kb[st['k']]
            burst(b, [KR + 4 * j for j in b], SRD_A, sOffK, 'K', False)
            st['k'] += 1
            if st['k'] == 1:
                a.label('L_AK2')

        def ldv():
            b = vb[st['v']]
            burst(b, [KR + 4 * (st['nv'] + i) for i in range(len(b))], SRD_B, sOffV, 'V', st['v'] >= len(vb) - o.knb)
            st['v'] += 1
            st['nv'] += len(b)

        def qk(js):
            vm.wait(('K', js[-1]))
            for k in range(4):
                for j in js:
                    a('v_dot2_f32_bf16 v%d, v%d, v%d, %s' % (SC + j, KR + 4 * j + k, QV + k,
                                                            '0' if k == 0 else 'v%d' % (SC + j)))
            for sh in (8, 4, 2, 1):
                for j in js:
                    a('v_add_f32_dpp v%d, v%d, v%d row_ror:%d row_mask:0xf bank_mask:0xf' % (SC + j, SC + j, SC + j, sh))
        for k in range(4 * X):
            a('v_mov_b32 v%d, 0' % (KR + k))
        a('s_cmp_lg_u32 s%d, 0' % sBias)
        a('s_cbranch_scc1 L_AK2')
        while st['k'] < o.qb:
            ldk()
        self.stamp(vm, 1, TMP)
        self.lds_wait(C_Q, 1, TMP, TMP + 1)
        a('v_and_b32 v%d, 15, v1' % TMP)
        a('v_lshlrev_b32 v%d, 4, v%d' % (TMP, TMP))
        a('v_add_u32 v%d, 0x%x, v%d' % (TMP, QBUF, TMP))
        a('ds_read_b128 %s, v%d' % (vr(QV, 4), TMP))
        a('s_waitcnt lgkmcnt(0)')
        self.stamp(vm, 2, TMP)
        g = 0
        while g < len(kb):
            n = 0
            while g < st['k'] and n < 2 and ('K', kb[g][-1]) not in vm.q:
                qk(kb[g])
                g += 1
                n += 1
            done = sum(len(b) for b in kb[:g])
            if st['k'] < len(kb):
                ldk()
            elif st['nv'] + len(vb[st['v']]) <= done and st['v'] < len(vb) - 1:
                ldv()
            elif g < len(kb):
                qk(kb[g])
                g += 1
        for j in range(X):
            a('v_add_f32 v%d, s%d, v%d' % (SC + j, sBias, SC + j))
        M, M2 = TMP, TMP + 1
        a('v_max3_f32 v%d, v%d, v%d, v%d' % (M, SC, SC + 1, SC + 2))
        j = 3
        while j + 1 < N:
            a('v_max3_f32 v%d, v%d, v%d, v%d' % (M, M, SC + j, SC + j + 1))
            j += 2
        if j < N:
            a('v_max_f32 v%d, v%d, v%d' % (M, M, SC + j))
        for sw in ('v_permlane32_swap_b32', 'v_permlane16_swap_b32'):
            a('v_mov_b32 v%d, v%d' % (M2, M))
            a('%s v%d, v%d' % (sw, M, M2))
            a('v_max_f32 v%d, v%d, v%d' % (M, M, M2))
        a('v_mul_f32 v%d, s%d, v%d' % (M, sC, M))
        for j in range(N):
            a('v_fma_f32 v%d, v%d, s%d, -v%d' % (SC + j, SC + j, sC, M))
        for j in range(N):
            a('v_exp_f32 v%d, v%d' % (SC + j, SC + j))
        L, L2 = TMP + 2, TMP + 3
        a('v_add_f32 v%d, v%d, v%d' % (L, SC, SC + 1))
        a('v_add_f32 v%d, v%d, v%d' % (L2, SC + 2, SC + 3))
        for j in range(4, N, 2):
            a('v_add_f32 v%d, v%d, v%d' % (L, L, SC + j))
            a('v_add_f32 v%d, v%d, v%d' % (L2, L2, SC + j + 1))
        a('v_add_f32 v%d, v%d, v%d' % (L, L, L2))
        a('v_mov_b32 v%d, v%d' % (L2, L))
        a('v_permlane32_swap_b32 v%d, v%d' % (L, L2))
        a('v_add_f32 v%d, v%d, v%d' % (L, L, L2))
        a('v_mov_b32 v%d, v%d' % (L2, L))
        a('v_permlane16_swap_b32 v%d, v%d' % (L, L2))
        a('v_add_f32 v%d, v%d, v%d' % (M + 1, L, L2))
        a('s_lshl_b32 s7, s%d, 3' % S_WAVE)
        a('s_add_u32 s7, s7, 0x%x' % MLBUF)
        a('v_mov_b32 v%d, s7' % (TMP + 4))
        a('ds_write_b64 v%d, v[%d:%d]' % (TMP + 4, M, M + 1))
        self.lds_signal(C_ML, TMP + 4, TMP + 5)
        VO = QV
        a('v_and_b32 v%d, 15, v1' % VO)
        a('v_lshlrev_b32 v%d, 5, v%d' % (VO, VO))
        a('v_bfe_u32 v%d, v1, 5, 1' % (VO + 1))
        a('v_lshl_add_u32 v%d, v%d, 4, v%d' % (VO, VO + 1, VO))
        a('v_bfe_u32 v%d, v1, 4, 1' % (VO + 1))
        a('v_lshl_add_u32 v%d, v%d, 3, v%d' % (VO, VO + 1, VO))
        a('s_lshl_b32 s7, s%d, 9' % S_WAVE)
        a('s_add_u32 s7, s7, 0x%x' % OPART)
        a('v_add_u32 v%d, s7, v%d' % (VO, VO))
        self.stamp(vm, 3, TMP)

        def pv(n):
            vm.wait(('V', vorder[n]))
            self.unpack8(TMP, KR + 4 * n)
            for k in range(4):
                self.pkfma_bcast(ACC + 2 * k, TMP + 2 * k, SC + vorder[n], first=(n == 0))
        n = 0
        while n < N:
            if st['v'] == len(vb) - 1:
                LL = a.uniq('AL')
                a('s_cmp_eq_u32 s%d, 0' % sBias)
                a('s_cbranch_scc1 %s' % LL)
                keep = list(vm.q)
                for m in range(n, 20):
                    pv(m)
                a('s_branch L_AFIN')
                vm.q = keep
                a.label(LL)
            if st['v'] < len(vb):
                ldv()
                while n < st['nv'] and ('V', vorder[n]) not in vm.q:
                    pv(n)
                    n += 1
            else:
                pv(n)
                n += 1
        a.label('L_AFIN')
        a('s_nop 1')
        self.stamp(vm, 4, TMP)
        for k in range(4):
            a('v_permlane32_swap_b32 v%d, v%d' % (ACC + k, ACC + k + 4))
        for k in range(4):
            a('v_add_f32 v%d, v%d, v%d' % (ACC + k, ACC + k, ACC + k + 4))
        for k in range(2):
            a('v_permlane16_swap_b32 v%d, v%d' % (ACC + k, ACC + k + 2))
        for k in range(2):
            a('v_add_f32 v%d, v%d, v%d' % (ACC + k, ACC + k, ACC + k + 2))
        a('ds_write_b64 v%d, v[%d:%d]' % (VO, ACC, ACC + 1))
        a('s_waitcnt lgkmcnt(0)')
        if o.hs:
            a('s_memrealtime s[98:99]')
        a('s_barrier')
        self.stamp(vm, 5, TMP)
        self.end(have=True)

    def a_svc(self):
        a, o = self.a, self.o
        vm = VM(a)
        self.sec('ASVC')
        a.label('L_ASVC')
        self.common(True)
        T = 100
        sB = S_T
        a('s_setprio 3')
        a('s_lshr_b32 s%d, s%d, 2' % (sB, S_SLOT))
        a('s_sub_u32 s%d, s%d, 4' % (sB, sB))
        a('s_barrier')
        if o.cut & 4:
            a('s_branch L_ACUT')
        a('s_lshl_b32 s7, s%d, 2' % S_H)
        a('s_add_u32 s7, s7, s%d' % sB)
        a('s_lshl_b32 s7, s7, 11')
        a('v_lshl_add_u32 v3, v1, 4, s7')
        a('v_add_u32 v5, 0x%x, v3' % WS_QBP)
        a('v_add_u32 v3, 0x%x, v3' % WS_QAP)
        a('s_xor_b32 s7, s%d, %d' % (S_H, o.hx))
        a('s_lshl_b32 s7, s7, 5')
        a('s_add_u32 s7, s7, s%d' % sB)
        a('s_lshl_b32 s7, s7, 8')
        a('s_add_u32 s7, s7, 0x%x' % WS_QAP)
        a('v_lshrrev_b32 v6, 4, v1')
        a('v_lshlrev_b32 v6, 11, v6')
        a('v_and_b32 v%d, 15, v1' % T)
        a('v_lshl_add_u32 v6, v%d, 4, v6' % T)
        a('v_add_u32 v6, s7, v6')
        if o.pw:
            for k in range(4):
                a('v_mov_b32 v%d, 0' % (112 + k))
            for V in (5, 6):
                for e in range(2):
                    a('buffer_store_dwordx4 v[112:115], v%d, %s, 0 offen offset:%d' % (V, srd(SRD_WS), 1024 * e))
        if o.nsl:
            a('s_sleep %d' % o.nsl)
        self.nonce_get(vm, 90, dbl=o.ndb)
        self.stamp(vm, 4, T)
        if o.cut & 64:
            a('s_branch L_ACUT')
        a('v_lshlrev_b32 v7, 5, v1')
        for r in (112, 116, 120, 124):
            self.set_tag(r)
        for cnt, base, V in ((C_PB, PPART, 5), (C_PA, PPART + 8192, 6))[:1 if o.pax else 2]:
            self.lds_wait(cnt, 4, T, T + 1, sleep=0)
            for w in range(4):
                a('ds_read_b128 %s, v7 offset:%d' % (vr(16 + 8 * w, 4), base + 2048 * w))
                a('ds_read_b128 %s, v7 offset:%d' % (vr(20 + 8 * w, 4), base + 2048 * w + 16))
            a('s_waitcnt lgkmcnt(0)')
            for st in (16, 8):
                for k in range(0, st, 2):
                    self.add2(16 + k, 16 + k, 16 + k + st)
            r = 112 if V == 5 else 120
            for k in range(4):
                a('v_cvt_pk_bf16_f32 v%d, v%d, v%d' % (r + 4 * (k >> 1) + (k & 1), 16 + 2 * k, 17 + 2 * k))
            for e in range(0 if (o.cut & 128 and V == 5) or (o.cut & 256 and V == 6) else 2):
                a('buffer_store_dwordx4 %s, v%d, %s, 0 offen offset:%d%s' % (
                    vr(r + 4 * e, 4), V, srd(SRD_WS), 1024 * e, '' if o.l2 else ' sc1'))
            self.lds_signal(C_OK, T, T + 1)
            self.stamp(vm, V, T)
        a('v_mov_b32 v110, v5')
        a('v_mov_b32 v111, v6')
        if o.l2:
            self.check_in(T)

        def through():
            for r, V in ((112, 110), (120, 111))[:1 if o.pax else 2]:
                for e in range(2):
                    a('buffer_store_dwordx4 %s, v%d, %s, 0 offen offset:%d sc1' % (vr(r + 4 * e, 4), V, srd(SRD_WS), 1024 * e))

        def verify():
            if o.l2:
                self.far_check(T, 32)
                LN = a.uniq('AF')
                a('s_cbranch_scc0 %s' % LN)
                through()
                a.label(LN)
        if o.cut & 32:
            a('s_branch L_ACUT')
        if o.pax:
            a('s_sleep 120')
            verify()
        a('s_sleep %d' % o.asl)
        self.poll_sel(vm, ['buffer_load_dwordx4 %s, v3, %s, 0 offen offset:%d sc1' % (vr(32 + 4 * e, 4), srd(SRD_WS), 1024 * e)
                           for e in range(2)], [32, 36], T, sleep=8, late=through if o.l2 else None)
        self.unpack4(16, 32)
        self.unpack4(20, 36)
        self.row_sum(list(range(16, 24)), 24)
        for k in range(4):
            a('v_cvt_pk_bf16_f32 v%d, v%d, v%d' % (8 + k, 16 + 2 * k, 17 + 2 * k))
        a('v_and_b32 v%d, 15, v1' % T)
        a('v_lshlrev_b32 v%d, 4, v%d' % (T, T))
        a('v_add_u32 v%d, 0x%x, v%d' % (T, QBUF, T))
        a('ds_write_b128 v%d, v[8:11]' % T)
        a.label('L_ACUT')
        if o.cut:
            self.lds_signal(C_OK, T, T + 1)
            self.lds_signal(C_OK, T, T + 1)
        self.lds_signal(C_Q, T, T + 1)
        self.stamp(vm, 1, T)
        if o.tlb & 1:
            mk_srd(a, SRD_B, P_V, 134217728)
            a('s_lshl_b32 s7, s%d, 5' % sB)
            a('s_add_u32 s7, s7, s%d' % S_H)
            a('s_lshl_b32 s7, s7, 20')
            a('s_add_u32 s7, s7, 0xC0000')
            a('v_lshlrev_b32 v96, %d, v1' % o.tls)
            a('s_mov_b64 exec, 0x%x' % ((1 << min(0x40000 >> o.tls, 32)) - 1))
            a('buffer_load_dword v97, v96, %s, s7 offen nt' % srd(SRD_B))
            a('s_mov_b64 exec, -1')
        if not o.pax:
            a('s_sleep 100')
            verify()
        self.lds_wait(C_ML, NS, T, T + 1, sleep=2)
        ML = 8
        a('v_mov_b32 v%d, 0x%x' % (T, MLBUF))
        for k in range(6):
            a('ds_read_b128 %s, v%d offset:%d' % (vr(ML + 4 * k, 4), T, 16 * k))
        a('s_waitcnt lgkmcnt(0)')
        Mx, Ls = T, T + 1
        a('v_max3_f32 v%d, v%d, v%d, v%d' % (Mx, ML, ML + 2, ML + 4))
        for k in range(3, NS, 2):
            a('v_max3_f32 v%d, v%d, v%d, v%d' % (Mx, Mx, ML + 2 * k, ML + 2 * k + 2))
        for k in range(NS):
            a('v_sub_f32 v%d, v%d, v%d' % (ML + 2 * k, ML + 2 * k, Mx))
        for k in range(NS):
            a('v_exp_f32 v%d, v%d' % (ML + 2 * k, ML + 2 * k))
        a('v_mul_f32 v%d, v%d, v%d' % (Ls, ML, ML + 1))
        for k in range(1, NS):
            a('v_fmac_f32 v%d, v%d, v%d' % (Ls, ML + 2 * k, ML + 2 * k + 1))
        a('v_rcp_f32 v%d, v%d' % (Ls, Ls))
        for k in range(NS):
            a('v_mul_f32 v%d, v%d, v%d' % (ML + 2 * k, ML + 2 * k, Ls))
        if o.hj:
            a('v_lshlrev_b32 v2, 4, v1')
            a('v_add_u32 v3, 0x%x, v2' % PT)
            a('ds_read_b128 v[32:35], v3')
            a('v_mul_u32_u24 v4, 47, v1')
            a('v_lshrrev_b32 v4, 9, v4')
            a('v_mul_u32_u24 v4, %d, v4' % NS)
            a('v_sub_u32 v4, v1, v4')
            if o.bal:
                n0 = NS * (o.hj - 2)
                a('v_subrev_u32 v5, %d, v1' % n0)
                a('v_subrev_u32 v6, 7, v5')
                a('v_min_u32 v5, v5, v6')
                a('v_and_b32 v6, 4, v5')
                a('v_add_u32 v5, v5, v6')
                a('v_cmp_le_u32 vcc, %d, v1' % n0)
                a('v_cndmask_b32 v4, v4, v5, vcc')
            a('v_mov_b32 v5, v%d' % ML)
            for k in range(1, NS):
                a('v_cmp_eq_u32 vcc, %d, v4' % (k if o.bal else (k + 3) % NS))
                a('v_cndmask_b32 v5, v5, v%d, vcc' % (ML + 2 * k))
            a('s_lshl_b32 s7, s%d, 2' % S_H)
            a('s_add_u32 s7, s7, s%d' % sB)
            a('s_lshl_b32 s7, s7, 10')
            a('s_add_u32 s7, s7, 0x%x' % WS_PH)
            self.set_tag(36)
            a('s_waitcnt lgkmcnt(0)')
            for k in range(4):
                a('v_mul_f32 v%d, v%d, v5' % (32 + k, 32 + k))
            a('v_cvt_pk_bf16_f32 v36, v32, v33')
            a('v_cvt_pk_bf16_f32 v37, v34, v35')
            a('v_cmp_gt_u32 vcc, %d, v1' % (256 - NS * (NQ - o.hj)))
            a('v_cndmask_b32 v36, 0, v36, vcc')
            a('v_cndmask_b32 v37, 0, v37, vcc')
            if o.l2:
                LN = a.uniq('AF')
                a('buffer_store_dwordx4 v[36:39], v2, %s, s7 offen' % srd(SRD_WS))
                a('s_cmp_eq_u32 s%d, 0' % S_FAR)
                a('s_cbranch_scc1 %s' % LN)
            a('buffer_store_dwordx4 v[36:39], v2, %s, s7 offen sc1' % srd(SRD_WS))
            if o.l2:
                a.label(LN)
        a('v_and_b32 v%d, 15, v1' % T)
        a('v_bfe_u32 v%d, v1, 4, 1' % (T + 1))
        a('v_lshlrev_b32 v3, 5, v%d' % T)
        a('v_lshl_add_u32 v3, v%d, 4, v3' % (T + 1))
        a('v_add_u32 v3, 0x%x, v3' % OPART)
        a('s_lshl_b32 s7, s%d, 3' % S_H)
        a('s_add_u32 s7, s7, s%d' % sB)
        a('s_lshl_b32 s7, s7, 8')
        a('s_add_u32 s7, s7, 0x%x' % WS_OA)
        a('v_lshlrev_b32 v2, 4, v%d' % T)
        a('v_lshl_add_u32 v2, v%d, 10, v2' % (T + 1))
        a('v_add_u32 v2, s7, v2')
        if o.pw:
            for k in range(4):
                a('v_mov_b32 v%d, 0' % (4 + k))
            a('s_mov_b64 exec, 0xffffffff')
            a('buffer_store_dwordx4 v[4:7], v2, %s, 0 offen' % srd(SRD_WS))
            a('s_mov_b64 exec, -1')
        self.set_tag(4)
        self.stamp(vm, 2, T)
        a('s_barrier')
        X, AC = 40, 32
        for k in range(NS):
            a('ds_read_b128 %s, v3 offset:%d' % (vr(X + 4 * k, 4), 512 * k))
        for k in range(NS):
            a('s_waitcnt lgkmcnt(%d)' % (NS - 1 - k))
            for p in range(2):
                self.pkfma_bcast(AC + 4 * (k & 1) + 2 * p, X + 4 * k + 2 * p, ML + 2 * k, first=(k < 2))
        for p in range(2):
            a('v_pk_add_f32 v[%d:%d], v[%d:%d], v[%d:%d]' % (AC + 2 * p, AC + 2 * p + 1, AC + 2 * p, AC + 2 * p + 1,
                                                          AC + 4 + 2 * p, AC + 5 + 2 * p))
        a('v_cvt_pk_bf16_f32 v4, v%d, v%d' % (AC, AC + 1))
        a('v_cvt_pk_bf16_f32 v5, v%d, v%d' % (AC + 2, AC + 3))
        a('s_mov_b64 exec, 0xffffffff')
        if o.l2:
            LN = a.uniq('AF')
            a('buffer_store_dwordx4 v[4:7], v2, %s, 0 offen' % srd(SRD_WS))
            a('s_cmp_eq_u32 s%d, 0' % S_FAR)
            a('s_cbranch_scc1 %s' % LN)
        a('buffer_store_dwordx4 v[4:7], v2, %s, 0 offen sc1' % srd(SRD_WS))
        if o.l2:
            a.label(LN)
        a('s_mov_b64 exec, -1')
        self.stamp(vm, 3, T)
        self.end()

    def w_role(self):
        a, o = self.a, self.o
        self.sec('W0')
        a.label('L_W')
        self.common()
        if o.cpf:
            a('s_getpc_b64 s[98:99]')
            a.label('L_PC')
            a('s_sub_u32 s98, s98, L_PC-%s_kernel' % NAME)
            a('s_subb_u32 s99, s99, 0')
            a('s_lshl_b32 s7, s%d, 2' % S_SLOT)
            a('s_add_u32 s7, s7, s%d' % S_WAVE)
            a('s_lshl_b32 s7, s7, 11')
            a('v_lshl_add_u32 v4, v1, 4, s7')
            a('s_mov_b32 s7, L_CODE_END-%s_kernel-16' % NAME)
            for k in range(2):
                a('v_add_u32 v5, %d, v4' % (k * 1024))
                a('v_min_u32 v5, s7, v5')
                a('v_mov_b32 v7, s99')
                a('v_add_co_u32 v6, vcc, s98, v5')
                a('v_addc_co_u32 v7, vcc, 0, v7, vcc')
                a('global_load_dwordx4 v[8:11], v[6:7], off')
        T = 160
        a('s_barrier')
        self.touch(0, 'U1')
        self.touch(1, 'W2R')
        a('s_cmp_ge_u32 s%d, 4' % S_SLOT)
        a('s_cbranch_scc1 %s' % ('L_PA' if o.pax else 'L_PF' if o.pf else 'L_VH' if o.hj else 'L_END'))
        self.lds_wait(C_QA if o.hold else C_UK, 4, T, T + 1, sleep=4)
        a('s_branch L_U1')
        if o.pf:
            a.label('L_PF')
            mk_srd(a, SRD_A, P_CKV, 16777216)
            a('s_lshl_b32 s7, s%d, 2' % S_G)
            a('s_add_u32 s7, s7, s%d' % S_SLOT)
            a('s_sub_u32 s7, s7, 4')
            a('s_lshl_b32 s7, s7, 19')
            a('s_lshl_b32 s%d, s%d, 10' % (S_T, S_WAVE))
            a('s_add_u32 s%d, s%d, s7' % (S_T, S_T))
            a('s_add_u32 s%d, s%d, %d' % (S_T, S_T, (256 - o.pf) * 1024))
            a('s_add_u32 s%d, s%d, 0x40000' % (S_T + 1, S_T))
            a('v_lshlrev_b32 v2, 4, v1')
            self.lds_wait(C_UK if o.pfe else C_QA, 4, T, T + 1, sleep=4)
            a('s_mov_b32 s%d, %d' % (S_T + 2, o.pf // 4))
            Lp = a.uniq('PF')
            a.label(Lp)
            for k in range(2):
                a('s_waitcnt vmcnt(%d)' % (o.pfd - 1))
                a('buffer_load_dwordx4 v[4:7], v2, %s, s%d offen%s' % (srd(SRD_A), S_T + k, PFL[o.pfl]))
                a('s_add_u32 s%d, s%d, 4096' % (S_T + k, S_T + k))
            a('s_sub_u32 s%d, s%d, 1' % (S_T + 2, S_T + 2))
            a('s_cmp_lg_u32 s%d, 0' % (S_T + 2))
            a('s_cbranch_scc1 %s' % Lp)
            self.lds_signal(C_PF, T, T + 1)
            if o.hj:
                a('s_branch L_VH')
                self.v_help()
            else:
                a('s_waitcnt vmcnt(0)')
                a('s_branch L_END')

        if o.hj and not o.pf:
            self.v_help()
        if o.pax:
            self.x_proj()
        a.label('L_W1')
        self.common()
        vm = VM(a)
        sHH, sW = S_T + 1, S_T + 2
        VA, VG = 2, 3
        FR, GQ, U, QB, D = 8, 72, 104, 136, 104
        a('s_setprio 3')
        a('s_barrier')
        if o.cut & 8:
            self.lds_wait(C_UK, 4, T, T + 1, sleep=4)
            a('s_sleep %d' % o.cutsl)
            self.lds_signal(C_QA, T, T + 1)
            a('s_cmp_ge_u32 s%d, 4' % S_SLOT)
            a('s_cbranch_scc1 L_END')
            a('s_branch L_U1')
        LN = a.uniq('W4')
        a('s_cmp_lg_u32 s%d, 4' % S_WAVE)
        a('s_cbranch_scc1 %s' % LN)
        a('s_sleep %d' % o.nsl)
        self.nonce_get(vm, 152, dbl=o.ndb)
        self.nonce_share(T)
        if o.l2:
            self.check_in(T)
        self.stamp(vm, 8, T)
        a.label(LN)
        a('s_sub_u32 s%d, s%d, 4' % (sW, S_WAVE))
        a('s_lshl_b32 s%d, s%d, 2' % (sHH, S_G))
        a('s_add_u32 s%d, s%d, s%d' % (sHH, sHH, sW))
        a('v_lshrrev_b32 v%d, 4, v1' % (T + 2))
        a('v_and_b32 v%d, 15, v1' % (T + 1))
        a('v_lshlrev_b32 v%d, 16, v%d' % (VA, T + 2))
        a('v_lshl_add_u32 v%d, v%d, 4, v%d' % (VA, T + 1, VA))
        a('s_lshl_b32 s7, s%d, 3' % sHH)
        a('s_add_u32 s7, s7, s%d' % S_SLOT)
        a('s_lshl_b32 s7, s7, 8')
        a('s_add_u32 s7, s7, 0x%x' % WS_QABS)
        a('v_add_u32 v%d, s7, v%d' % (VA, VA))
        a('v_lshlrev_b32 v%d, 6, v%d' % (VG, T + 1))
        a('v_lshl_add_u32 v%d, v%d, 4, v%d' % (VG, T + 2, VG))
        a('s_lshl_b32 s7, s%d, 13' % sHH)
        a('s_add_u32 s7, s7, 0x%x' % WS_QBP)
        a('v_add_u32 v%d, s7, v%d' % (VG, VG))
        a('v_xor_b32 v5, v%d, v%d' % (T + 2, T + 1))
        a('v_lshlrev_b32 v5, 4, v5')
        a('v_lshl_add_u32 v4, v%d, 12, v5' % (T + 1))
        a('s_lshl_b32 s7, s%d, 8' % sW)
        a('v_add_u32 v4, s7, v4')
        self.nonce_lds(T)
        a('s_sleep %d' % o.wsl)
        self.stamp(vm, 0, T)
        a('s_mov_b32 s%d, 4096' % (S_T + 3))
        loads = ['buffer_load_dwordx4 %s, v%d, %s, %s offen offset:%d sc1' % (
            vr(GQ + 4 * r, 4), VG, srd(SRD_WS), '0' if r < 4 else 's%d' % (S_T + 3), (r & 3) * 1024) for r in range(8)]

        def frags():
            self.lds_wait(C_UK, 4, T, T + 1, sleep=1)
            for ks in range(4):
                a('v_xor_b32 v%d, 0x%x, v4' % (T + ks, ks << 6))
            for t in range(4):
                for ks in range(4):
                    a('ds_read_b128 %s, v%d offset:%d' % (vr(FR + 16 * t + 4 * ks, 4), T + ks, t * 1024))
            if o.dev:
                self.stamp(vm, 9, T + 4)
                a('s_waitcnt vmcnt(1)')
                self.stamp(vm, 10, T + 4)
        self.poll_sel(vm, loads, [GQ + 4 * r for r in range(8)], T + 4, first=frags)
        self.stamp(vm, 1, T)
        for r in range(4):
            u = U + 8 + 8 * (r & 1) if r else U
            self.unpack4(u, GQ + 8 * r)
            self.unpack4(u + 4, GQ + 8 * r + 4)
            if r:
                for k in range(4):
                    self.add2(U + 2 * k, U + 2 * k, u + 2 * k)
        for k in range(4):
            a('v_cvt_pk_bf16_f32 v%d, v%d, v%d' % (QB + k, U + 2 * k, U + 2 * k + 1))
        for r in range(1, 4):
            for k in range(4):
                a('v_mov_b32_dpp v%d, v%d quad_perm:[%d,%d,%d,%d] row_mask:0xf bank_mask:0xf' % (
                    QB + 4 * r + k, QB + k, r & 3, (r + 1) & 3, (r + 2) & 3, (r + 3) & 3))
        self.set_tag(GQ)
        a('s_waitcnt lgkmcnt(0)')
        for r in range(4):
            for t in range(4):
                a('v_mfma_f32_16x16x32_bf16 %s, %s, %s, %s' % (
                    vr(D + 4 * t, 4), vr(QB + 4 * r, 4), vr(FR + 16 * t + 4 * ((t + r) & 3), 4),
                    '0' if r == 0 else vr(D + 4 * t, 4)))
        a('v_cvt_pk_bf16_f32 v%d, v%d, v%d' % (GQ, D, D + 5))
        a('v_cvt_pk_bf16_f32 v%d, v%d, v%d' % (GQ + 1, D + 10, D + 15))
        vm.issue('buffer_store_dwordx4 %s, v%d, %s, 0 offen sc1' % (vr(GQ, 4), VA, srd(SRD_WS)), 'qa')
        self.lds_signal(C_QA, T, T + 1)
        self.stamp(vm, 2, T)
        a('s_setprio 0')
        a('s_cmp_ge_u32 s%d, 4' % S_SLOT)
        a('s_cbranch_scc1 %s' % ('L_VH' if o.hj else 'L_END'))
        self.u_stage1()
        self.w_stage2()

    def x_proj(self):
        a, o = self.a, self.o
        vm = VM(a)
        self.sec('VH')
        a.label('L_PA')
        XR, RAW, OP, D, T = 8, 24, 88, 120, 160
        sOff, sHH, sRb = S_T, S_T + 1, S_T + 2
        mk_srd(a, SRD_A, P_AX, 4096)
        mk_srd(a, SRD_B, P_WQ, 4194304)
        a('s_lshl2_add_u32 s%d, s%d, s%d' % (sHH, S_G, S_WAVE))
        a('s_sub_u32 s%d, s%d, 4' % (sRb, S_SLOT))
        a('v_lshrrev_b32 v4, 4, v1')
        a('v_and_b32 v5, 15, v1')
        a('v_lshlrev_b32 v2, 16, v4')
        a('v_lshl_add_u32 v2, v5, 4, v2')
        a('v_lshlrev_b32 v3, 11, v4')
        a('v_lshl_add_u32 v3, v5, 4, v3')
        a('s_lshl_b32 s7, s%d, 5' % sHH)
        a('s_add_u32 s7, s7, s%d' % sRb)
        a('s_lshl_b32 s7, s7, 8')
        a('s_add_u32 s7, s7, 0x%x' % WS_QAP)
        a('v_add_u32 v3, s7, v3')
        a('v_bfe_u32 v5, v1, 2, 2')
        a('v_lshlrev_b32 v5, 10, v5')
        a('v_lshl_add_u32 v5, v4, 4, v5')
        a('s_getreg_b32 s%d, hwreg(HW_REG_XCC_ID, 0, 4)' % S_XCC)
        self.nonce_lds(T)
        self.lds_wait(C_QA if o.pah else C_UK, 4, T, T + 1, sleep=4)
        a('s_lshl_b32 s7, s%d, 8' % sRb)
        for kb in range(4):
            vm.issue('buffer_load_dwordx4 %s, v5, %s, s7 offen offset:%d' % (vr(XR + 4 * kb, 4), srd(SRD_A), 64 * kb), 'x')
        a('s_lshl_b32 s%d, s%d, 20' % (sOff, sRb))
        a('s_lshl_b32 s7, s%d, 8' % sHH)
        a('s_add_u32 s%d, s%d, s7' % (sOff, sOff))

        def ld(kb):
            for i in range(8):
                vm.wait_n(o.pad - 1)
                vm.issue('buffer_load_dwordx4 %s, v2, %s, s%d offen nt' % (
                    vr(RAW + 32 * (kb & 1) + 4 * i, 4), srd(SRD_B), sOff), ('w', kb))
                a('s_add_u32 s%d, s%d, %d' % (sOff, sOff, 8192 if i < 7 else 25 * 8192))
        ld(0)
        ld(1)
        for kb in range(4):
            if kb == 3 and o.l2:
                self.far_check(T, 152)
                vm.q = []
            vm.wait(('w', kb))
            self.perm_block(OP, RAW + 32 * (kb & 1))
            if kb + 2 < 4:
                ld(kb + 2)
            for c in range(8):
                a('v_mfma_f32_16x16x32_bf16 %s, %s, %s, %s' % (
                    vr(D + 4 * c, 4), vr(XR + 4 * kb, 4), vr(OP + 4 * c, 4), '0' if kb == 0 else vr(D + 4 * c, 4)))
        self.set_tag(RAW)
        self.set_tag(RAW + 4)
        for k in range(4):
            a('v_cvt_pk_bf16_f32 v%d, v%d, v%d' % (RAW + 4 * (k >> 1) + (k & 1), D + 8 * k, D + 8 * k + 4))
        LN = a.uniq('XF')
        if o.l2:
            for e in range(2):
                a('buffer_store_dwordx4 %s, v3, %s, 0 offen offset:%d' % (vr(RAW + 4 * e, 4), srd(SRD_WS), 1024 * e))
            a('s_cmp_eq_u32 s%d, 0' % S_FAR)
            a('s_cbranch_scc1 %s' % LN)
        for e in range(2):
            a('buffer_store_dwordx4 %s, v3, %s, 0 offen offset:%d sc1' % (vr(RAW + 4 * e, 4), srd(SRD_WS), 1024 * e))
        a.label(LN)
        self.lds_signal(C_PF, T, T + 1)
        self.end()
        self.sec('W0')

    def v_help(self):
        a, o = self.a, self.o
        vm = VM(a)
        vm.q = ['old'] * 8
        self.sec('VH')
        a.label('L_VH')
        q0 = NS * (NQ - o.hj)
        n = (256 - q0 + 1) // 2
        VR, P, ACC, G, T = 40, 8, 152, 148, 160
        assert VR + 4 * n <= 148 and P + n <= VR
        sOff = S_T
        mk_srd(a, SRD_B, P_V, 134217728)
        a('s_lshr_b32 s7, s%d, 1' % S_WAVE)
        a('s_lshl_b32 s%d, s7, 5' % sOff)
        a('s_add_u32 s%d, s%d, s%d' % (sOff, sOff, S_H))
        a('s_lshl_b32 s%d, s%d, 20' % (sOff, sOff))
        a('s_and_b32 s%d, s%d, 1' % (sOff + 1, S_WAVE))
        a('s_lshl_b32 s%d, s%d, 10' % (sOff + 2, sOff + 1))
        a('s_add_u32 s%d, s%d, s%d' % (sOff, sOff, sOff + 2))
        a('s_add_u32 s%d, s%d, 0x%x' % (sOff, sOff, 0xC0000 + q0 * 1024))
        a('v_lshlrev_b32 v2, 4, v1')
        a('s_lshl_b32 s%d, s%d, 2' % (sOff + 2, S_H))
        a('s_add_u32 s7, s7, s%d' % (sOff + 2))
        a('s_lshl_b32 s7, s7, 10')
        a('s_add_u32 s7, s7, 0x%x' % WS_PH)
        a('v_add_u32 v3, s7, v2')
        self.lds_wait(C_PF if o.pf else C_QA, 4, T, T + 1, sleep=8)
        for _ in range(o.vdl):
            a('s_sleep 36')
        odd = (256 - q0) & 1
        for i in range(n):
            vm.wait_n(o.vhd - 1)
            if odd and i == n - 1:
                a('s_cmp_eq_u32 s%d, 0' % (sOff + 1))
                a('s_cselect_b32 s%d, s%d, 0x40000000' % (sOff, sOff))
            vm.issue('buffer_load_dwordx4 %s, v2, %s, s%d offen nt' % (vr(VR + 4 * i, 4), srd(SRD_B), sOff), 'v')
            a('s_add_u32 s%d, s%d, 2048' % (sOff, sOff))
        self.nonce_lds(T)
        a('s_lshl_b32 s7, s%d, 9' % S_WAVE)
        a('s_add_u32 s7, s7, 0x%x' % PHL)
        a('v_lshl_add_u32 v4, v1, 3, s7')
        a('s_lshl_b32 s%d, s%d, 3' % (sOff + 1, sOff + 1))
        a('s_add_u32 s7, s7, s%d' % (sOff + 1))
        a('v_lshrrev_b32 v5, 4, v1')
        a('v_lshl_add_u32 v5, v5, 1, s7')
        for i in range(n):
            a('v_mov_b32 v%d, 0' % (P + i))
        a('v_and_b32 v6, 15, v1')
        a('v_lshlrev_b32 v6, 4, v6')
        a('v_bfe_u32 v7, v1, 5, 1')
        a('v_lshl_add_u32 v6, v7, 3, v6')
        a('v_bfe_u32 v7, v1, 4, 1')
        a('v_lshl_add_u32 v6, v7, 2, v6')
        a('s_lshl_b32 s7, s%d, 8' % S_WAVE)
        a('s_add_u32 s7, s7, 0x%x' % OHB)
        a('v_add_u32 v6, s7, v6')
        self.stamp(vm, 3, T)
        self.poll(vm, ['buffer_load_dwordx4 %s, v3, %s, 0 offen sc1' % (vr(G, 4), srd(SRD_WS))], G, T, sleep=8)
        a('ds_write_b64 v4, v[%d:%d]' % (G, G + 1))
        for i in range(n):
            if i == 12:
                a('s_waitcnt lgkmcnt(0)')
            a('ds_read_u16_d16_hi v%d, v5 offset:%d' % (P + i, 16 * i))
        a('s_waitcnt lgkmcnt(0)')
        for i in range(n):
            self.unpack8(T, VR + 4 * i)
            for k in range(4):
                self.pkfma_bcast(ACC + 2 * k, T + 2 * k, P + i, first=(i == 0))
        for k in range(4):
            a('v_permlane32_swap_b32 v%d, v%d' % (ACC + k, ACC + k + 4))
        for k in range(4):
            a('v_add_f32 v%d, v%d, v%d' % (ACC + k, ACC + k, ACC + k + 4))
        for k in range(2):
            a('v_permlane16_swap_b32 v%d, v%d' % (ACC + k, ACC + k + 2))
        for k in range(2):
            a('v_add_f32 v%d, v%d, v%d' % (ACC + k, ACC + k, ACC + k + 2))
        a('v_cvt_pk_bf16_f32 v%d, v%d, v%d' % (ACC, ACC, ACC + 1))
        a('ds_write_b32 v6, v%d' % ACC)
        self.lds_signal(C_VH, T, T + 1)
        self.stamp(vm, 4, T)
        self.end()
        self.sec('W0')

    def y_addr(self, V, Vt, sCg):
        a = self.a
        a('v_lshrrev_b32 v%d, 4, v1' % V)
        a('v_lshlrev_b32 v%d, 16, v%d' % (V, V))
        a('v_bfe_u32 v%d, v1, 3, 1' % Vt)
        a('v_lshl_add_u32 v%d, v%d, 13, v%d' % (V, Vt, V))
        a('v_and_b32 v%d, 7, v1' % Vt)
        a('v_lshl_add_u32 v%d, v%d, 4, v%d' % (V, Vt, V))
        a('s_cmp_lt_u32 s%d, 4' % S_SLOT)
        a('s_cselect_b32 s7, 0x%x, 0x%x' % (0x40000 >> 7, 0))
        a('s_add_u32 s7, s7, s%d' % S_H)
        a('s_lshl_b32 s7, s7, 7')
        a('s_add_u32 s7, s7, 0x%x' % WS_Y)
        a('v_add_u32 v%d, s7, v%d' % (V, V))
        a('s_lshl_b32 s7, s%d, 14' % sCg)
        a('v_add_u32 v%d, s7, v%d' % (V, V))

    def u_stage1(self):
        a, o = self.a, self.o
        vm = VM(a)
        vm.q = ['old', 'old', 'old']
        self.sec('U1', True)
        T = 160
        VW, VM_, VC, VP = 2, 3, 4, 5
        RAW, FW, X, U, AC, WJ, D = 8, 40, 8, 104, 120, 136, 104
        sOff = S_T + 10
        mk_srd(a, SRD_B, P_WUV, 4194304)
        a('v_lshrrev_b32 v%d, 4, v1' % (T + 2))
        a('v_lshlrev_b32 v%d, 16, v%d' % (VW, T + 2))
        a('v_and_b32 v%d, 15, v1' % T)
        a('v_lshl_add_u32 v%d, v%d, 4, v%d' % (VW, T, VW))
        a('s_lshl_b32 s7, s%d, 8' % S_H)
        a('v_add_u32 v%d, s7, v%d' % (VW, VW))
        a('s_lshl_b32 s%d, s%d, 19' % (sOff, S_WAVE))
        for kb in range(2):
            for i in range(8):
                vm.wait_n(o.ud - 1)
                vm.issue('buffer_load_dwordx4 %s, v%d, %s, s%d offen nt' % (
                    vr((RAW, 104)[kb] + 4 * i, 4), VW, srd(SRD_B), sOff), ('w', kb))
                a('s_add_u32 s%d, s%d, %d' % (sOff, sOff, 8192 if i < 7 else 25 * 8192))
        a('v_lshlrev_b32 v%d, 4, v1' % VM_)
        a('v_add_u32 v%d, 0x%x, v%d' % (VM_, MLS, VM_))
        a('v_lshrrev_b32 v%d, 1, v%d' % (VC, T))
        a('v_lshlrev_b32 v%d, 18, v%d' % (VC, VC))
        a('v_lshl_add_u32 v%d, v%d, 4, v%d' % (VC, T + 2, VC))
        a('v_and_b32 v%d, 1, v1' % (T + 3))
        a('v_lshl_add_u32 v%d, v%d, 6, v%d' % (VC, T + 3, VC))
        a('v_cmp_eq_u32 s[%d:%d], 1, v%d' % (S_MK, S_MK + 1, T + 3))
        a('s_lshl_b32 s7, s%d, 5' % S_WAVE)
        a('s_add_u32 s7, s7, s%d' % S_H)
        a('s_lshl_b32 s7, s7, 7')
        a('s_add_u32 s7, s7, 0x%x' % WS_CTX)
        a('v_add_u32 v%d, s7, v%d' % (VC, VC))
        a('s_lshl_b32 s7, s%d, 11' % S_WAVE)
        a('s_add_u32 s7, s7, 0x%x' % OPART)
        a('v_lshl_add_u32 v%d, v1, 5, s7' % VP)
        vm.wait(('w', 0))
        self.perm_block(FW, RAW)
        vm.wait(('w', 1))
        self.perm_block(FW + 32, 104)
        self.stamp(vm, 3, T)
        if o.cut & 1:
            a('s_branch L_END')
        self.nonce_lds(T)
        self.lds_wait(C_OK2, 1, T, T + 1, sleep=4)
        a('s_setprio 3')
        loads = ['s_mov_b32 s%d, %d\nbuffer_load_dwordx4 %s, v%d, %s, s%d offen sc1%s' % (
            sOff, 32768 * n, vr(X + 4 * n, 4), VC, srd(SRD_WS), sOff, ' nt' if o.cnt & 2 else '') for n in range(8)]
        WN = 148
        Lp, Lpd = a.uniq('UM'), a.uniq('UMD')
        a('s_mov_b64 s[%d:%d], 0' % (S_MK2, S_MK2 + 1))
        a('s_mov_b32 s%d, %d' % (S_SPIN, o.spin * 8))
        a.label(Lp)
        a('ds_read_b128 %s, v%d' % (vr(WJ, 4), VM_))
        a('s_waitcnt lgkmcnt(0)')
        self.bad(WJ, T)
        a('s_or_b64 s[%d:%d], vcc, s[%d:%d]' % (S_MK3, S_MK3 + 1, S_MK2, S_MK2 + 1))
        for n in range(8):
            Ls = a.uniq('UMS')
            m = (0xAAAA if n >> 2 else 0x5555) << (16 * (n & 1))
            hi = (n >> 1) & 1
            a('s_and_b32 s7, s%d, 0x%x' % (S_MK3 + hi, m))
            a('s_cbranch_scc1 %s' % Ls)
            a(loads[n])
            a('s_or_b32 s%d, s%d, 0x%x' % (S_MK2 + hi, S_MK2 + hi, m))
            a.label(Ls)
        a('s_cbranch_vccz %s' % Lpd)
        a('s_sleep 1')
        a('s_sub_u32 s%d, s%d, 1' % (S_SPIN, S_SPIN))
        a('s_cmp_lg_u32 s%d, 0' % S_SPIN)
        a('s_cbranch_scc1 %s' % Lp)
        a.label(Lpd)
        self.stamp(vm, 4, T)

        def weights():
            M, Lx = WJ, WJ + 1
            mx = WJ + 2
            a('v_max_f32_dpp v%d, v%d, v%d quad_perm:[1,0,3,2] row_mask:0xf bank_mask:0xf' % (mx, M, M))
            a('v_max_f32_dpp v%d, v%d, v%d quad_perm:[2,3,0,1] row_mask:0xf bank_mask:0xf' % (mx, mx, mx))
            for sw in ('v_permlane32_swap_b32', 'v_permlane16_swap_b32'):
                a('v_mov_b32 v%d, v%d' % (mx + 1, mx))
                a('%s v%d, v%d' % (sw, mx, mx + 1))
                a('v_max_f32 v%d, v%d, v%d' % (mx, mx, mx + 1))
            a('v_sub_f32 v%d, v%d, v%d' % (M, M, mx))
            a('v_exp_f32 v%d, v%d' % (M, M))
            a('v_mul_f32 v%d, v%d, v%d' % (Lx, Lx, M))
            a('v_add_f32_dpp v%d, v%d, v%d quad_perm:[1,0,3,2] row_mask:0xf bank_mask:0xf' % (Lx, Lx, Lx))
            a('v_add_f32_dpp v%d, v%d, v%d quad_perm:[2,3,0,1] row_mask:0xf bank_mask:0xf' % (Lx, Lx, Lx))
            self.row_sum([Lx], mx)
            a('v_rcp_f32 v%d, v%d' % (Lx, Lx))
            a('v_mul_f32 v%d, v%d, v%d' % (WJ, M, Lx))
            a('v_mov_b32 v%d, v%d' % (WJ + 1, WJ))
            a('v_permlane16_swap_b32 v%d, v%d' % (WJ, WJ + 1))
            a('v_mov_b32 v%d, v%d' % (WJ + 2, WJ))
            a('v_mov_b32 v%d, v%d' % (WJ + 3, WJ + 1))
            a('v_permlane32_swap_b32 v%d, v%d' % (WJ, WJ + 2))
            a('v_permlane32_swap_b32 v%d, v%d' % (WJ + 1, WJ + 3))
            for e in range(2):
                for jj in range(4):
                    a('v_mov_b32_dpp v%d, v%d quad_perm:[%d,%d,%d,%d] row_mask:0xf bank_mask:0xf' % (
                        WN + 4 * e + jj, WJ + jj, e, e, 2 + e, 2 + e))
        weights()
        a('s_waitcnt vmcnt(0)')
        self.stamp(vm, 5, T)
        OPN = 140
        for n in range(8):
            u = U + 8 * (n & 1)
            self.unpack8(u, X + 4 * n)
            for e in range(8):
                a('%s v%d, v%d, v%d' % ('v_fmac_f32' if n else 'v_mul_f32', AC + e, u + e, WN + n))
        for k in range(4):
            a('v_cvt_pk_bf16_f32 v%d, v%d, v%d' % (AC + 8 + k, AC + 2 * k, AC + 2 * k + 1))
        for k in range(4):
            a('v_cndmask_b32 v%d, v%d, 0, s[%d:%d]' % (OPN + k, AC + 8 + k, S_MK, S_MK + 1))
            a('v_cndmask_b32 v%d, 0, v%d, s[%d:%d]' % (OPN + 4 + k, AC + 8 + k, S_MK, S_MK + 1))
        if o.dump & 2:
            a('s_lshl_b32 s7, s%d, 3' % S_H)
            a('s_add_u32 s7, s7, s%d' % S_WAVE)
            a('s_lshl_b32 s7, s7, 15')
            a('s_add_u32 s7, s7, 0x800000')
            a('v_lshl_add_u32 v%d, v1, 4, s7' % T)
            for k in range(8):
                a('s_mov_b32 s7, %d' % (1024 * (21 + k)))
                a('buffer_store_dwordx4 %s, v%d, %s, s7 offen' % (vr(X + 4 * k, 4), T, srd(SRD_WS)))
            a('s_waitcnt vmcnt(0)')
        D = 8
        for kb in range(2):
            for c in range(8):
                a('v_mfma_f32_16x16x32_bf16 %s, %s, %s, %s' % (
                    vr(D + 4 * c, 4), vr(OPN + 4 * kb, 4), vr(FW + 32 * kb + 4 * c, 4),
                    '0' if kb == 0 else vr(D + 4 * c, 4)))
        R = 104
        for c in range(8):
            self.add2(D + 4 * c, D + 4 * c, D + 4 * c + 2)
        for c in range(8):
            a('v_add_f32 v%d, v%d, v%d' % (R + c, D + 4 * c, D + 4 * c + 1))
        a('ds_write_b128 v%d, %s' % (VP, vr(R, 4)))
        a('ds_write_b128 v%d, %s offset:16' % (VP, vr(R + 4, 4)))
        if o.dump:
            a('s_lshl_b32 s7, s%d, 3' % S_H)
            a('s_add_u32 s7, s7, s%d' % S_WAVE)
            a('s_lshl_b32 s7, s7, 15')
            a('s_add_u32 s7, s7, 0x800000')
            a('v_lshl_add_u32 v%d, v1, 4, s7' % T)
            regs = [R, R + 4, AC + 8, WN, WN + 4] + [AC, AC + 4, AC + 12, OPN, OPN + 4] + [FW + 4 * k for k in range(11)]
            for k, r in enumerate(regs):
                a('s_mov_b32 s7, %d' % (1024 * k))
                a('buffer_store_dwordx4 %s, v%d, %s, s7 offen' % (vr(r, 4), T, srd(SRD_WS)))
        a('v_and_b32 v%d, 31, v1' % T)
        a('s_lshl_b32 s7, s%d, 8' % S_WAVE)
        a('s_add_u32 s7, s7, 0x%x' % OPART)
        a('v_lshl_add_u32 v%d, v%d, 3, s7' % (VP, T))
        a('s_lshl_b32 s7, s%d, 7' % S_WAVE)
        a('s_add_u32 s7, s7, 0x%x' % OBUF)
        a('v_lshl_add_u32 v%d, v%d, 2, s7' % (VC, T))
        a('s_waitcnt lgkmcnt(0)')
        a('s_barrier')
        for k in range(8):
            a('ds_read_b64 v[%d:%d], v%d offset:%d' % (D + 2 * k, D + 2 * k + 1, VP, 2048 * k))
        a('s_waitcnt lgkmcnt(0)')
        for st in (8, 4, 2):
            for k in range(0, st, 2):
                self.add2(D + k, D + k, D + k + st)
        a('v_cvt_pk_bf16_f32 v%d, v%d, v%d' % (D, D, D + 1))
        a('ds_write_b32 v%d, v%d' % (VC, D))
        a('s_waitcnt lgkmcnt(0)')
        a('s_barrier')
        self.stamp(vm, 6, T)
        if o.wb:
            LN = a.uniq('WB')
            a('s_lshl4_add_u32 s7, s%d, s%d' % (S_SLOT, S_WAVE))
            a('s_cmp_lg_u32 s7, 0')
            a('s_cbranch_scc1 %s' % LN)
            a('s_sleep %d' % o.wb)
            a('buffer_wbl2 sc1')
            if o.hs:
                a('s_waitcnt vmcnt(0)')
            a.label(LN)
        self.end()

    def w_stage2(self):
        a, o = self.a, self.o
        vm = VM(a)
        self.sec('W2A')
        a.label('L_W2')
        self.common(True, split=True)
        sW, sOff, sM0 = S_T + 2, S_T + 10, S_T + 11
        VW, VY, VO, T = 2, 3, 4, 4
        a('s_sub_u32 s%d, s%d, 8' % (sW, S_WAVE))
        a('s_lshl_b32 s7, s%d, 2' % S_SLOT)
        a('s_add_u32 s7, s7, s%d' % sW)
        a('s_lshl_b32 s7, s7, 17')
        a('s_lshl_b32 s%d, s%d, 10' % (sOff, S_G))
        a('s_add_u32 s%d, s%d, s7' % (sOff, sOff))
        a('s_lshl_b32 s%d, s%d, 14' % (sM0, sW))
        a('v_lshlrev_b32 v%d, 4, v1' % VW)
        a('s_lshl_b32 s7, s%d, 6' % sW)
        a('v_xor_b32 v%d, s7, v%d' % (T, VW))
        for k in range(1, 4):
            a('v_xor_b32 v%d, %d, v%d' % (T + k, k << 4, T))
        a('s_waitcnt lgkmcnt(0)')
        self.nonce_make(8)
        vm.q.append('nonce')
        mk_srd(a, SRD_C, P_WUK, 4194304)
        for i in range(16):
            vt = T + (i >> 2)
            if i == o.ukd:
                self.sec('W2B', True)
                self.common(True)
                a('s_barrier')
            a('s_mov_b32 m0, s%d' % sM0)
            if i >= o.ukd:
                vm.wait_n(o.ukd - 1)
            vm.issue('buffer_load_dwordx4 v%d, %s, s%d offen nt lds' % (vt, srd(SRD_C), sOff), 'uk')
            a('s_addk_i32 s%d, 8192' % sOff)
            a('s_addk_i32 s%d, 1024' % sM0)
        self.sec('W2R', True)
        a('s_cmp_lt_u32 s%d, 4' % S_SLOT)
        a('s_cselect_b32 s%d, s%d, s%d' % (S_T + 12, P_BWO, P_WO))
        a('s_cselect_b32 s%d, s%d, s%d' % (S_T + 13, P_BWO + 1, P_WO + 1))
        mk_srd(a, SRD_D, S_T + 12, 4194304)
        a('v_lshrrev_b32 v%d, 4, v1' % T)
        a('v_lshlrev_b32 v%d, 13, v%d' % (VW, T))
        a('v_and_b32 v%d, 15, v1' % T)
        a('v_lshl_add_u32 v%d, v%d, 4, v%d' % (VW, T, VW))
        a('s_lshl_b32 s7, s%d, 17' % S_H)
        a('s_lshl_b32 s%d, s%d, 8' % (sOff, sW))
        a('s_add_u32 s7, s7, s%d' % sOff)
        a('v_add_u32 v%d, s7, v%d' % (VW, VW))
        self.y_addr(VY, T, sW)
        vm.wait_all()
        self.lds_signal(C_UK, T, T + 1)
        self.stamp(vm, 0, T)
        LU, LJ = a.uniq('S2U'), a.uniq('S2J')

        def stream(depth):
            q0 = list(vm.q)
            for kb in range(4):
                for i in range(8):
                    if i & 3 == 0:
                        vm.wait_n(depth)
                    vm.issue('buffer_load_dwordx4 %s, v%d, %s, s%d offen offset:%d nt' % (
                        vr(40 + 32 * kb + 4 * i, 4), VW, srd(SRD_D), sOff, (i & 3) * 1024), ('w', kb))
                    if i == 3:
                        a('s_add_u32 s%d, s%d, 4096' % (sOff, sOff))
                    if i == 7:
                        a('s_add_u32 s%d, s%d, %d' % (sOff, sOff, 32768 - 4096))
            vm.wait_all()
            vm.q = q0
        a('s_mov_b32 s%d, 0' % sOff)
        if o.hold:
            self.lds_wait(C_QA, 4, T, T + 1, sleep=4)
        a('s_cmp_lt_u32 s%d, 4' % S_SLOT)
        a('s_cbranch_scc1 %s' % LU)
        if o.pf or o.pax:
            self.lds_wait(C_PF, 4, T, T + 1, sleep=8)
        for _ in range(o.xdl):
            a('s_sleep 36')
        stream(o.sdx)
        a('s_branch %s' % LJ)
        a.label(LU)
        for _ in range(o.udl):
            a('s_sleep 36')
        stream(o.sdu)
        a.label(LJ)
        vm.q = []
        for kb in range(4):
            self.perm_block(8 + 32 * kb, 40 + 32 * kb)
        OP, D0, T = 136, 152, 160
        self.stamp(vm, 1, T)
        if o.cut & 1:
            a('s_branch L_END')
        self.nonce_lds(T)
        LX, LM = a.uniq('S2X'), a.uniq('S2M')
        a('v_bfe_u32 v%d, v1, 2, 2' % VO)
        a('v_lshlrev_b32 v%d, 8, v%d' % (VO, VO))
        a('v_lshrrev_b32 v%d, 4, v1' % T)
        a('v_lshl_add_u32 v%d, v%d, 4, v%d' % (VO, T, VO))
        a('s_mov_b32 s%d, 4096' % sOff)
        a('s_cmp_ge_u32 s%d, 4' % S_SLOT)
        a('s_cbranch_scc1 %s' % LX)
        a('v_add_u32 v%d, 0x%x, v%d' % (VO, OBUF, VO))
        LN = a.uniq('U8')
        a('s_cmp_lg_u32 s%d, 8' % S_WAVE)
        a('s_cbranch_scc1 %s' % LN)
        a('v_and_b32 v5, 15, v1')
        a('v_lshl_add_u32 v5, v5, 2, v%d' % T)
        a('s_lshl_b32 s7, s%d, 4' % S_H)
        a('s_add_u32 s7, s7, 0x%x' % WS_MLB)
        a('v_lshl_add_u32 v5, v5, 9, s7')
        a('v_lshlrev_b32 v6, 4, v1')
        a('v_add_u32 v6, 0x%x, v6' % MLS)
        bufs = [OP, OP + 4, OP + 8][:o.upp]
        if o.tlb & 2:
            a('v_lshlrev_b32 v7, 15, v1')
            a('s_mov_b32 s7, 0x%x' % (WS_CTX + 0x7f80))
            a('buffer_load_dword v%d, v7, %s, s7 offen nt' % (OP + 12, srd(SRD_WS)))

        def mld(r):
            return 'buffer_load_dwordx4 %s, v5, %s, 0 offen sc1' % (vr(r, 4), srd(SRD_WS))
        self.poll(vm, [mld(OP)], OP, T, sleep=o.usl, anyok=True)
        a('s_setprio 3')
        a('ds_write_b128 v6, %s' % vr(OP, 4))
        self.lds_signal(C_OK2, T, T + 1)
        Lp, Lpd = a.uniq('U8P'), a.uniq('U8D')
        a('s_cbranch_vccz %s' % Lpd)
        for r in bufs:
            a(mld(r))
            a('s_sleep 4')
        a('s_mov_b32 s%d, %d' % (S_SPIN, o.spin))
        a.label(Lp)
        for r in bufs:
            a('s_waitcnt vmcnt(%d)' % (len(bufs) - 1))
            a('ds_write_b128 v6, %s' % vr(r, 4))
            self.bad(r, T)
            a('s_cbranch_vccz %s' % Lpd)
            a('s_waitcnt lgkmcnt(0)')
            a(mld(r))
        a('s_sub_u32 s%d, s%d, 1' % (S_SPIN, S_SPIN))
        a('s_cmp_lg_u32 s%d, 0' % S_SPIN)
        a('s_cbranch_scc1 %s' % Lp)
        a.label(Lpd)
        a('s_waitcnt vmcnt(0)')
        a.label(LN)
        a('s_setprio 3')
        a('s_barrier')
        a('s_barrier')
        for kb in range(4):
            a('ds_read_b128 %s, v%d offset:%d' % (vr(OP + 4 * kb, 4), VO, 64 * kb))
        a('s_waitcnt lgkmcnt(0)')
        a('s_branch %s' % LM)
        a.label(LX)
        if o.hj:
            a('v_bfe_u32 v5, v1, 2, 2')
            a('v_lshl_add_u32 v5, v5, 8, v%d' % VO)
            a('v_add_u32 v6, 1, v1')
            a('v_and_b32 v6, 1, v6')
            a('v_lshl_add_u32 v5, v6, 8, v5')
            a('v_add_u32 v5, 0x%x, v5' % OHB)
            a('v_and_b32 v6, 3, v1')
            a('v_cmp_ne_u32 s[%d:%d], 0, v6' % (S_MK, S_MK + 1))
            self.lds_wait(C_VH, 8, T, T + 1, sleep=4)
            for kb in range(4):
                a('ds_read_b128 %s, v5 offset:%d' % (vr(OP + 4 * kb, 4), 64 * kb))
            a('s_waitcnt lgkmcnt(0)')
            self.stamp(vm, 4, T)
        a('v_and_b32 v%d, 3, v1' % T)
        a('v_lshl_add_u32 v%d, v%d, 6, v%d' % (VO, T, VO))
        a('s_lshl_b32 s7, s%d, 11' % S_H)
        a('s_add_u32 s7, s7, 0x%x' % WS_OA)
        a('v_add_u32 v%d, s7, v%d' % (VO, VO))
        ld = ['buffer_load_dwordx4 %s, v%d, %s, 0 offen offset:%d sc1' % (vr(D0 + 4 * e, 4), VO, srd(SRD_WS), 1024 * e)
              for e in range(2)]
        self.poll(vm, ld[:1], D0, T, sleep=o.xsl, anyok=True)
        a('s_setprio 3')

        def mk(r):
            return (['buffer_load_dwordx4 %s, v%d, %s, 0 offen offset:%d sc1' % (vr(r + 4 * e, 4), VO, srd(SRD_WS), 1024 * e)
                     for e in range(2)], [r, r + 4])

        def spread(r):
            if o.hj:
                a('s_mov_b64 vcc, s[%d:%d]' % (S_MK, S_MK + 1))
            for kb in range(4):
                for k in range(4):
                    d, x = OP + 4 * kb + k, r + 4 * (k >> 1) + (k & 1)
                    if o.hj:
                        a('v_cndmask_b32_dpp v%d, v%d, v%d, vcc quad_perm:[%d,%d,%d,%d] row_mask:0xf bank_mask:0xf' % (
                            d, x, d, kb, kb, kb, kb))
                    else:
                        a('v_mov_b32_dpp v%d, v%d quad_perm:[%d,%d,%d,%d] row_mask:0xf bank_mask:0xf' % (d, x, kb, kb, kb, kb))
        if o.xpp:
            self.poll_pipe(vm, mk, [D0, D0 + 8], spread, gap=o.xpp)
        else:
            self.poll_sel(vm, ld, [D0, D0 + 4], T)
            spread(D0)
        a.label(LM)
        a('s_nop 1')
        T = 4
        self.stamp(vm, 2, T)

        def D(c):
            return 4 if c == 0 else 8 + 4 * (c - 1)
        for c in range(8):
            for kb in range(4):
                a('v_mfma_f32_16x16x32_bf16 %s, %s, %s, %s' % (
                    vr(D(c), 4), vr(OP + 4 * kb, 4), vr(8 + 32 * kb + 4 * c, 4), '0' if kb == 0 else vr(D(c), 4)))
        T = 48
        if o.hj:
            LN = a.uniq('S2A')
            a('s_cmp_lt_u32 s%d, 4' % S_SLOT)
            a('s_cbranch_scc1 %s' % LN)
            for k in (1, 2):
                for c in range(8):
                    a('v_add_f32 v%d, v%d, v%d' % (D(c), D(c), D(c) + k))
            a.label(LN)
            a('s_nop 7')
        Y = 40
        for e in range(2):
            self.set_tag(Y + 4 * e)
            for m in range(2):
                a('v_cvt_pk_bf16_f32 v%d, v%d, v%d' % (Y + 4 * e + m, D(4 * e + 2 * m), D(4 * e + 2 * m + 1)))
            a('buffer_store_dwordx4 %s, v%d, %s, %s offen sc1' % (
                vr(Y + 4 * e, 4), VY, srd(SRD_WS), 's%d' % sOff if e else '0'))
        self.stamp(vm, 3, T)
        if o.wbx:
            LN = a.uniq('WB')
            a('s_cmp_lg_u32 s%d, 8' % S_WAVE)
            a('s_cbranch_scc1 %s' % LN)
            a('s_cmp_lt_u32 s%d, %d' % (S_SLOT, 4 if o.wbx == 1 else 7))
            a('s_cbranch_scc1 %s' % LN)
            a('s_waitcnt vmcnt(0)')
            a('buffer_wbl2 sc1')
            if o.hs:
                a('s_waitcnt vmcnt(0)')
            a.label(LN)
        self.end()

    def build(self):
        a = self.a
        hdr = open(os.path.join(os.path.dirname(os.path.abspath(__file__)), '..', NAME + '.s.ref')).read()
        head = []
        for line in hdr.split('\n'):
            if line.startswith('; @launch'):
                if self.o.hs:
                    head.append('; @launch kernel=%s_kernel grid=(256,1,1) block=(768,1,1) lds=%d' % (NAME, LDS_BYTES))
                    head.append('; @launch kernel=hs_kernel grid=(1,1,1) block=(64,1,1) lds=0')
                else:
                    head.append('; @launch grid=(256,1,1) block=(768,1,1) lds=%d' % LDS_BYTES)
            elif line.startswith(';'):
                head.append(line)
            else:
                break
        a.raw('\n'.join(head))
        a.raw('.amdgcn_target "amdgcn-amd-amdhsa--gfx950"\n.text\n.globl %s_kernel\n.p2align 12\n.p2align 8\n'
              '.type %s_kernel,@function\n%s_kernel:' % (NAME, NAME, NAME))
        self.sec('ENTRY')
        self.entry()
        self.a_att()
        self.a_svc()
        self.w_role()
        from gen3_c import c_role
        c_role(self)
        self.sec('END')
        a.label('L_END')
        self.end()
        a.label('L_END0')
        a('s_endpgm')
        self.sec('TAIL')
        a.label('L_CODE_END')
        a.raw('''.section .rodata,"a"
.p2align 6
.amdhsa_kernel %s_kernel
  .amdhsa_next_free_vgpr 168
  .amdhsa_next_free_sgpr 102
  .amdhsa_accum_offset 168
  .amdhsa_group_segment_fixed_size 0
  .amdhsa_kernarg_size 112
  .amdhsa_user_sgpr_count 2
  .amdhsa_user_sgpr_kernarg_segment_ptr 1
  .amdhsa_system_sgpr_workgroup_id_x 1
  .amdhsa_float_denorm_mode_32 3
.end_amdhsa_kernel
''' % NAME)
        if self.o.hs:
            from hs import hs_kernel
            a.raw(hs_kernel(WS_HS, 256 * 12, self.o.hs))
        txt = a.text()
        if self.o.hnt:
            out = []
            for l in txt.split('\n'):
                if l.rstrip().endswith(' sc1') and 'buffer_' in l and 'wbl2' not in l:
                    if ('store' in l and self.o.hnt & 1) or ('load' in l and self.o.hnt & 2):
                        l = l.rstrip() + ' nt'
                out.append(l)
            txt = '\n'.join(out)
        return layout(txt) if self.o.lay else txt


ORD = os.environ.get('ORD', 'W2A,AA,CA').split(',')


def sizes_of(lines):
    import subprocess, tempfile, re
    txt = []
    for l in lines:
        txt.append(l)
        if l.startswith(';@SEC TAIL'):
            txt += ['LT_%s:' % p for p in ('AR', 'AR2', 'U1', 'W2R', 'CR', 'CR2')]
    with tempfile.TemporaryDirectory() as d:
        open(d + '/t.s', 'w').write('\n'.join(txt))
        subprocess.check_call(['clang', '-x', 'assembler', '-target', 'amdgcn-amd-amdhsa', '-mcpu=gfx950',
                               '-c', d + '/t.s', '-o', d + '/t.o'])
        dis = subprocess.check_output(['llvm-objdump', '-d', '--mcpu=gfx950', d + '/t.o']).decode()
    sz = [4 * len(m.group(1).split()) for m in re.finditer(r'// [0-9A-F]+: ((?:[0-9A-F]{8} ?)+)', dis)]
    out, k = [], 0
    for l in lines:
        if l.startswith('    ') and not l.strip().startswith(';'):
            out.append(sz[k])
            k += 1
        else:
            out.append(0)
    return out


def layout(text):
    lines = text.split('\n')
    sz = sizes_of(lines)
    secs, cur = {}, 'HEAD'
    for l, n in zip(lines, sz):
        if l.startswith(';@SEC '):
            cur = l.split()[1]
            continue
        secs.setdefault(cur, []).append((l, n))

    def size(n):
        return sum(x[1] for x in secs[n])

    def body(n):
        return [x[0] for x in secs[n]]

    def stub(p):
        return ['.p2align 12', 'LT_%s:' % p, '    s_branch LR_%s' % p]

    def split(n):
        out, pos, done = [], 4, False
        for l, k in secs[n]:
            if not done and k and pos + k + 4 > 4096:
                out += ['    s_branch LC_%s' % n] + stub(n + '2') + ['LC_%s:' % n]
                done, pos = True, 4
            out.append(l)
            pos += k
        assert done
        return out, pos
    out = body('HEAD')
    p0 = ['ENTRY'] + ORD + ['AB', 'W2B', 'CB', 'END']
    print('first bursts:', [(n, size(n)) for n in p0])
    for n in p0:
        out += body(n)
    ar, rest = split('AR')
    out += stub('AR') + ar + body('ASVC')
    out += ['.p2align 12'] + body('W0') + body('CSVC')
    if 'VH' in secs:
        out += ['.p2align 12'] + body('VH')
    out += stub('U1') + body('U1') + stub('W2R') + body('W2R')
    cr, crest = split('CR')
    out += stub('CR') + cr + body('TAIL')
    print('layout: page0 %d (+768 harness), AR2+ASVC %d, W0+CSVC %d, U1 %d, W2R %d, CR2 %d' % (
        sum(map(size, p0)), rest + size('ASVC'), size('W0') + size('CSVC'), size('U1'), size('W2R'), crest))
    return '\n'.join(out)


if __name__ == '__main__':
    import gen3
    opt = gen3.Opt()
    out = os.path.join(os.path.dirname(os.path.abspath(__file__)), '..', NAME + '.s')
    for arg in sys.argv[1:]:
        if arg.startswith('out='):
            out = arg[4:]
        else:
            k, v = arg.split('=')
            assert hasattr(opt, k), k
            setattr(opt, k, int(v))
    g = gen3.Gen(opt)
    txt = g.build()
    open(out, 'w').write(txt)
    print('wrote', out, len(txt), 'bytes; auto nops:', g.a.nops)
```

```python
from asmlib import vr
import gen3 as G
from gen3 import (VM, mk_srd, srd, f32bits, S_T, S_G, S_SLOT, S_WAVE, S_SPIN, S_MK, S_MK2, S_MK3,
                  SRD_WS, SRD_A, SRD_C, P_CKV, P_OUT, P_V, S_H)


def ci(a, s):
    a('s_lshl_b32 s%d, s%d, 3' % (s, S_G))
    a('s_add_u32 s%d, s%d, s%d' % (s, s, S_SLOT))
    a('s_sub_u32 s%d, s%d, 8' % (s, s))


def c_role(g):
    a = g.a
    g.sec('CA')
    a.label('L_C')
    c_att(g)
    c_svc(g)


def c_att(g):
    a, o = g.a, g.o
    vm = VM(a)
    g.common(split=True)
    (sBi, sBq, sJ, sCh, sKt, sHh, sOff, sC, sM0, sX, sBase) = [S_T + i for i in range(11)]
    Q, ST2, ACC = 32, 96, 128
    ST1 = ACC
    VB8, VB4 = 2, 3
    T = 160

    def sync():
        a('s_waitcnt lgkmcnt(0)')
        a('s_barrier')

    ci(a, sBi)
    a('v_lshlrev_b32 v%d, 4, v1' % T)
    a('s_and_b32 s7, s%d, 3' % S_WAVE)
    a('s_lshl_b32 s7, s7, 2')
    a('s_lshr_b32 s%d, s%d, 2' % (sOff, S_WAVE))
    a('s_or_b32 s7, s7, s%d' % sOff)
    sSw = sJ
    a('s_lshl_b32 s%d, s7, 4' % sSw)
    a('v_xor_b32 v%d, s%d, v%d' % (VB8, sSw, T))
    a('v_xor_b32 v%d, 32, v%d' % (VB4, VB8))
    a('s_lshl_b32 s%d, s%d, 18' % (sBase, sBi))

    def thr():
        vm.wait_n(o.bd - 1)

    a('s_lshl_b32 s%d, s%d, 10' % (sM0, S_WAVE))
    sLd = sBq
    a('s_add_u32 s%d, s%d, s%d' % (sLd, sBase, sM0))

    a('s_waitcnt lgkmcnt(0)')
    mk_srd(a, SRD_A, P_CKV, 16777216)
    for i in range(24):
        vt = VB4 if i & 1 else VB8
        if i < 12:
            a('s_mov_b32 m0, s%d' % sM0)
            thr()
            vm.issue('buffer_load_dwordx4 v%d, %s, s%d offen nt lds' % (vt, srd(SRD_A), sLd), 'q0')
            a('s_addk_i32 s%d, 8192' % sM0)
        else:
            thr()
            r = ST1 + 4 * (i - 12) if i < 16 else ST2 + 4 * (i - 16)
            vm.issue('buffer_load_dwordx4 %s, v%d, %s, s%d offen nt' % (vr(r, 4), vt, srd(SRD_A), sLd),
                     'st1' if i < 16 else 'st2')
        if i == o.bd - 1:
            g.sec('CB', True)
            g.post()
            a('s_lshr_b32 s%d, s%d, 1' % (sKt, S_WAVE))
            a('s_and_b32 s%d, s%d, 1' % (sHh, S_WAVE))
            a('s_mov_b32 s%d, 0x%x' % (sC, f32bits(G.SCALE_LOG2E)))
            a('s_barrier')
        a('s_addk_i32 s%d, 8192' % sLd)
        if i == o.qev:
            g.lds_signal(G.C_OK, T, T + 1)
    if o.spf:
        a('s_lshl_b32 s7, s%d, 10' % S_WAVE)
        a('s_add_u32 s7, s7, 131072')
        a('s_mov_b32 m0, s7')
        a('s_mov_b32 s7, s%d' % sLd)
        for i in range(o.spf):
            vm.wait_n(o.spd - 1)
            vm.issue('buffer_load_dwordx4 v%d, %s, s7 offen lds' % (VB8, srd(SRD_A)), 'pf')
            a('s_addk_i32 s7, 8192')
    g.sec('CR', True)
    g.stamp(vm, 0, T)
    VA, VA1, VTM, VP, VPB, VAL, VQ = 4, 2, 5, 6, 7, 8, 3
    VTR = 9
    MRUN, LRUN = 13, 14
    S8 = 16
    a('v_and_b32 v%d, 15, v1' % T)
    a('v_lshlrev_b32 v%d, 10, v%d' % (VA, T))
    a('v_lshrrev_b32 v%d, 4, v1' % (T + 1))
    a('v_lshl_add_u32 v%d, v%d, 8, v%d' % (VA, T + 1, VA))
    a('v_lshl_add_u32 v%d, v%d, 4, v%d' % (VQ, T, VA))
    a('s_lshl_b32 s7, s%d, 14' % sHh)
    a('s_add_u32 s7, s7, 0x%x' % G.QST)
    a('v_add_u32 v%d, s7, v%d' % (VQ, VQ))
    a('v_and_b32 v%d, 3, v1' % (T + 2))
    a('v_lshl_add_u32 v%d, v%d, 6, v%d' % (VA, T + 2, VA))
    a('v_bfe_u32 v%d, v1, 2, 2' % (T + 2))
    a('v_lshl_add_u32 v%d, v%d, 4, v%d' % (VA, T + 2, VA))
    a('s_lshl_b32 s7, s%d, 14' % sKt)
    a('v_add_u32 v%d, s7, v%d' % (VA, VA))
    a('v_add_u32 v%d, 0x10000, v%d' % (VA1, VA))
    a('s_lshl_b32 s7, s%d, 6' % sHh)
    a('s_add_u32 s7, s7, 0x%x' % G.TMAX)
    a('v_lshl_add_u32 v%d, v%d, 2, s7' % (VTM, T))
    a('s_lshl_b32 s7, s%d, 10' % sKt)
    a('s_lshl_b32 s%d, s%d, 9' % (sOff, sHh))
    a('s_add_u32 s7, s7, s%d' % sOff)
    a('s_add_u32 s7, s7, 0x%x' % G.PBUF)
    a('v_lshl_add_u32 v%d, v%d, 5, s7' % (VP, T))
    a('v_lshl_add_u32 v%d, v%d, 3, v%d' % (VP, T + 1, VP))
    a('v_and_b32 v%d, 31, v1' % (T + 2))
    a('v_lshlrev_b32 v%d, 5, v%d' % (VPB, T + 2))
    a('v_lshrrev_b32 v%d, 5, v1' % (T + 3))
    a('v_lshl_add_u32 v%d, v%d, 4, v%d' % (VPB, T + 3, VPB))
    a('v_add_u32 v%d, 0x%x, v%d' % (VPB, G.PBUF, VPB))
    a('v_lshlrev_b32 v%d, 2, v%d' % (VAL, T + 2))
    a('v_add_u32 v%d, 0x%x, v%d' % (VAL, G.ALPHA, VAL))
    a('v_bfe_u32 v%d, v1, 2, 2' % (T + 2))
    a('v_lshl_add_u32 v%d, v%d, 3, v%d' % (T + 4, T + 3, T + 2))
    a('v_lshlrev_b32 v%d, 10, v%d' % (T + 4, T + 4))
    a('v_and_b32 v%d, 1, v1' % (T + 5))
    a('v_lshl_add_u32 v%d, v%d, 3, v%d' % (T + 4, T + 5, T + 4))
    a('s_lshl_b32 s7, s%d, 8' % sKt)
    a('v_add_u32 v%d, s7, v%d' % (T + 4, T + 4))
    a('v_bfe_u32 v%d, v1, 4, 1' % (T + 5))
    a('v_lshlrev_b32 v%d, 1, v%d' % (T + 5, T + 5))
    a('v_bfe_u32 v%d, v1, 1, 1' % T)
    a('v_or_b32 v%d, v%d, v%d' % (T + 5, T + 5, T))
    a('s_lshl_b32 s7, s%d, 3' % sHh)
    a('v_or_b32 v%d, s7, v%d' % (T + 5, T + 5))
    a('v_lshlrev_b32 v%d, 2, v%d' % (T + 2, T + 2))
    a('v_xor_b32 v%d, v%d, v%d' % (T + 5, T + 5, T + 2))
    a('v_lshlrev_b32 v%d, 1, v%d' % (T + 3, T + 3))
    a('v_xor_b32 v%d, v%d, v%d' % (T + 5, T + 5, T + 3))
    for hf in range(2):
        for ct in range(2):
            a('v_xor_b32 v%d, %d, v%d' % (T, (4 * ct) ^ hf, T + 5))
            a('v_lshl_add_u32 v%d, v%d, 4, v%d' % (VTR + 2 * hf + ct, T, T + 4))
            if hf:
                a('v_add_u32 v%d, 0x1000, v%d' % (VTR + 2 * hf + ct, VTR + 2 * hf + ct))
    a('v_mov_b32 v%d, 0xff800000' % MRUN)
    a('v_mov_b32 v%d, 0' % LRUN)
    a('v_cmp_gt_u32 s[%d:%d], 16, v1' % (S_MK, S_MK + 1))
    a('s_cmp_eq_u32 s%d, 0' % sKt)
    a('s_cselect_b32 s%d, 0xffff, 0' % S_MK2)
    a('s_mov_b32 s%d, 0' % (S_MK2 + 1))
    vm.wait('st1')
    g.stamp(vm, 1, T)
    a('s_barrier')
    if o.cut & 2:
        a('s_branch L_END')
    g.stamp(vm, 2, T)
    def st1():
        a('s_lshl_b32 s7, s%d, 10' % S_WAVE)
        a('s_add_u32 s7, s7, 0x%x' % G.QST)
        a('v_lshl_add_u32 v%d, v1, 4, s7' % VQ)
        sync()
        for i in range(4):
            a('ds_write_b128 v%d, %s offset:%d' % (VQ, vr(ST1 + 4 * i, 4), i * 8192))
    if not o.fq:
        for ks in range(16):
            a('v_xor_b32 v%d, 0x%x, v%d' % (T + (ks & 1), ks << 4, VQ))
            a('ds_read_b128 %s, v%d' % (vr(Q + 4 * ks, 4), T + (ks & 1)))
        st1()
    g.stamp(vm, 3, T)

    sPv = S_T + 15

    def pre_setup(off):
        mk_srd(a, G.SRD_B, P_V, 134217728)
        a('s_bfe_u32 s7, s%d, 0x10002' % S_SLOT)
        a('s_lshl1_add_u32 s7, s7, s%d' % sHh)
        a('s_lshl_b32 s7, s7, 5')
        a('s_add_u32 s7, s7, s%d' % S_H)
        a('s_lshl_b32 s7, s7, 20')
        a('s_lshl_b32 s%d, s%d, 10' % (sPv, sKt))
        a('s_add_u32 s%d, s%d, s7' % (sPv, sPv))
        a('s_add_u32 s%d, s%d, 0x%x' % (sPv, sPv, 0xC0000 + off * 1024))
        a('s_lshl_b32 s7, s%d, 10' % S_WAVE)
        a('s_add_u32 s7, s7, 131072')
        a('s_mov_b32 m0, s7')
        a('v_lshlrev_b32 v15, 4, v1')

    def pre_load():
        vm.issue('buffer_load_dwordx4 v15, %s, s%d offen lds' % (srd(G.SRD_B), sPv), 'pre')
        a('s_addk_i32 s%d, 4096' % sPv)

    def scores2(order, mid, AOB, pre=None, fq=False):
        nb = len(AOB)
        for t in order:
            if t == order[1]:
                mid()

            m = 2 if fq and t == order[0] else 1

            def rd(n):
                vt = T + (n % 3)
                if m == 2:
                    a('v_xor_b32 v%d, 0x%x, v%d' % (T + 3, n << 4, VQ))
                    a('ds_read_b128 %s, v%d' % (vr(Q + 4 * n, 4), T + 3))
                a('v_xor_b32 v%d, 0x%x, v%d' % (vt, n << 4, VA1 if t else VA))
                a('ds_read_b128 %s, v%d' % (vr(AOB[n % nb], 4), vt))
            for n in range(nb - 1):
                rd(n)
            for ks in range(16):
                if pre and (16 * (t != order[0]) + ks) in pre:
                    pre_load()
                if ks + nb - 1 < 16:
                    rd(ks + nb - 1)
                    a('s_waitcnt lgkmcnt(%d)' % (m * (nb - 1)))
                else:
                    a('s_waitcnt lgkmcnt(%d)' % (m * (15 - ks)))
                a('v_mfma_f32_16x16x32_bf16 %s, %s, %s, %s' % (
                    vr(S8 + 4 * t, 4), vr(AOB[ks % nb], 4), vr(Q + 4 * ks, 4), '0' if ks == 0 else vr(S8 + 4 * t, 4)))
        a('v_max3_f32 v%d, v%d, v%d, v%d' % (T, S8, S8 + 1, S8 + 2))
        a('v_max3_f32 v%d, v%d, v%d, v%d' % (T, T, S8 + 3, S8 + 4))
        a('v_max3_f32 v%d, v%d, v%d, v%d' % (T, T, S8 + 5, S8 + 6))
        a('v_max_f32 v%d, v%d, v%d' % (T, T, S8 + 7))
        a('v_mov_b32 v%d, v%d' % (T + 1, T))
        a('v_permlane32_swap_b32 v%d, v%d' % (T, T + 1))
        a('v_max_f32 v%d, v%d, v%d' % (T, T, T + 1))
        a('v_mov_b32 v%d, v%d' % (T + 1, T))
        a('v_permlane16_swap_b32 v%d, v%d' % (T, T + 1))
        a('v_max_f32 v%d, v%d, v%d' % (T, T, T + 1))
        a('s_lshl_b32 s7, s%d, 7' % sKt)
        a('v_add_u32 v%d, s7, v%d' % (T + 1, VTM))
        a('s_mov_b64 exec, s[%d:%d]' % (S_MK, S_MK + 1))
        a('ds_write_b32 v%d, v%d' % (T + 1, T))
        a('s_mov_b64 exec, -1')

    def softmax(last):
        for k in range(4):
            a('ds_read_b32 v%d, v%d offset:%d' % (T + k, VTM, k * 128))
        a('s_waitcnt lgkmcnt(0)')
        a('v_max3_f32 v%d, v%d, v%d, v%d' % (T, T, T + 1, T + 2))
        a('v_max_f32 v%d, v%d, v%d' % (T, T, T + 3))
        a('v_mul_f32 v%d, s%d, v%d' % (T, sC, T))
        a('v_max_f32 v%d, v%d, v%d' % (T, T, MRUN))
        a('v_sub_f32 v%d, v%d, v%d' % (T + 1, MRUN, T))
        a('v_exp_f32 v%d, v%d' % (T + 1, T + 1))
        a('v_mov_b32 v%d, v%d' % (MRUN, T))
        for k in range(8):
            a('v_fma_f32 v%d, v%d, s%d, -v%d' % (S8 + k, S8 + k, sC, T))
        for k in range(8):
            a('v_exp_f32 v%d, v%d' % (S8 + k, S8 + k))
        for k in range(4):
            a('v_cvt_pk_bf16_f32 v%d, v%d, v%d' % (24 + k, S8 + 2 * k, S8 + 2 * k + 1))
        a('ds_write_b64 v%d, v[24:25]' % VP)
        a('ds_write_b64 v%d, v[26:27] offset:4096' % VP)
        a('v_add_u32 v%d, 0x%x, v%d' % (T + 2, (G.ALPHA - G.TMAX) & 0xffffffff, VTM))
        a('s_mov_b64 exec, s[%d:%d]' % (S_MK2, S_MK2 + 1))
        a('ds_write_b32 v%d, v%d' % (T + 2, T + 1))
        a('s_mov_b64 exec, -1')
        a('v_mul_f32 v%d, v%d, v%d' % (LRUN, LRUN, T + 1))
        for st in (4, 2, 1):
            for k in range(st):
                a('v_add_f32 v%d, v%d, v%d' % (S8 + k, S8 + k, S8 + k + st))
        a('v_add_f32 v%d, v%d, v%d' % (LRUN, LRUN, S8))
        if last:
            a('v_mov_b32 v%d, v%d' % (T, LRUN))
            a('v_permlane32_swap_b32 v%d, v%d' % (LRUN, T))
            a('v_add_f32 v%d, v%d, v%d' % (LRUN, LRUN, T))
            a('v_mov_b32 v%d, v%d' % (T, LRUN))
            a('v_permlane16_swap_b32 v%d, v%d' % (LRUN, T))
            a('v_add_f32 v%d, v%d, v%d' % (LRUN, LRUN, T))
            a('s_lshl_b32 s7, s%d, 7' % sKt)
            a('s_add_u32 s7, s7, 0x%x' % (G.LBUF - G.TMAX))
            a('v_add_u32 v%d, s7, v%d' % (T + 1, VTM))
            a('v_add_u32 v%d, 0x%x, v%d' % (T + 2, G.MBUF - G.TMAX, VTM))
            a('s_mov_b64 exec, s[%d:%d]' % (S_MK, S_MK + 1))
            a('ds_write_b32 v%d, v%d' % (T + 1, LRUN))
            a('s_mov_b64 exec, s[%d:%d]' % (S_MK2, S_MK2 + 1))
            a('ds_write_b32 v%d, v%d' % (T + 2, MRUN))
            a('s_mov_b64 exec, -1')

    def ctx(first):
        PB = 16
        CO = [24, 28, T, T + 4]
        if not first:
            a('ds_read_b32 v15, v%d' % VAL)

        def rd(kk):
            if kk == 4:
                for v in range(4):
                    a('v_add_u32 v%d, 0x10000, v%d' % (VTR + v, VTR + v))
            a('ds_read_b128 %s, v%d offset:%d' % (vr(PB + 4 * (kk & 1), 4), VPB, kk * 1024))
            for ct in range(2):
                c = CO[(2 * kk + ct) & 3]
                a('ds_read_b64_tr_b16 v[%d:%d], v%d offset:%d' % (c, c + 1, VTR + ct, (kk & 3) * 16384))
                a('ds_read_b64_tr_b16 v[%d:%d], v%d offset:%d' % (c + 2, c + 3, VTR + 2 + ct, (kk & 3) * 16384))
        rd(0)
        if not first:
            a('s_waitcnt lgkmcnt(5)')
            for k in range(32):
                a('v_mul_f32 v%d, v15, v%d' % (ACC + k, ACC + k))
        for kk in range(8):
            if kk == 4:
                a('s_barrier')
            if first and kk in (4, 5) and not o.q3r:
                for i in range(4 * (kk - 4), 4 * (kk - 4) + 4):
                    a('s_mov_b32 m0, s%d' % sM0)
                    a('s_add_u32 s%d, s%d, 8192' % (sM0, sM0))
                    vm.issue('buffer_load_dwordx4 v%d, %s, s%d offen nt lds' % (15 if i & 1 else 3, srd(SRD_A), sLd), 'q3')
                    a('s_add_u32 s%d, s%d, 8192' % (sLd, sLd))
            if kk < 7:
                rd(kk + 1)
                a('s_waitcnt lgkmcnt(7)')
            else:
                a('s_waitcnt lgkmcnt(2)')
            for ct in range(2):
                if ct == 1:
                    a('s_waitcnt lgkmcnt(%d)' % (5 if kk < 7 else 0))
                c = CO[(2 * kk + ct) & 3]
                a('v_mfma_f32_32x32x16_bf16 %s, %s, %s, %s' % (
                    vr(ACC + 16 * ct, 16), vr(c, 4), vr(PB + 4 * (kk & 1), 4),
                    '0' if (first and kk == 0) else vr(ACC + 16 * ct, 16)))
        if first:
            for v in range(4):
                a('v_add_u32 v%d, 0xffff0000, v%d' % (VTR + v, VTR + v))

    if o.pw1:
        pre_setup(o.po1)
    def mid1():
        if o.fq:
            st1()
        sync()
    scores2((0, 1), mid1, [24, 28, T + 4] + [ACC + 16 + 4 * k for k in range(o.nb - 3)], [o.pws * k for k in range(o.pw1)],
            fq=bool(o.fq))
    g.stamp(vm, 8, T + 2)
    sync()
    softmax(False)
    a('v_lshlrev_b32 v3, 4, v1')
    a('v_xor_b32 v3, s%d, v3' % sSw)
    a('v_xor_b32 v15, 32, v3')
    a('s_lshl_b32 s%d, s%d, 10' % (sM0, S_WAVE))
    sync()
    g.stamp(vm, 11, T + 2)
    ctx(True)
    a('s_lshl_b32 s7, s%d, 10' % S_WAVE)
    a('s_add_u32 s7, s7, 0x%x' % G.RING1)
    a('v_lshl_add_u32 v3, v1, 4, s7')
    vm.wait('st2')
    a('s_barrier')
    g.stamp(vm, 4, T + 2)
    for i in range(8):
        a('ds_write_b128 v3, %s offset:%d' % (vr(ST2 + 4 * i, 4), i * 8192))
    if not o.q3r:
        sync()
    else:
        a('s_waitcnt lgkmcnt(%d)' % (8 - (o.nb - 3)))
    g.stamp(vm, 5, T + 2)

    def mid2():
        vm.wait('q3')
        a('s_barrier')
    if o.pw2:
        pre_setup(o.po2)
    scores2((0, 1) if o.q3r else (1, 0), mid2, [24, 28, T + 4] + [ST2 + 4 * k for k in range(o.nb - 3)], [o.pws * k for k in range(o.pw2)])
    g.stamp(vm, 13, T + 2)
    sync()
    softmax(True)
    VC = 98
    a('v_and_b32 v%d, 31, v1' % T)
    a('v_lshlrev_b32 v%d, 7, v%d' % (VC, T))
    a('v_lshrrev_b32 v%d, 5, v1' % (T + 1))
    a('v_and_b32 v%d, 7, v1' % T)
    a('v_xor_b32 v%d, v%d, v%d' % (T + 1, T, T + 1))
    a('v_lshl_add_u32 v%d, v%d, 4, v%d' % (VC, T + 1, VC))
    a('s_lshl_b32 s7, s%d, 12' % S_WAVE)
    a('v_add_u32 v%d, s7, v%d' % (VC, VC))
    a('v_lshl_add_u32 v99, v1, 4, s7')
    a('v_lshrrev_b32 v%d, 3, v1' % (T + 1))
    a('v_xor_b32 v%d, v%d, v%d' % (T, T, T + 1))
    a('v_lshlrev_b32 v100, 7, v%d' % (T + 1))
    a('v_lshl_add_u32 v100, v%d, 4, v100' % T)
    a('s_lshl_b32 s%d, s%d, 15' % (sX, sBi))
    a('s_add_u32 s%d, s%d, s7' % (sX, sX))
    a('s_add_u32 s%d, s%d, 0x%x' % (sX, sX, G.WS_CTX))
    sync()
    ctx(False)
    g.stamp(vm, 6, T)
    for ct in range(2):
        for k in range(2):
            r0, r1 = ACC + 16 * ct + 8 * k, ACC + 16 * ct + 8 * k + 4
            for e in range(4):
                a('v_permlane32_swap_b32 v%d, v%d' % (r0 + e, r1 + e))
            d = 16 + 4 * (2 * ct + k)
            a('v_cvt_pk_bf16_f32 v%d, v%d, v%d' % (d, r0, r0 + 1))
            a('v_cvt_pk_bf16_f32 v%d, v%d, v%d' % (d + 1, r0 + 2, r0 + 3))
            a('v_cvt_pk_bf16_f32 v%d, v%d, v%d' % (d + 2, r1, r1 + 1))
            a('v_cvt_pk_bf16_f32 v%d, v%d, v%d' % (d + 3, r1 + 2, r1 + 3))
            a('v_xor_b32 v%d, 0x%x, v%d' % (T + ((2 * ct + k) & 1), (4 * ct + 2 * k) << 4, VC))
            a('ds_write_b128 v%d, %s' % (T + ((2 * ct + k) & 1), vr(d, 4)))
    for i in range(4):
        a('ds_read_b128 %s, v99 offset:%d' % (vr(32 + 4 * i, 4), i * 1024))
    for i in range(4):
        a('s_waitcnt lgkmcnt(%d)' % (3 - i))
        vm.issue('buffer_store_dwordx4 %s, v100, %s, s%d offen offset:%d sc1%s' % (
            vr(32 + 4 * i, 4), srd(SRD_WS), sX, i * 1024, ' nt' if o.cnt & 1 else ''), 'ctx')
    g.stamp(vm, 7, T)
    g.nonce_lds(T)
    a('v_and_b32 v%d, 31, v1' % T)
    a('v_lshlrev_b32 v3, 2, v%d' % T)
    a('v_add_u32 v3, 0x%x, v3' % G.LBUF)
    a('s_lshl_b32 s7, s%d, 9' % sBi)
    a('s_add_u32 s7, s7, 0x%x' % G.WS_MLB)
    a('s_cmp_eq_u32 s%d, 0' % S_WAVE)
    a('s_cselect_b32 s7, s7, 0x40000000')
    a('v_lshl_add_u32 v4, v%d, 4, s7' % T)
    g.set_tag(20)
    for k in range(4):
        a('ds_read_b32 v%d, v3 offset:%d' % (16 + k, k * 128))
    a('ds_read_b32 v20, v3 offset:%d' % (G.MBUF - G.LBUF))
    a('s_waitcnt lgkmcnt(0)')
    a('v_add_f32 v16, v16, v17')
    a('v_add_f32 v18, v18, v19')
    a('v_add_f32 v21, v16, v18')
    vm.wait_all()
    a('s_barrier')
    if o.cut & 1:
        a('s_branch L_END')
    a('s_mov_b64 exec, 0xffffffff')
    a('buffer_store_dwordx4 v[20:23], v4, %s, 0 offen sc1' % srd(SRD_WS))
    a('s_mov_b64 exec, -1')
    g.stamp(vm, 9, T)
    a('v_lshlrev_b32 v2, 4, v1')
    if o.bea:
        mk_srd(a, SRD_A, P_V, 134217728)
        a('v_and_b32 v8, 15, v1')
        a('s_lshl_b32 s7, s%d, 8' % S_G)
        a('s_add_u32 s7, s7, 0x%x' % G.WS_BEA)
        a('v_lshl_add_u32 v9, v8, 4, s7')
        a('s_sleep %d' % o.pvs)
        a('buffer_load_dwordx4 v[12:15], v9, %s, 0 offen sc1' % srd(SRD_WS))
        a('s_memrealtime s[%d:%d]' % (G.S_TS, G.S_TS + 1))
        a('s_waitcnt vmcnt(0) lgkmcnt(0)')
        a('s_mul_i32 s7, s%d, %d' % (G.S_TS, G.NS))
        a('v_sub_u32 v12, s7, v12')
        g.bad(12, T)
        a('v_cndmask_b32 v12, v12, 0, vcc')
        a('v_lshl_add_u32 v12, v12, 4, v8')
        a('v_mov_b32 v13, 0')
        for i in range(16):
            a('v_readlane_b32 s%d, v12, %d' % (S_T + 12 + (i & 3), i))
            if i >= 2:
                a('v_cmp_lt_u32 vcc, s%d, v12' % (S_T + 12 + ((i - 2) & 3)))
                a('v_addc_co_u32 v13, vcc, 0, v13, vcc')
        for i in (14, 15):
            a('v_cmp_lt_u32 vcc, s%d, v12' % (S_T + 12 + (i & 3)))
            a('v_addc_co_u32 v13, vcc, 0, v13, vcc')
        a('s_sub_u32 s7, s%d, 8' % S_SLOT)
        if o.bea == 2:
            a('s_lshr_b32 s%d, s7, 2' % (S_T + 13))
            a('s_and_b32 s7, s7, 3')
        a('v_cmp_eq_u32 vcc, s7, v13')
        a('s_ff1_i32_b32 s7, vcc_lo')
        a('s_and_b32 s7, s7, 15')
        a('s_lshr_b32 s%d, s7, 2' % (S_T + 12))
        a('s_lshl_b32 s%d, s%d, 3' % (S_T + 12, S_T + 12))
        a('s_add_u32 s%d, s%d, s%d' % (S_T + 12, S_T + 12, S_G))
        a('s_and_b32 s7, s7, 3')
        a('s_lshl2_add_u32 s7, s%d, s7' % (S_T + 12))
        a('s_lshl_b32 s7, s7, 20')
        a('s_lshl_b32 s%d, s%d, 10' % (S_T + 12, S_WAVE))
        a('s_add_u32 s%d, s%d, s7' % (S_T + 12, S_T + 12))
        a('s_add_u32 s%d, s%d, %d' % (S_T + 12, S_T + 12, 0x100000 - (8192 if o.pvb else o.pv * 1024)))
        if o.bea == 2:
            a('s_mul_i32 s7, s%d, %d' % (S_T + 13, o.pv * 1024))
            a('s_sub_u32 s%d, s%d, s7' % (S_T + 12, S_T + 12))
        for k in range(o.pv // 8):
            if k >= o.pvd:
                a('s_waitcnt vmcnt(%d)' % (o.pvd - 1))
            a('buffer_load_dwordx4 v[8:11], v2, %s, s%d offen' % (srd(SRD_A), S_T + 12))
            a('s_addk_i32 s%d, %d' % (S_T + 12, -8192 if o.pvb else 8192))
    elif o.pv:
        mk_srd(a, SRD_A, P_V, 134217728)
        a('s_bfe_u32 s7, s%d, 0x10002' % S_SLOT)
        a('s_lshl_b32 s7, s7, 6')
        a('s_add_u32 s7, s7, s%d' % S_H)
        a('s_lshl_b32 s7, s7, 20')
        a('s_lshl_b32 s%d, s%d, 10' % (S_T + 12, S_WAVE))
        a('s_add_u32 s%d, s%d, s7' % (S_T + 12, S_T + 12))
        a('s_add_u32 s%d, s%d, %d' % (S_T + 12, S_T + 12, 0xC0000 + (G.NS * (G.NQ - o.hj) if o.hj else 256) * 1024 - 8192))
        a('s_add_u32 s%d, s%d, 0x2000000' % (S_T + 13, S_T + 12))
        a('s_mov_b32 s%d, %d' % (S_T + 14, o.pv // 8))
        if o.xr:
            a('s_and_b32 s7, s%d, 4' % S_SLOT)
            a('s_add_u32 s7, s7, s%d' % S_SLOT)
            a('s_add_u32 s%d, s7, 8' % (S_T + 16))
            a('s_add_u32 s%d, s7, 12' % (S_T + 17))
            g.xkey(S_T + 16, S_T + 16)
            g.xkey(S_T + 17, S_T + 17)
        if o.pvs:
            a('s_sleep %d' % o.pvs)
        else:
            a('s_waitcnt vmcnt(0)')
            a('s_barrier')
        Lp = a.uniq('PV')
        a.label(Lp)
        for k in range(2):
            a('s_waitcnt vmcnt(%d)' % (o.pvd - 1))
            if o.xr:
                a('s_xor_b32 s7, s%d, s%d' % (S_T + 12 + k, S_T + 16 + k))
            a('buffer_load_dwordx4 v[8:11], v2, %s, s%d offen%s' % (srd(SRD_A), 7 if o.xr else S_T + 12 + k, G.PFL[o.pfl]))
            a('s_sub_u32 s%d, s%d, 8192' % (S_T + 12 + k, S_T + 12 + k))
        a('s_sub_u32 s%d, s%d, 1' % (S_T + 14, S_T + 14))
        a('s_cmp_lg_u32 s%d, 0' % (S_T + 14))
        a('s_cbranch_scc1 %s' % Lp)
    mk_srd(a, SRD_C, P_OUT, 8192)
    a('s_lshl_b32 s7, s%d, 3' % sBi)
    a('s_add_u32 s7, s7, s%d' % S_WAVE)
    a('s_lshl_b32 s7, s7, 10')
    a('s_add_u32 s7, s7, 0x%x' % G.WS_Y)
    a('v_add_u32 v4, s7, v2')
    a('s_bfe_u32 s7, s%d, 0x20003' % sBi)
    a('s_lshl_b32 s7, s7, 11')
    a('s_lshr_b32 s%d, s%d, 5' % (sOff, sBi))
    a('s_lshl_b32 s%d, s%d, 10' % (sOff, sOff))
    a('s_add_u32 s7, s7, s%d' % sOff)
    a('s_and_b32 s%d, s%d, 7' % (sOff, sBi))
    a('s_lshl_b32 s%d, s%d, 7' % (sOff, sOff))
    a('s_add_u32 s7, s7, s%d' % sOff)
    a('v_and_b32 v5, 7, v1')
    a('v_lshl_add_u32 v5, v5, 4, s7')
    a('v_lshrrev_b32 v6, 4, v1')
    a('v_lshl_add_u32 v5, v6, 2, v5')
    a('s_mov_b32 s%d, 0x00ff00ff' % S_MK3)
    a('s_mov_b32 s%d, 0x00ff00ff' % (S_MK3 + 1))
    a('s_lshl_b32 s7, s%d, 10' % S_WAVE)
    a('s_add_u32 s7, s7, 0x%x' % G.PBUF)
    a('v_add_u32 v6, s7, v2')

    def mk(r):
        return (['buffer_load_dwordx4 %s, v4, %s, 0 offen sc1' % (vr(r, 4), srd(SRD_WS))], [r])
    g.poll(vm, mk(32)[0], 32, T, sleep=o.rsl, anyok=True)
    g.stamp(vm, 10, T)
    LR = a.uniq('RD')
    g.unpack4(64, 32)
    a('s_cbranch_vccz %s' % LR)
    g.poll_pipe(vm, mk, [32, 36, 40][:o.rpn], lambda r: g.unpack4(64, r), gap=o.rpp)
    a.label(LR)
    a('ds_write_b128 v6, v[64:67]')
    g.stamp(vm, 12, T)
    sync()
    a('s_cmp_lg_u32 s%d, 0' % S_WAVE)
    a('s_cbranch_scc1 L_END')
    Y = 64
    for i in range(8):
        a('ds_read_b128 %s, v6 offset:%d' % (vr(Y + 4 * i, 4), 1024 * i))
    for e in range(2):
        y = Y + 16 * e
        a('s_waitcnt lgkmcnt(%d)' % (4 - 4 * e))
        for st in (8, 4):
            for k in range(0, st, 2):
                a('v_pk_add_f32 v[%d:%d], v[%d:%d], v[%d:%d]' % (y + k, y + k + 1, y + k, y + k + 1, y + k + st, y + k + st + 1))
    for k in range(4):
        a('v_permlane32_swap_b32 v%d, v%d' % (Y + k, Y + 16 + k))
    for k in range(4):
        a('v_add_f32 v%d, v%d, v%d' % (Y + k, Y + k, Y + 16 + k))
    for k in range(2):
        a('v_permlane16_swap_b32 v%d, v%d' % (Y + k, Y + 2 + k))
    for k in range(2):
        a('v_add_f32 v%d, v%d, v%d' % (Y + k, Y + k, Y + 2 + k))
    for k in range(2):
        a('v_add_f32_dpp v%d, v%d, v%d row_ror:8 row_mask:0xf bank_mask:0xf' % (Y + k, Y + k, Y + k))
    a('v_cvt_pk_bf16_f32 v8, v%d, v%d' % (Y, Y + 1))
    a('s_mov_b64 exec, s[%d:%d]' % (S_MK3, S_MK3 + 1))
    a('buffer_store_dword v8, v5, %s, 0 offen%s' % (srd(SRD_C), G.PFL[o.ofl]))
    a('s_mov_b64 exec, -1')
    g.end()


def c_svc(g):
    a, o = g.a, g.o
    vm = VM(a)
    g.sec('CSVC')
    a.label('L_CSVC')
    g.common(True)
    sS, sOff, sBi = S_T, S_T + 3, S_T + 4
    VT = 6
    ST3, GQ = 32, 96
    T = 160
    a('s_setprio 3')
    a('s_sub_u32 s%d, s%d, 8' % (sS, S_WAVE))
    ci(a, sBi)
    a('v_lshlrev_b32 v2, 4, v1')
    a('s_barrier')
    g.touch(9, 'CR')
    g.touch(10, 'CR2')
    L0 = a.uniq('C8')
    a('s_cmp_lg_u32 s%d, 0' % sS)
    a('s_cbranch_scc1 %s' % L0)
    a('s_sleep %d' % o.csl)
    if o.tlb & 4:
        mk_srd(a, SRD_C, P_OUT, 8192)
        a('v_mov_b32 v8, 0')
        a('s_lshl_b32 s7, s%d, 15' % sBi)
        a('s_add_u32 s7, s7, 0x%x' % G.WS_CTX)
        a('s_mov_b64 exec, 1')
        a('buffer_load_dword v9, v8, %s, 0 offen nt' % srd(SRD_C))
        if o.tlb & 8:
            a('buffer_load_dword v10, v8, %s, s7 offen nt' % srd(SRD_WS))
        a('s_mov_b64 exec, -1')
    g.nonce_get(vm, T)
    g.nonce_share(T)
    a.label(L0)
    a('s_lshr_b32 s7, s%d, 4' % sBi)
    a('s_lshl_b32 s7, s7, 16')
    a('s_lshl_b32 s%d, s%d, 14' % (sOff, sS))
    a('s_add_u32 s7, s7, s%d' % sOff)
    a('s_add_u32 s7, s7, 0x%x' % G.WS_QABS)
    a('v_lshl_add_u32 v4, v1, 4, s7')
    a('s_and_b32 s7, s%d, 1' % sS)
    a('s_lshl_b32 s7, s7, 7')
    a('v_lshlrev_b32 v3, 3, v1')
    a('v_xor_b32 v3, s7, v3')
    a('s_lshl_b32 s7, s%d, 13' % sS)
    a('s_add_u32 s7, s7, 0x%x' % G.QST)
    a('v_add_u32 v3, s7, v3')
    if o.q3r:
        mk_srd(a, SRD_A, P_CKV, 16777216)
        a('s_lshl_b32 s7, s%d, 18' % sBi)
        a('s_lshl_b32 s%d, s%d, 10' % (S_T + 5, sS))
        a('s_add_u32 s%d, s%d, s7' % (S_T + 5, S_T + 5))
        a('s_add_u32 s%d, s%d, %d' % (S_T + 5, S_T + 5, 192 * 1024))
        a('s_lshl_b32 s7, s%d, 6' % sS)
        a('v_xor_b32 v12, s7, v2')
        for k in range(1, 4):
            a('v_xor_b32 v%d, %d, v12' % (12 + k, k << 4))
    if o.cut & 16:
        a('s_branch L_CCUT')
    sL3 = S_T + 5

    def q3(i0, i1):
        for i in range(i0, i1):
            vm.issue('buffer_load_dwordx4 %s, v%d, %s, s%d offen nt' % (
                vr(ST3 + 4 * i, 4), 12 + (i & 3), srd(SRD_A), sL3), ('st3', i))
            a('s_addk_i32 s%d, 4096' % sL3)
    g.nonce_lds(T, sleep=4)
    if o.q3r:
        for i in range(o.q3e):
            vm.wait_n(o.q3d - 1)
            q3(i, i + 1)
    g.stamp(vm, 1, T)
    if o.qev:
        g.lds_wait(G.C_OK, 8, T, T + 1, sleep=2)
    a('s_sleep %d' % o.csl2)
    for k in range(1, 4):
        a('s_mov_b32 s%d, %d' % (S_T + 6 + k, 4096 * k))
    loads = ['buffer_load_dwordx4 %s, v4, %s, %s offen offset:%d sc1' % (
        vr(GQ + 4 * i, 4), srd(SRD_WS), '0' if i < 4 else 's%d' % (S_T + 6 + (i >> 2)), (i & 3) * 1024) for i in range(16)]
    if o.cpre:
        g.poll(vm, loads[:1], GQ, T, sleep=o.cpre, anyok=bool(o.cany))
    g.stamp(vm, 0, T)
    g.poll_sel(vm, loads, [GQ + 4 * i for i in range(16)], T, plain=bool(o.qpl))
    if o.q3r:
        q3(o.q3e, min(o.q3e + 8, 16))
    for i in range(16):
        if i & 1 == 0:
            a('v_xor_b32 v%d, 0x%x, v3' % (VT + ((i >> 1) & 1), (i >> 1) << 4))
        a('ds_write_b64 v%d, %s offset:%d' % (VT + ((i >> 1) & 1), vr(GQ + 4 * i, 2), i * 512))
    a.label('L_CCUT')
    a('s_waitcnt lgkmcnt(0)')
    a('s_barrier')
    g.stamp(vm, 3, T)
    if o.q3r:
        a('s_setprio 0')
        for k in range(5):
            if k == o.q3b:
                q3(min(o.q3e + 8, 16), 16)
            a('s_barrier')
        a('s_setprio 3')
        a('s_lshl_b32 s7, s%d, 10' % sS)
        a('v_add_u32 v3, s7, v2')
        for i in range(16):
            vm.wait(('st3', i))
            a('ds_write_b128 v3, %s offset:%d' % (vr(ST3 + 4 * i, 4), i * 4096))
        a('s_waitcnt lgkmcnt(0)')
        g.stamp(vm, 4, T)
    g.end()
```

```python
import sys
import os
sys.path.insert(0, os.path.dirname(os.path.abspath(__file__)))
from asmlib import Asm, vr, sr
import struct

NAME = 'concat_heads__sliding_block_cached__compressed_kv_cla__decode'


class Opt:
    dev = 0
    hs = 0
    spin = 200000
    kd = 3
    kd1 = 4
    kn1 = 0
    rot = 0
    bd = 4
    ud = 3
    sdu = 2
    sdx = 0
    xmap = 0
    bap = 0
    noswz = 0
    rsl = 20
    xsl = 2
    hold = 1
    ev = 1
    xsw = 16
    q3e = 0
    q3d = 2
    fq = 0
    nl = 0
    qg = 2
    wrot = 0
    pvb = 0
    bea = 0
    qsl = 8
    vsl = 70
    hx = 2
    bx = 6
    kw = 0
    kwl = 4
    knb = 0
    qb = 5
    pax = 0
    pad = 8
    pah = 1
    xdl = 0
    udl = 0
    vdl = 0
    q3r = 1
    q3b = 2
    hnt = 0
    cnt = 0
    xr = 0
    xm = 1
    pw1 = 0
    pw2 = 0
    po1 = 8
    po2 = 130
    pws = 5
    wbx = 0
    wb = 0
    ofl = 0
    tlb = 0
    tls = 16
    srot = 0
    spf = 0
    spd = 2
    pfl = 0
    lay = 1
    psl8 = 40
    dump = 0
    kdl = 5
    knl = 0
    bal = 1
    hj = 0
    vhd = 3
    cpf = 0
    n2b = 2
    n2s = 4
    n3b = 0
    q3sl = 8
    kh = 0
    qpl = 0
    qev = 21
    pw = 0
    q3p = 3
    cany = 1
    xpp = 4
    upp = 2
    rpp = 4
    pf = 0
    pfe = 0
    pfd = 8
    ndb = 16
    n3 = 0
    bd3e = 2
    swp = 0
    n2 = 8
    nb = 7
    cpre = 0
    l2 = 1
    pv = 32
    pvd = 2
    rpn = 2
    pvs = 0
    cutsl = 1
    csl2 = 1
    asl = 16
    usl = 16
    cut = 0
    q0 = 16
    qr = 2
    bu = 1
    noclr = 0
    psl = 26
    wfe = 0
    nsl = 8
    ukd = 8
    ukd1 = 8
    ukn1 = 0
    bd3 = 8
    csl = 24
    wsl = 4
    wsl2 = 4


NW = 12
NS = 11
NQ = 24

WS_QABS = 0x000000
WS_QBP = 0x040000
WS_QAP = 0x080000
WS_CHK = 0x0C0000
WS_BEA = 0x0C2000
WS_OA = 0x0D0000
WS_MLB = 0x0E0000
WS_PH = 0x200000
WS_QAW = 0x180000
WS_Y = 0x100000
WS_CTX = 0x500000
WS_TS = 0x800000
WS_HS = 0xF00000
WS_SIZE = 0x1000000

RING0 = 0
RING1 = 65536
QST = 98304
MISC = 147456
C_CLR = MISC + 0
C_Q = MISC + 4
C_ML = MISC + 8
C_O = MISC + 12
C_ATT = MISC + 16
C_UK = MISC + 20
C_OK = MISC + 24
C_OK2 = MISC + 28
C_OB = MISC + 32
C_FL = MISC + 36
C_QST = MISC + 40
C_S0 = MISC + 44
C_Q3 = MISC + 48
C_X1 = MISC + 52
C_X2 = MISC + 56
C_X3 = MISC + 60
C_PA = MISC + 64
C_PB = MISC + 68
C_QA = MISC + 72
C_N = MISC + 76
C_PUB = MISC + 88
C_PF = MISC + 92
C_VH = MISC + 96
C_UI = MISC + 100
C_TS = MISC + 104
NONCE = MISC + 80
QBUF = MISC + 256
MLBUF = MISC + 512
OBUF = MISC + 1024
PT = MISC + 2048
PHL = MISC + 4096
OHB = MISC + 8192
MLS = MISC + 2048
PBUF = MISC + 4608
TMAX = MISC + 12800
LBUF = MISC + 13312
ALPHA = MISC + 15872
MBUF = MISC + 16000
PPART = 0
OPART = 65536
OPA = MISC + 4096
VST = 16384
LDS_BYTES = 163840

SCALE_LOG2E = 0.08838834764831845 * 1.4426950408889634


def f32bits(x):
    return struct.unpack('<I', struct.pack('<f', x))[0]


P_AX, P_K, P_V, P_WQ, P_WO, P_BX, P_CKV, P_BWQ, P_WUK, P_WUV, P_BWO, P_OUT, P_DBG, P_WS = [8 + 2 * i for i in range(14)]
S_WAVE, S_G, S_SLOT, S_H = 3, 4, 5, 6
SRD_WS, SRD_DBG = 36, 40
SRD_A, SRD_B, SRD_C, SRD_D = 44, 48, 52, 56
S_T = 60
S_SPIN = 80
S_TS = 82
S_EX = 84
S_MK = 86
S_MK2 = 88
S_MK3 = 90
S_LO, S_HI = 92, 93
S_XCC = 96
S_FAR = 97
S_NON = 94


PFL = ['', ' nt', ' sc0', ' sc1', ' sc0 sc1', ' sc0 nt', ' sc1 nt', ' sc0 sc1 nt']


class VM:
    def __init__(self, a):
        self.a = a
        self.q = []

    def issue(self, text, tag=None):
        self.a(text)
        self.q.append(tag)

    def wait(self, tag):
        if tag not in self.q:
            return
        idx = max(i for i, t in enumerate(self.q) if t == tag)
        n = len(self.q) - 1 - idx
        self.a('s_waitcnt vmcnt(%d)' % n)
        self.q = self.q[idx + 1:]

    def wait_n(self, n):
        if len(self.q) > n:
            self.a('s_waitcnt vmcnt(%d)' % n)
            self.q = self.q[len(self.q) - n:]

    def wait_all(self):
        self.a('s_waitcnt vmcnt(0)')
        self.q = []


def mk_srd(a, d, p, nbytes):
    a('s_mov_b32 s%d, s%d' % (d, p))
    a('s_and_b32 s%d, s%d, 0xffff' % (d + 1, p + 1))
    a('s_mov_b32 s%d, 0x%x' % (d + 2, nbytes))
    a('s_mov_b32 s%d, 0x20000' % (d + 3))


def srd(d):
    return 's[%d:%d]' % (d, d + 3)


class Gen:
    def __init__(self, opt):
        self.o = opt
        self.a = Asm()

    def stamp(self, vm, idx, vt):
        if not self.o.dev:
            return
        a = self.a
        a('s_memrealtime s[%d:%d]' % (S_TS, S_TS + 1))
        a('s_waitcnt lgkmcnt(0)')
        a('v_mov_b32 v%d, s%d' % (vt, S_TS))
        a('v_mov_b32 v%d, s%d' % (vt + 1, S_TS + 1))
        a('s_lshl3_add_u32 s%d, s%d, s%d' % (S_TS, S_SLOT, S_G))
        a('s_mul_i32 s%d, s%d, 12' % (S_TS, S_TS))
        a('s_add_u32 s%d, s%d, s%d' % (S_TS, S_TS, S_WAVE))
        a('s_lshl_b32 s%d, s%d, 7' % (S_TS, S_TS))
        a('s_add_u32 s%d, s%d, 0x%x' % (S_TS, S_TS, WS_TS + idx * 8))
        a('v_mov_b32 v%d, s%d' % (vt + 2, S_TS))
        a('s_mov_b64 s[%d:%d], exec' % (S_EX, S_EX + 1))
        a('s_mov_b64 exec, 1')
        vm.issue('buffer_store_dwordx2 v[%d:%d], v%d, %s, 0 offen' % (vt, vt + 1, vt + 2, srd(SRD_WS)), 'ts')
        a('s_mov_b64 exec, s[%d:%d]' % (S_EX, S_EX + 1))

    def sec(self, name, jump=False):
        if jump:
            self.a('s_branch L_%s' % name)
        self.a.raw(';@SEC %s' % name)
        if jump:
            self.a.label('L_%s' % name)

    def touch(self, wave, page):
        a = self.a
        if not self.o.lay:
            return
        a('s_cmp_eq_u32 s%d, %d' % (S_WAVE, wave))
        a('s_cbranch_scc1 LT_%s' % page)
        a.label('LR_%s' % page)

    def xkey(self, d, slot):
        a = self.a
        a('s_lshl3_add_u32 s%d, s%d, s%d' % (d, slot, S_G))
        a('s_mul_i32 s%d, s%d, %d' % (d, d, self.o.xm))
        a('s_lshl_b32 s%d, s%d, %d' % (d, d, self.o.xr))
        a('s_and_b32 s%d, s%d, 0x3ffff' % (d, d))

    def end(self, have=False):
        a = self.a
        if self.o.hs:
            a('s_mov_b64 exec, 1')
            if not have:
                a('s_memrealtime s[98:99]')
            a('s_lshl3_add_u32 s7, s%d, s%d' % (S_SLOT, S_G))
            a('s_mul_i32 s7, s7, 12')
            a('s_add_u32 s7, s7, s%d' % S_WAVE)
            a('s_lshl_b32 s7, s7, 3')
            a('s_add_u32 s7, s7, 0x%x' % WS_HS)
            a('v_mov_b32 v2, s7')
            a('s_waitcnt lgkmcnt(0)')
            a('v_mov_b32 v4, s100')
            a('v_mov_b32 v5, s98')
            a('buffer_store_dwordx2 v[4:5], v2, %s, 0 offen' % srd(SRD_WS))
        a('s_endpgm')

    def lds_signal(self, addr, va, vb):
        a = self.a
        a('v_mov_b32 v%d, 0x%x' % (va, addr))
        a('v_mov_b32 v%d, 1' % vb)
        a('s_waitcnt lgkmcnt(0)')
        a('s_mov_b64 exec, 1')
        a('ds_add_u32 v%d, v%d' % (va, vb))
        a('s_mov_b64 exec, -1')

    def lds_wait(self, addr, target, va, vb, sleep=4):
        a = self.a
        L = a.uniq('LW')
        Ld = a.uniq('LWD')
        a('v_mov_b32 v%d, 0x%x' % (va, addr))
        a('s_mov_b32 s%d, %d' % (S_SPIN, self.o.spin * 8))
        a.label(L)
        a('ds_read_b32 v%d, v%d' % (vb, va))
        a('s_waitcnt lgkmcnt(0)')
        a('v_readfirstlane_b32 s%d, v%d' % (S_T + 19, vb))
        a('s_cmp_ge_u32 s%d, %d' % (S_T + 19, target))
        a('s_cbranch_scc1 %s' % Ld)
        if sleep:
            a('s_sleep %d' % int(sleep))
        a('s_sub_u32 s%d, s%d, 1' % (S_SPIN, S_SPIN))
        a('s_cmp_lg_u32 s%d, 0' % S_SPIN)
        a('s_cbranch_scc1 %s' % L)
        a.label(Ld)

    def nonce_make(self, t):
        if self.o.noclr & 8:
            return
        a = self.a
        L = a.uniq('NM')
        a('s_lshl_b32 s7, s2, 4')
        a('s_add_u32 s7, s7, s%d' % S_WAVE)
        a('s_cmp_lg_u32 s7, %d' % (8 + (2048 if self.o.srot == 1 else 0)))
        a('s_cbranch_scc1 %s' % L)
        a('s_memrealtime s[%d:%d]' % (S_NON, S_NON + 1))
        mk_srd(a, SRD_DBG, P_DBG, 256)
        a('v_mov_b32 v%d, 0' % t)
        a('s_waitcnt lgkmcnt(0)')
        a('s_or_b32 s%d, s%d, 0x80000000' % (S_NON + 1, S_NON + 1))
        a('v_mov_b32 v%d, s%d' % (t + 2, S_NON))
        a('v_mov_b32 v%d, s%d' % (t + 3, S_NON + 1))
        a('s_mov_b64 exec, 1')
        a('buffer_store_dwordx2 v[%d:%d], v%d, %s, 0 offen sc1' % (t + 2, t + 3, t, srd(SRD_DBG)))
        a('s_mov_b64 exec, -1')
        a.label(L)

    def nonce_get(self, vm, t, sleep=4, dbl=0, sig=None):
        if self.o.noclr & 8:
            return
        a = self.a
        L, Ld = a.uniq('NG'), a.uniq('NGD')
        a('v_mov_b32 v%d, 0' % t)
        a('s_mov_b32 s%d, %d' % (S_SPIN, self.o.spin))
        if dbl:
            L2 = a.uniq('NG2')
            a('s_mov_b64 exec, 1')
            a('buffer_load_dwordx2 v[%d:%d], v%d, %s, 0 offen sc1' % (t + 4, t + 5, t, srd(SRD_DBG)))
            a('s_sleep %d' % dbl)
            a('buffer_load_dwordx2 v[%d:%d], v%d, %s, 0 offen sc1' % (t + 2, t + 3, t, srd(SRD_DBG)))
            a('s_mov_b64 exec, -1')
            if sig:
                self.lds_signal(sig, t + 6, t + 7)
            a('s_waitcnt vmcnt(1)')
            a('v_readfirstlane_b32 s%d, v%d' % (S_NON, t + 4))
            a('v_readfirstlane_b32 s%d, v%d' % (S_NON + 1, t + 5))
            a('s_cmp_lg_u32 s%d, 0' % (S_NON + 1))
            a('s_cbranch_scc1 %s' % Ld)
            a('s_branch %s' % L2)
        a.label(L)
        a('s_mov_b64 exec, 1')
        a('buffer_load_dwordx2 v[%d:%d], v%d, %s, 0 offen sc1' % (t + 2, t + 3, t, srd(SRD_DBG)))
        a('s_mov_b64 exec, -1')
        if dbl:
            a.label(L2)
        a('s_waitcnt vmcnt(0)')
        vm.q = []
        a('v_readfirstlane_b32 s%d, v%d' % (S_NON, t + 2))
        a('v_readfirstlane_b32 s%d, v%d' % (S_NON + 1, t + 3))
        a('s_cmp_lg_u32 s%d, 0' % (S_NON + 1))
        a('s_cbranch_scc1 %s' % Ld)
        a('s_sleep %d' % sleep)
        a('s_sub_u32 s%d, s%d, 1' % (S_SPIN, S_SPIN))
        a('s_cmp_lg_u32 s%d, 0' % S_SPIN)
        a('s_cbranch_scc1 %s' % L)
        a.label(Ld)

    def check_in(self, t):
        a = self.a
        a('s_getreg_b32 s%d, hwreg(HW_REG_XCC_ID, 0, 4)' % S_XCC)
        a('s_lshl_b32 s7, s%d, 5' % S_G)
        a('s_add_u32 s7, s7, s%d' % S_SLOT)
        a('s_lshl_b32 s7, s7, 4')
        a('s_add_u32 s7, s7, 0x%x' % WS_CHK)
        a('v_mov_b32 v%d, s7' % t)
        a('v_mov_b32 v%d, s%d' % (t + 2, S_XCC))
        a('v_mov_b32 v%d, 0' % (t + 3))
        self.set_tag(t + 2)
        a('s_mov_b64 exec, 1')
        a('buffer_store_dwordx4 v[%d:%d], v%d, %s, 0 offen' % (t + 2, t + 5, t, srd(SRD_WS)))
        a('s_mov_b64 exec, -1')

    def far_check(self, t, r):
        a = self.a
        a('v_and_b32 v%d, 31, v1' % t)
        a('s_lshl_b32 s7, s%d, 9' % S_G)
        a('s_add_u32 s7, s7, 0x%x' % WS_CHK)
        a('v_lshl_add_u32 v%d, v%d, 4, s7' % (t, t))
        a('buffer_load_dwordx4 %s, v%d, %s, 0 offen sc1' % (vr(r, 4), t, srd(SRD_WS)))
        a('s_waitcnt vmcnt(0)')
        self.bad(r, t)
        a('v_cmp_ne_u32 s[%d:%d], s%d, v%d' % (S_MK, S_MK + 1, S_XCC, r))
        a('s_or_b32 s%d, vcc_lo, s%d' % (S_FAR, S_MK))
        a('s_and_b32 s%d, s%d, 0xffff00ff' % (S_FAR, S_FAR))

    def nonce_share(self, t):
        a = self.a
        a('v_mov_b32 v%d, 0x%x' % (t, NONCE))
        a('v_mov_b32 v%d, s%d' % (t + 2, S_NON))
        a('v_mov_b32 v%d, s%d' % (t + 3, S_NON + 1))
        a('ds_write_b64 v%d, v[%d:%d]' % (t, t + 2, t + 3))
        self.lds_signal(C_N, t, t + 1)

    def nonce_lds(self, t, sleep=2):
        a = self.a
        self.lds_wait(C_N, 1, t, t + 1, sleep=sleep)
        a('v_mov_b32 v%d, 0x%x' % (t, NONCE))
        a('ds_read_b64 v[%d:%d], v%d' % (t + 2, t + 3, t))
        a('s_waitcnt lgkmcnt(0)')
        a('v_readfirstlane_b32 s%d, v%d' % (S_NON, t + 2))
        a('v_readfirstlane_b32 s%d, v%d' % (S_NON + 1, t + 3))

    def bad(self, regs, vt):
        if isinstance(regs, int):
            self.a('v_cmp_ne_u64 vcc, s[%d:%d], v[%d:%d]' % (S_NON, S_NON + 1, regs + 2, regs + 3))
        else:
            self.any_sentinel(regs, vt)

    def set_tag(self, r):
        self.a('v_mov_b32 v%d, s%d' % (r + 2, S_NON))
        self.a('v_mov_b32 v%d, s%d' % (r + 3, S_NON + 1))

    def unpack4(self, dst, src):
        a = self.a
        for k in range(2):
            a('v_lshlrev_b32 v%d, 16, v%d' % (dst + 2 * k, src + k))
            a('v_and_b32 v%d, 0xffff0000, v%d' % (dst + 2 * k + 1, src + k))

    def poll(self, vm, loads, regs, vt, sleep=1, first=None, anyok=False):
        a = self.a
        L, L2, Ld = a.uniq('PO'), a.uniq('PO2'), a.uniq('POD')
        if first:
            for t in loads:
                a(t)
            first()
            a('s_mov_b32 s%d, %d' % (S_SPIN, self.o.spin))
            a('s_branch %s' % L2)
        else:
            a('s_mov_b32 s%d, %d' % (S_SPIN, self.o.spin))
        a.label(L)
        for t in loads:
            a(t)
        a.label(L2)
        a('s_waitcnt vmcnt(0)')
        vm.q = []
        self.bad(regs, vt)
        if anyok:
            a('s_cmp_lg_u64 vcc, -1')
            a('s_cbranch_scc1 %s' % Ld)
        else:
            a('s_cbranch_vccz %s' % Ld)
        if sleep:
            a('s_sleep %d' % sleep)
        a('s_sub_u32 s%d, s%d, 1' % (S_SPIN, S_SPIN))
        a('s_cmp_lg_u32 s%d, 0' % S_SPIN)
        a('s_cbranch_scc1 %s' % L)
        a.label(Ld)

    def poll_sel(self, vm, loads, regs, vt, sleep=1, first=None, late=None, plain=False):
        a = self.a
        sM = S_T + 18
        L, Ld = a.uniq('PS'), a.uniq('PSD')
        for t in loads:
            a(t.replace(' sc1', '') if plain else t)
        if first:
            first()
        a('s_mov_b32 s%d, %d' % (S_SPIN, self.o.spin))
        a.label(L)
        a('s_waitcnt vmcnt(0)')
        vm.q = []
        a('s_mov_b32 s%d, 0' % sM)
        for k, (t, r) in enumerate(zip(loads, regs)):
            Ls = a.uniq('PSS')
            self.bad(r, vt)
            a('s_cbranch_vccz %s' % Ls)
            a(t)
            a('s_mov_b32 s%d, 1' % sM)
            a.label(Ls)
        a('s_cmp_eq_u32 s%d, 0' % sM)
        a('s_cbranch_scc1 %s' % Ld)
        if sleep > 1:
            a('s_sleep %d' % sleep)
        if late:
            Ll = a.uniq('PSL')
            a('s_cmp_lg_u32 s%d, %d' % (S_SPIN, self.o.spin - 16))
            a('s_cbranch_scc1 %s' % Ll)
            late()
            a.label(Ll)
        a('s_sub_u32 s%d, s%d, 1' % (S_SPIN, S_SPIN))
        a('s_cmp_lg_u32 s%d, 0' % S_SPIN)
        a('s_cbranch_scc1 %s' % L)
        a('s_waitcnt vmcnt(0)')
        a.label(Ld)

    def poll_pipe(self, vm, mk_loads, bufs, done, gap=2):
        a = self.a
        L, Ld = a.uniq('PP'), a.uniq('PPD')
        n = len(mk_loads(bufs[0])[0])
        for r in bufs:
            for t in mk_loads(r)[0]:
                a(t)
            if gap:
                a('s_sleep %d' % gap)
        a('s_mov_b32 s%d, %d' % (S_SPIN, self.o.spin))
        a.label(L)
        outs = []
        for r in bufs:
            loads, gran = mk_loads(r)
            Lo = a.uniq('PPO')
            outs.append(Lo)
            a('s_waitcnt vmcnt(%d)' % (n * (len(bufs) - 1)))
            for k, g in enumerate(gran):
                if k == 0:
                    a('v_cmp_ne_u64 vcc, s[%d:%d], v[%d:%d]' % (S_NON, S_NON + 1, g + 2, g + 3))
                else:
                    a('v_cmp_ne_u64 s[%d:%d], s[%d:%d], v[%d:%d]' % (S_EX, S_EX + 1, S_NON, S_NON + 1, g + 2, g + 3))
                    a('s_or_b64 vcc, vcc, s[%d:%d]' % (S_EX, S_EX + 1))
            a('s_cmp_eq_u64 vcc, 0')
            a('s_cbranch_scc1 %s' % Lo)
            for t in loads:
                a(t)
        a('s_sub_u32 s%d, s%d, 1' % (S_SPIN, S_SPIN))
        a('s_cmp_lg_u32 s%d, 0' % S_SPIN)
        a('s_cbranch_scc1 %s' % L)
        for i, (r, Lo) in enumerate(zip(bufs, outs)):
            a.label(Lo)
            done(r)
            if i + 1 < len(bufs):
                a('s_branch %s' % Ld)
        a.label(Ld)
        vm.q = ['x'] * (n * len(bufs))

    def add2(self, d, x, y):
        for k in range(2):
            self.a('v_add_f32 v%d, v%d, v%d' % (d + k, x + k, y + k))

    def pkfma_bcast(self, dst, src, e, first=False):
        a = self.a
        if e % 2 == 0:
            m1 = 'v[%d:%d]' % (e, e + 1)
            if first:
                a('v_pk_mul_f32 v[%d:%d], v[%d:%d], %s op_sel_hi:[1,0]' % (dst, dst + 1, src, src + 1, m1))
            else:
                a('v_pk_fma_f32 v[%d:%d], v[%d:%d], %s, v[%d:%d] op_sel_hi:[1,0,1]' % (
                    dst, dst + 1, src, src + 1, m1, dst, dst + 1))
        else:
            m1 = 'v[%d:%d]' % (e - 1, e)
            if first:
                a('v_pk_mul_f32 v[%d:%d], v[%d:%d], %s op_sel:[0,1] op_sel_hi:[1,1]' % (
                    dst, dst + 1, src, src + 1, m1))
            else:
                a('v_pk_fma_f32 v[%d:%d], v[%d:%d], %s, v[%d:%d] op_sel:[0,1,0] op_sel_hi:[1,1,1]' % (
                    dst, dst + 1, src, src + 1, m1, dst, dst + 1))

    def unpack8(self, dst, src):
        a = self.a
        for k in range(4):
            a('v_lshlrev_b32 v%d, 16, v%d' % (dst + 2 * k, src + k))
            a('v_and_b32 v%d, 0xffff0000, v%d' % (dst + 2 * k + 1, src + k))

    def any_sentinel(self, regs, vt):
        a = self.a
        regs = list(regs)
        a('v_max_u32 v%d, v%d, v%d' % (vt, regs[0], regs[1]))
        i = 2
        while i + 1 < len(regs):
            a('v_max3_u32 v%d, v%d, v%d, v%d' % (vt, vt, regs[i], regs[i + 1]))
            i += 2
        if i < len(regs):
            a('v_max_u32 v%d, v%d, v%d' % (vt, vt, regs[i]))
        a('v_cmp_eq_u32 vcc, -1, v%d' % vt)

    def perm_block(self, dst, src):
        a = self.a
        for k in range(4):
            for e in range(2):
                for p in range(4):
                    a('v_perm_b32 v%d, v%d, v%d, s%d' % (dst + 4 * (2 * k + e) + p, src + 4 * (2 * p + 1) + k,
                                                        src + 4 * (2 * p) + k, S_HI if e else S_LO))

    def row_sum(self, regs, tmp):
        a = self.a
        for sw in ('v_permlane32_swap_b32', 'v_permlane16_swap_b32'):
            for i, r in enumerate(regs):
                a('v_mov_b32 v%d, v%d' % (tmp + i, r))
            for i, r in enumerate(regs):
                a('%s v%d, v%d' % (sw, r, tmp + i))
            for i, r in enumerate(regs):
                a('v_add_f32 v%d, v%d, v%d' % (r, r, tmp + i))

    def entry(self):
        a = self.a
        a('s_load_dwordx16 s[8:23], s[0:1], 0')
        a('s_load_dwordx8 s[24:31], s[0:1], 64')
        a('s_load_dwordx4 s[32:35], s[0:1], 96')
        if self.o.hs:
            a('s_memrealtime s[100:101]')
        a('v_lshrrev_b32 v1, 6, v0')
        a('s_and_b32 s%d, s2, 7' % S_G)
        a('v_readfirstlane_b32 s%d, v1' % S_WAVE)
        a('s_lshr_b32 s%d, s2, 3' % S_SLOT)
        if self.o.xmap:
            a('s_lshr_b32 s%d, s2, 5' % S_G)
            a('s_and_b32 s%d, s2, 31' % S_SLOT)
        a('v_and_b32 v1, 63, v0')
        a('s_and_b32 s7, s%d, 3' % S_SLOT)
        a('s_lshl2_add_u32 s%d, s%d, s7' % (S_H, S_G))
        a('s_cmp_ge_u32 s%d, 32' % S_SLOT if not self.o.xmap else 's_cmp_ge_u32 s2, 256')
        a('s_cbranch_scc1 L_END0')
        if self.o.srot == 1:
            a('s_xor_b32 s%d, s%d, 16' % (S_SLOT, S_SLOT))
        if self.o.srot == 2:
            a('s_add_u32 s7, s%d, 8' % S_SLOT)
            a('s_cmp_ge_u32 s%d, 8' % S_SLOT)
            a('s_cselect_b32 s%d, s7, s%d' % (S_SLOT, S_SLOT))
            a('s_sub_u32 s7, s%d, 24' % S_SLOT)
            a('s_cmp_ge_u32 s%d, 32' % S_SLOT)
            a('s_cselect_b32 s%d, s7, s%d' % (S_SLOT, S_SLOT))
        LA = a.uniq('EA')
        a('s_cmp_ge_u32 s%d, 16' % S_SLOT)
        a('s_cbranch_scc1 %s' % LA)
        LC = a.uniq('EC')
        a('s_cmp_ge_u32 s%d, 8' % S_SLOT)
        a('s_cbranch_scc1 %s' % LC)
        if self.o.wrot:
            a('s_add_u32 s%d, s%d, 8' % (S_WAVE, S_WAVE))
            a('s_cmp_lt_u32 s%d, 12' % S_WAVE)
            a('s_cbranch_scc1 L_W2')
            a('s_sub_u32 s%d, s%d, 12' % (S_WAVE, S_WAVE))
        a('s_cmp_ge_u32 s%d, 8' % S_WAVE)
        a('s_cbranch_scc1 L_W2')
        a('s_cmp_ge_u32 s%d, 4' % S_WAVE)
        a('s_cbranch_scc1 L_W1')
        a('s_branch L_W')
        a.label(LC)
        a('s_cmp_ge_u32 s%d, 8' % S_WAVE)
        a('s_cbranch_scc1 L_CSVC')
        a('s_branch L_C')
        a.label(LA)
        a('s_cmp_eq_u32 s%d, 11' % S_WAVE)
        a('s_cbranch_scc1 L_ASVC')
        self.sec('AA', True)

    def post(self):
        self.a('s_mov_b32 s%d, 0x05040100' % S_LO)
        self.a('s_mov_b32 s%d, 0x07060302' % S_HI)
        mk_srd(self.a, SRD_WS, P_WS, WS_SIZE)
        mk_srd(self.a, SRD_DBG, P_DBG, 256)

    def common(self, zero=False, split=False):
        a = self.a
        if split:
            return
        if zero:
            L0 = a.uniq('Z')
            a('s_cmp_lg_u32 s%d, 11' % S_WAVE)
            a('s_cbranch_scc1 %s' % L0)
            a('v_lshlrev_b32 v2, 2, v1')
            a('v_add_u32 v2, 0x%x, v2' % MISC)
            a('v_mov_b32 v3, 0')
            a('ds_write_b32 v2, v3')
            a.label(L0)
        a('s_waitcnt lgkmcnt(0)')
        self.post()

    def a_att(self):
        a, o = self.a, self.o
        vm = VM(a)
        KR, VRING, SC, QV, ACC, TMP = 32, 128, 8, 2, 152, 160
        VK = 6
        sOffK, sOffV, sBias, sLast, sC = [S_T + i for i in range(5)]
        self.common(split=True)
        BU = o.bu
        NB = NQ // BU
        sPos = S_T + 5
        NV = NQ - o.hj

        sKey = S_T + 8

        def setup():
            if o.xr:
                self.xkey(sKey, S_SLOT)
            a('s_lshr_b32 s7, s%d, 2' % S_SLOT)
            a('s_sub_u32 s7, s7, 4')
            a('s_lshl_b32 s7, s7, 5')
            a('s_add_u32 s7, s7, s%d' % S_H)
            a('s_lshl_b32 s7, s7, 20')
            a('s_add_u32 s7, s7, 0xC0000')
            a('v_lshlrev_b32 v%d, 4, v1' % VK)
            a('v_add_u32 v%d, s7, v%d' % (VK, VK))
            if not o.bal:
                a('s_add_u32 s%d, s%d, 3' % (sLast, S_WAVE))
                a('s_cmp_ge_u32 s%d, %d' % (sLast, NS))
                a('s_cselect_b32 s7, %d, 0' % NS)
                a('s_sub_u32 s%d, s%d, s7' % (sBias, sLast))
                a('s_mov_b32 s%d, s%d' % (sPos, sBias))
                assert o.hj == 0 or (BU == 1 and not o.rot)
                a('s_mul_i32 s7, s2, %d' % o.rot)
                a('s_add_u32 s7, s7, s%d' % sBias)
                a('s_mul_i32 s7, s7, %d' % (1024 * BU))
                a('s_and_b32 s%d, s7, 0x3ffff' % sOffK)
                a('s_mov_b32 s%d, s%d' % (sOffV, sOffK))
                nlast = 256 // BU - NS * (NB - 1)
                a('s_add_u32 s%d, s%d, %d' % (sLast, sOffK, (NB - 1) * NS * 1024 * BU))
                a('s_and_b32 s%d, s%d, 0x3ffff' % (sLast, sLast))
                a('s_cmp_lt_u32 s%d, %d' % (sBias, nlast))
                a('s_cselect_b32 s%d, s%d, 0x40000000' % (sLast, sLast))
                a('s_cselect_b32 s%d, 0, 0xff800000' % sBias)
            a('s_mov_b32 s%d, 0x%x' % (sC, f32bits(SCALE_LOG2E)))

            if o.bx:
                s0, ns = (3, 5) if o.bx == 6 else (6, 2)
                if o.pax:
                    s0 = 0 if o.bx == 6 else 2
                a('s_lshl_b32 s%d, s%d, 12' % (sOffK, S_WAVE))
                a('s_mov_b32 s%d, s%d' % (sOffV, sOffK))
                a('s_cmp_ge_u32 s%d, %d' % (S_WAVE, s0 + ns))
                a('s_cselect_b32 s7, %d, 0' % ns)
                a('s_sub_u32 s7, s%d, s7' % S_WAVE)
                a('s_mul_i32 s7, s7, %d' % (o.bx * 1024))
                a('s_add_u32 s%d, s7, %d' % (sLast, 220 * 1024))
                a('s_add_u32 s%d, s%d, 4096' % (sPos, sLast))
                a('s_sub_u32 s7, s%d, %d' % (S_WAVE, s0))
                a('s_cmp_lt_u32 s7, %d' % ns)
                a('s_cselect_b32 s%d, 0xff800000, 0' % sBias)
            elif o.bal:
                assert BU == 1 and o.hj != 1 and not o.rot
                a('s_lshl_b32 s%d, s%d, 10' % (sOffK, S_WAVE))
                a('s_mov_b32 s%d, s%d' % (sOffV, sOffK))
                a('s_cmp_ge_u32 s%d, %d' % (S_WAVE, 4 if o.pax else 8))
                a('s_cselect_b32 s7, 4096, 0')
                a('s_sub_u32 s%d, s%d, s7' % (sLast, sOffK))
                a('s_add_u32 s%d, s%d, %d' % (sLast, sLast, 242 * 1024))
                a('s_add_u32 s%d, s%d, 7168' % (sPos, sLast))
                a('s_and_b32 s7, s%d, 12' % S_WAVE)
                a('s_cmp_eq_u32 s7, %d' % (0 if o.pax else 4))
                a('s_cselect_b32 s%d, 0xff800000, 0' % sBias)

        def step(s):
            a('s_add_u32 s%d, s%d, %d' % (s, s, NS * 1024 * BU))
            if o.rot:
                a('s_and_b32 s%d, s%d, 0x3ffff' % (s, s))

        def ldk(jb):
            if o.bal:
                so = (sLast, sPos)[jb] if jb < 2 else sOffK
                if o.xr:
                    a('s_xor_b32 s7, s%d, s%d' % (so, sKey))
                    so = 7
                vm.issue('buffer_load_dwordx4 %s, v%d, %s, s%d offen nt' % (vr(KR + 4 * jb, 4), VK, srd(SRD_A), so), ('K', jb))
                if 2 <= jb < NB - 1:
                    step(sOffK)
                if jb == 1:
                    a.label('L_AK2')
                return
            so = sLast if jb == NB - 1 else sOffK
            for j in range(jb * BU, jb * BU + BU):
                vm.issue('buffer_load_dwordx4 %s, v%d, %s, s%d offen offset:%d nt' % (
                    vr(KR + 4 * j, 4), VK, srd(SRD_A), so, (j % BU) * 1024), ('K', j))
            if jb < NB - 2:
                step(sOffK)

        RV = 4 if BU == 4 else 6

        def vreg(j):
            return VRING + 4 * j if j < RV else KR + 4 * (j - RV)

        nv = [0]

        def ldv():
            jb = nv[0] // BU
            vm.wait_n((o.kdl if jb >= NB - o.knl else o.kd) - BU)
            if o.bal:
                so = (sLast, sPos)[jb - (NB - 2)] if jb >= NB - 2 else sOffV
                if o.xr:
                    a('s_xor_b32 s7, s%d, s%d' % (so, sKey))
                    so = 7
                vm.issue('buffer_load_dwordx4 %s, v%d, %s, s%d offen nt' % (vr(vreg(jb), 4), VK, srd(SRD_B), so), ('V', jb))
                if jb < NB - 3:
                    step(sOffV)
                nv[0] += 1
                return
            so = sLast if jb == NB - 1 else sOffV
            for j in range(jb * BU, jb * BU + BU):
                vm.issue('buffer_load_dwordx4 %s, v%d, %s, s%d offen offset:%d nt' % (
                    vr(vreg(j), 4), VK, srd(SRD_B), so, (j % BU) * 1024), ('V', j))
            if jb < NB - 2:
                step(sOffV)
            nv[0] += BU

        LK, LJ = a.uniq('AK'), a.uniq('AJ')
        RAW, XR, OP, D = 128, 160, 96, 64
        sOff = S_T + 6
        def rest():
            self.post()
            mk_srd(a, SRD_A, P_K, 134217728)
            mk_srd(a, SRD_B, P_V, 134217728)
            setup()
        a('s_cmp_ge_u32 s%d, %d' % (S_WAVE, 4 if o.pax else 8))
        a('s_cbranch_scc1 %s' % LK)
        a('s_and_b32 s7, s%d, 12' % S_SLOT)
        a('s_and_b32 s%d, s%d, 3' % (sOff, S_WAVE))
        a('s_add_u32 s7, s7, s%d' % sOff)
        a('v_lshrrev_b32 v2, 4, v1')
        a('v_lshlrev_b32 v3, 16, v2')
        a('v_and_b32 v4, 15, v1')
        a('v_lshl_add_u32 v3, v4, 4, v3')
        a('s_lshl_b32 s%d, s7, 18' % sOff)
        a('s_lshl_b32 s%d, s%d, 8' % (sOff + 1, S_H))
        a('s_add_u32 s%d, s%d, s%d' % (sOff, sOff, sOff + 1))
        LP = a.uniq('AP')
        a('s_cmp_lt_u32 s%d, 4' % S_WAVE)
        a('s_cbranch_scc1 %s' % LP)
        if o.hx:
            a('s_xor_b32 s%d, s%d, %d' % (sOff, sOff, o.hx << 8))
        a('s_barrier')
        if o.ev:
            self.lds_wait(C_CLR, 1, 8, 9, sleep=1)
        else:
            a('s_sleep %d' % o.psl)
        a.label(LP)
        a('s_cmp_lt_u32 s%d, 4' % S_WAVE)
        a('s_waitcnt lgkmcnt(0)')
        a('s_cselect_b32 s%d, s%d, s%d' % (S_T + 12, P_BWQ, P_WQ))
        a('s_cselect_b32 s%d, s%d, s%d' % (S_T + 13, P_BWQ + 1, P_WQ + 1))
        a('s_cselect_b32 s%d, s%d, s%d' % (S_T + 10, P_BX, P_AX))
        a('s_cselect_b32 s%d, s%d, s%d' % (S_T + 11, P_BX + 1, P_AX + 1))
        mk_srd(a, SRD_D, S_T + 12, 4194304)
        for i in range(8):
            vm.issue('buffer_load_dwordx4 %s, v3, %s, s%d offen nt' % (vr(RAW + 4 * i, 4), srd(SRD_D), sOff), 'p')
            a('s_addk_i32 s%d, 8192' % sOff)
        self.sec('AB', True)
        a('v_bfe_u32 v4, v1, 2, 2')
        a('v_lshlrev_b32 v4, 10, v4')
        a('v_lshl_add_u32 v4, v2, 4, v4')
        a('s_lshl_b32 s%d, s7, 6' % (sOff + 1))
        mk_srd(a, SRD_C, S_T + 10, 4096)
        vm.issue('buffer_load_dwordx4 %s, v4, %s, s%d offen' % (vr(XR, 4), srd(SRD_C), sOff + 1), 'p')
        rest()
        LP = a.uniq('AP')
        a('s_cmp_ge_u32 s%d, 4' % S_WAVE)
        a('s_cbranch_scc1 %s' % LP)
        a('s_barrier')
        a.label(LP)
        a('s_lshl_b32 s7, s%d, 11' % S_WAVE)
        a('s_add_u32 s7, s7, 0x%x' % PPART)
        a('v_lshl_add_u32 v2, v1, 5, s7')
        a('s_cmp_lt_u32 s%d, 4' % S_WAVE)
        a('s_cselect_b32 s7, 0x%x, 0x%x' % (C_PB - MISC, C_PA - MISC))
        a('s_add_u32 s7, s7, 0x%x' % MISC)
        a('v_mov_b32 v3, s7')
        a('v_mov_b32 v4, 1')
        vm.wait_all()
        self.perm_block(OP, RAW)
        for c in range(8):
            a('v_mfma_f32_16x16x32_bf16 %s, %s, %s, 0' % (vr(D + 4 * c, 4), vr(XR, 4), vr(OP + 4 * c, 4)))
        for c in range(8):
            a('v_mov_b32 v%d, v%d' % (RAW + c, D + 4 * c))
        a('ds_write_b128 v2, %s' % vr(RAW, 4))
        a('ds_write_b128 v2, %s offset:16' % vr(RAW + 4, 4))
        a('s_waitcnt lgkmcnt(0)')
        a('s_mov_b64 exec, 1')
        a('ds_add_u32 v3, v4')
        a('s_mov_b64 exec, -1')
        a('s_branch %s' % LJ)
        a.label(LK)
        a('s_waitcnt lgkmcnt(0)')
        rest()
        a('s_barrier')
        self.touch(8, 'AR')
        self.touch(9, 'AR2')
        if o.ev:
            self.lds_wait(C_PB, 1, 8, 9, sleep=2)
        else:
            a('s_sleep %d' % o.psl8)
        a.label(LJ)
        self.sec('AR', True)
        self.stamp(vm, 0, TMP)
        if o.kh:
            self.lds_wait(C_OK, o.kh, TMP, TMP + 1, sleep=1)
        if o.bx:
            self.a_stream2(vm)
            return
        nk = [0]

        def nxt():
            if nk[0] < NB:
                vm.wait_n((o.kd1 if nk[0] < o.kn1 else o.kd) - BU)
                ldk(nk[0])
                nk[0] += 1
            else:
                ldv()

        def qk(js):
            vm.wait(('K', js[-1]))
            for k in range(4):
                for j in js:
                    a('v_dot2_f32_bf16 v%d, v%d, v%d, %s' % (SC + j, KR + 4 * j + k, QV + k,
                                                            '0' if k == 0 else 'v%d' % (SC + j)))
            for sh in (8, 4, 2, 1):
                for j in js:
                    a('v_add_f32_dpp v%d, v%d, v%d row_ror:%d row_mask:0xf bank_mask:0xf' % (
                        SC + j, SC + j, SC + j, sh))

        if o.bal:
            for k in range(8):
                a('v_mov_b32 v%d, 0' % (KR + k))
            a('s_cmp_lg_u32 s%d, 0' % sBias)
            a('s_cbranch_scc1 L_AK2')
        while nk[0] * BU + nv[0] < o.q0:
            nxt()
        self.stamp(vm, 1, TMP)
        self.lds_wait(C_Q, 1, TMP, TMP + 1)
        a('v_and_b32 v%d, 15, v1' % TMP)
        a('v_lshlrev_b32 v%d, 4, v%d' % (TMP, TMP))
        a('v_add_u32 v%d, 0x%x, v%d' % (TMP, QBUF, TMP))
        a('ds_read_b128 %s, v%d' % (vr(QV, 4), TMP))
        a('s_waitcnt lgkmcnt(0)')
        self.stamp(vm, 2, TMP)
        done = 0
        while done < NQ:
            landed = (nk[0] * BU + nv[0]) - o.kd
            if done + 4 <= landed or nv[0] >= RV + done:
                qk(list(range(done, done + 4)))
                done += 4
                for _ in range(max(1, o.qr // BU) if BU < 4 else (done // 4) & 1):
                    if nv[0] + BU <= RV + done and nv[0] < NV:
                        nxt()
            else:
                nxt()
        for j in ((0, 1) if o.bal else range(NQ - BU, NQ)):
            a('v_add_f32 v%d, s%d, v%d' % (SC + j, sBias, SC + j))
        M, M2 = TMP, TMP + 1
        a('v_max3_f32 v%d, v%d, v%d, v%d' % (M, SC, SC + 1, SC + 2))
        j = 3
        while j + 1 < NQ:
            a('v_max3_f32 v%d, v%d, v%d, v%d' % (M, M, SC + j, SC + j + 1))
            j += 2
        if j < NQ:
            a('v_max_f32 v%d, v%d, v%d' % (M, M, SC + j))
        for sw in ('v_permlane32_swap_b32', 'v_permlane16_swap_b32'):
            a('v_mov_b32 v%d, v%d' % (M2, M))
            a('%s v%d, v%d' % (sw, M, M2))
            a('v_max_f32 v%d, v%d, v%d' % (M, M, M2))
        a('v_mul_f32 v%d, s%d, v%d' % (M, sC, M))
        for j in range(NQ):
            a('v_fma_f32 v%d, v%d, s%d, -v%d' % (SC + j, SC + j, sC, M))
        for j in range(NQ):
            a('v_exp_f32 v%d, v%d' % (SC + j, SC + j))
        if BU < 4:
            ldv()
        L, L2 = TMP + 2, TMP + 3
        a('v_add_f32 v%d, v%d, v%d' % (L, SC, SC + 1))
        a('v_add_f32 v%d, v%d, v%d' % (L2, SC + 2, SC + 3))
        for j in range(4, NQ, 2):
            a('v_add_f32 v%d, v%d, v%d' % (L, L, SC + j))
            a('v_add_f32 v%d, v%d, v%d' % (L2, L2, SC + j + 1))
        a('v_add_f32 v%d, v%d, v%d' % (L, L, L2))
        a('v_mov_b32 v%d, v%d' % (L2, L))
        a('v_permlane32_swap_b32 v%d, v%d' % (L, L2))
        a('v_add_f32 v%d, v%d, v%d' % (L, L, L2))
        a('v_mov_b32 v%d, v%d' % (L2, L))
        a('v_permlane16_swap_b32 v%d, v%d' % (L, L2))
        a('v_add_f32 v%d, v%d, v%d' % (M + 1, L, L2))
        a('s_lshl_b32 s7, s%d, 3' % S_WAVE)
        a('s_add_u32 s7, s7, 0x%x' % MLBUF)
        a('v_mov_b32 v%d, s7' % (TMP + 4))
        a('ds_write_b64 v%d, v[%d:%d]' % (TMP + 4, M, M + 1))
        if o.hj and o.bal:
            a('s_lshl_b32 s7, s%d, 4' % S_WAVE)
            a('s_add_u32 s7, s7, 0x%x' % PT)
            a('v_lshrrev_b32 v%d, 4, v1' % (TMP + 6))
            a('v_lshl_add_u32 v%d, v%d, 2, s7' % (TMP + 5, TMP + 6))
            for r in range(o.hj - 2):
                a('ds_write_b32 v%d, v%d offset:%d' % (TMP + 5, SC + NQ - (o.hj - 2) + r, NS * 16 * r))
            a('s_lshr_b32 s7, s%d, 6' % sLast)
            a('s_add_u32 s7, s7, 0x%x' % (PT + 16 * (NS * (o.hj - 2) - 242)))
            a('s_cmp_lg_u32 s%d, 0' % sBias)
            a('s_cselect_b32 s7, 0x%x, s7' % (PT + 16 * 56))
            a('v_lshl_add_u32 v%d, v%d, 2, s7' % (TMP + 5, TMP + 6))
            for j in range(2):
                a('ds_write_b32 v%d, v%d offset:%d' % (TMP + 5, SC + j, 7 * 16 * j))
        elif o.hj:
            a('s_lshl_b32 s7, s%d, 4' % sPos)
            a('s_add_u32 s7, s7, 0x%x' % PT)
            a('v_lshrrev_b32 v%d, 4, v1' % (TMP + 5))
            a('v_lshl_add_u32 v%d, v%d, 2, s7' % (TMP + 5, TMP + 5))
            for jj in range(o.hj):
                a('ds_write_b32 v%d, v%d offset:%d' % (TMP + 5, SC + NV + jj, NS * 16 * jj))
        self.lds_signal(C_ML, TMP + 4, TMP + 5)
        VO = QV
        a('v_and_b32 v%d, 15, v1' % VO)
        a('v_lshlrev_b32 v%d, 5, v%d' % (VO, VO))
        a('v_bfe_u32 v%d, v1, 5, 1' % (VO + 1))
        a('v_lshl_add_u32 v%d, v%d, 4, v%d' % (VO, VO + 1, VO))
        a('v_bfe_u32 v%d, v1, 4, 1' % (VO + 1))
        a('v_lshl_add_u32 v%d, v%d, 3, v%d' % (VO, VO + 1, VO))
        a('s_lshl_b32 s7, s%d, 9' % S_WAVE)
        a('s_add_u32 s7, s7, 0x%x' % OPART)
        a('v_add_u32 v%d, s7, v%d' % (VO, VO))
        self.stamp(vm, 3, TMP)
        def pv(j):
            vm.wait(('V', j))
            self.unpack8(TMP, vreg(j))
            for k in range(4):
                self.pkfma_bcast(ACC + 2 * k, TMP + 2 * k, SC + ((j + 2) % NQ if o.bal else j), first=(j == 0))
        j = 0
        while j < NV:
            if o.bal and not o.hj and nv[0] == NV - 2:
                LL = a.uniq('AL')
                a('s_cmp_eq_u32 s%d, 0' % sBias)
                a('s_cbranch_scc1 %s' % LL)
                keep = list(vm.q)
                for jj in range(j, NV - 2):
                    pv(jj)
                a('s_branch L_AFIN')
                vm.q = keep
                a.label(LL)
            if nv[0] < NV:
                ldv()
                n = min(2 * BU, nv[0] - len([t for t in vm.q if t != 'ts']) - j)
            else:
                n = NV - j
            for _ in range(max(n, 0)):
                pv(j)
                j += 1
        a.label('L_AFIN')
        a('s_nop 1')
        self.stamp(vm, 4, TMP)
        for k in range(4):
            a('v_permlane32_swap_b32 v%d, v%d' % (ACC + k, ACC + k + 4))
        for k in range(4):
            a('v_add_f32 v%d, v%d, v%d' % (ACC + k, ACC + k, ACC + k + 4))
        for k in range(2):
            a('v_permlane16_swap_b32 v%d, v%d' % (ACC + k, ACC + k + 2))
        for k in range(2):
            a('v_add_f32 v%d, v%d, v%d' % (ACC + k, ACC + k, ACC + k + 2))
        a('ds_write_b64 v%d, v[%d:%d]' % (VO, ACC, ACC + 1))
        a('s_waitcnt lgkmcnt(0)')
        if o.hs:
            a('s_memrealtime s[98:99]')
        a('s_barrier')
        self.stamp(vm, 5, TMP)
        self.end(have=True)

    def a_stream2(self, vm):
        a, o = self.a, self.o
        X = o.bx
        N = 20 + X
        SC, QV, ACC, TMP, VK = 8, 2, 152, 160, 6
        KR = SC + N
        assert KR % 2 == 0 and KR + 4 * N <= ACC
        sOffK, sOffV, sBias, sLast, sC, sPos = [S_T + i for i in range(6)]
        kb = [list(range(X))] + [list(range(X + 4 * r, X + 4 * r + 4)) for r in range(5)]
        vb = kb[1:] + kb[:1]
        vorder = [j for b in vb for j in b]
        st = {'k': 0, 'v': 0, 'nv': 0}

        NL = 4 * o.nl

        def vreg(n):
            return KR + 4 * (n - NL) if n >= NL else KR + 4 * (N - NL + n)

        def burst(slots, regs, sr, soff, tag, last):
            vm.wait_n(o.kwl if last else o.kw)
            for i, j in enumerate(slots):
                so = soff if j >= X else (sLast if i < 4 else sPos)
                vm.issue('buffer_load_dwordx4 %s, v%d, %s, s%d offen offset:%d nt' % (
                    vr(regs[i], 4), VK, srd(sr), so, (i & 3) * 1024), (tag, j))
            if slots[0] >= X:
                a('s_add_u32 s%d, s%d, %d' % (soff, soff, NS * 4096))

        def ldk():
            b = kb[st['k']]
            burst(b, [KR + 4 * j for j in b], SRD_A, sOffK, 'K', False)
            st['k'] += 1
            if st['k'] == 1:
                a.label('L_AK2')

        sM0 = S_T + 9

        def ldv():
            b = vb[st['v']]
            if st['v'] < o.nl:
                if st['v'] == 0:
                    a('s_mul_i32 s%d, s%d, %d' % (sM0, S_WAVE, 4096 * o.nl))
                    a('s_add_u32 s%d, s%d, %d' % (sM0, sM0, VST))
                else:
                    a('s_addk_i32 s%d, 4096' % sM0)
                a('s_mov_b32 m0, s%d' % sM0)
                vm.wait_n(o.kw)
                for i, j in enumerate(b):
                    vm.issue('buffer_load_dwordx4 v%d, %s, s%d offen offset:%d nt lds' % (VK, srd(SRD_B), sOffV, i * 1024), ('V', j))
                a('s_add_u32 s%d, s%d, %d' % (sOffV, sOffV, NS * 4096))
                st['v'] += 1
                st['nv'] += len(b)
                return
            burst(b, [vreg(st['nv'] + i) for i in range(len(b))], SRD_B, sOffV, 'V', st['v'] >= len(vb) - o.knb)
            st['v'] += 1
            st['nv'] += len(b)

        def qk(js):
            vm.wait(('K', js[-1]))
            for k in range(4):
                for j in js:
                    a('v_dot2_f32_bf16 v%d, v%d, v%d, %s' % (SC + j, KR + 4 * j + k, QV + k,
                                                            '0' if k == 0 else 'v%d' % (SC + j)))
            for sh in (8, 4, 2, 1):
                for j in js:
                    a('v_add_f32_dpp v%d, v%d, v%d row_ror:%d row_mask:0xf bank_mask:0xf' % (SC + j, SC + j, SC + j, sh))
        for k in range(4 * X):
            a('v_mov_b32 v%d, 0' % (KR + k))
        a('s_cmp_lg_u32 s%d, 0' % sBias)
        a('s_cbranch_scc1 L_AK2')
        while st['k'] < o.qb:
            ldk()
        if o.nl:
            assert o.qb == len(kb)
            while st['v'] < o.nl:
                ldv()
        self.stamp(vm, 1, TMP)
        self.lds_wait(C_Q, 1, TMP, TMP + 1)
        a('v_and_b32 v%d, 15, v1' % TMP)
        a('v_lshlrev_b32 v%d, 4, v%d' % (TMP, TMP))
        a('v_add_u32 v%d, 0x%x, v%d' % (TMP, QBUF, TMP))
        a('ds_read_b128 %s, v%d' % (vr(QV, 4), TMP))
        a('s_waitcnt lgkmcnt(0)')
        self.stamp(vm, 2, TMP)
        g = 0
        while g < len(kb):
            n = 0
            while g < st['k'] and n < (1 if o.nl and g == n else o.qg) and ('K', kb[g][-1]) not in vm.q:
                qk(kb[g])
                g += 1
                n += 1
            done = sum(len(b) for b in kb[:g])
            if st['k'] < len(kb):
                ldk()
            elif st['nv'] - NL + len(vb[st['v']]) <= done and st['v'] < len(vb) - 1:
                ldv()
            elif g < len(kb):
                qk(kb[g])
                g += 1
        if o.nl:
            vm.wait(('V', vorder[NL - 1]))
            a('s_sub_u32 s7, s%d, %d' % (sM0, 4096 * (o.nl - 1)))
            a('v_lshl_add_u32 v%d, v1, 4, s7' % TMP)
            for n in range(NL):
                a('ds_read_b128 %s, v%d offset:%d' % (vr(vreg(n), 4), TMP, 1024 * n))
        for j in range(X):
            a('v_add_f32 v%d, s%d, v%d' % (SC + j, sBias, SC + j))
        M, M2 = TMP, TMP + 1
        a('v_max3_f32 v%d, v%d, v%d, v%d' % (M, SC, SC + 1, SC + 2))
        j = 3
        while j + 1 < N:
            a('v_max3_f32 v%d, v%d, v%d, v%d' % (M, M, SC + j, SC + j + 1))
            j += 2
        if j < N:
            a('v_max_f32 v%d, v%d, v%d' % (M, M, SC + j))
        for sw in ('v_permlane32_swap_b32', 'v_permlane16_swap_b32'):
            a('v_mov_b32 v%d, v%d' % (M2, M))
            a('%s v%d, v%d' % (sw, M, M2))
            a('v_max_f32 v%d, v%d, v%d' % (M, M, M2))
        a('v_mul_f32 v%d, s%d, v%d' % (M, sC, M))
        for j in range(N):
            a('v_fma_f32 v%d, v%d, s%d, -v%d' % (SC + j, SC + j, sC, M))
        for j in range(N):
            a('v_exp_f32 v%d, v%d' % (SC + j, SC + j))
        L, L2 = TMP + 2, TMP + 3
        a('v_add_f32 v%d, v%d, v%d' % (L, SC, SC + 1))
        a('v_add_f32 v%d, v%d, v%d' % (L2, SC + 2, SC + 3))
        for j in range(4, N, 2):
            a('v_add_f32 v%d, v%d, v%d' % (L, L, SC + j))
            a('v_add_f32 v%d, v%d, v%d' % (L2, L2, SC + j + 1))
        a('v_add_f32 v%d, v%d, v%d' % (L, L, L2))
        a('v_mov_b32 v%d, v%d' % (L2, L))
        a('v_permlane32_swap_b32 v%d, v%d' % (L, L2))
        a('v_add_f32 v%d, v%d, v%d' % (L, L, L2))
        a('v_mov_b32 v%d, v%d' % (L2, L))
        a('v_permlane16_swap_b32 v%d, v%d' % (L, L2))
        a('v_add_f32 v%d, v%d, v%d' % (M + 1, L, L2))
        a('s_lshl_b32 s7, s%d, 3' % S_WAVE)
        a('s_add_u32 s7, s7, 0x%x' % MLBUF)
        a('v_mov_b32 v%d, s7' % (TMP + 4))
        a('ds_write_b64 v%d, v[%d:%d]' % (TMP + 4, M, M + 1))
        if o.bea:
            a('s_memrealtime s[%d:%d]' % (S_TS, S_TS + 1))
            a('v_mov_b32 v%d, 0x%x' % (TMP + 4, C_TS))
            a('s_waitcnt lgkmcnt(0)')
            a('v_mov_b32 v%d, s%d' % (TMP + 5, S_TS))
            a('s_mov_b64 exec, 1')
            a('ds_add_u32 v%d, v%d' % (TMP + 4, TMP + 5))
            a('s_mov_b64 exec, -1')
        self.lds_signal(C_ML, TMP + 4, TMP + 5)
        VO = QV
        a('v_and_b32 v%d, 15, v1' % VO)
        a('v_lshlrev_b32 v%d, 5, v%d' % (VO, VO))
        a('v_bfe_u32 v%d, v1, 5, 1' % (VO + 1))
        a('v_lshl_add_u32 v%d, v%d, 4, v%d' % (VO, VO + 1, VO))
        a('v_bfe_u32 v%d, v1, 4, 1' % (VO + 1))
        a('v_lshl_add_u32 v%d, v%d, 3, v%d' % (VO, VO + 1, VO))
        a('s_lshl_b32 s7, s%d, 9' % S_WAVE)
        a('s_add_u32 s7, s7, 0x%x' % OPA)
        a('v_add_u32 v%d, s7, v%d' % (VO, VO))
        self.stamp(vm, 3, TMP)

        def pv(n):
            vm.wait(('V', vorder[n]))
            self.unpack8(TMP, vreg(n))
            for k in range(4):
                self.pkfma_bcast(ACC + 2 * k, TMP + 2 * k, SC + vorder[n], first=(n == 0))
        n = 0
        while n < N:
            if st['v'] == len(vb) - 1:
                LL = a.uniq('AL')
                a('s_cmp_eq_u32 s%d, 0' % sBias)
                a('s_cbranch_scc1 %s' % LL)
                keep = list(vm.q)
                for m in range(n, 20):
                    pv(m)
                a('s_branch L_AFIN')
                vm.q = keep
                a.label(LL)
            if st['v'] < len(vb):
                ldv()
                while n < st['nv'] and ('V', vorder[n]) not in vm.q:
                    pv(n)
                    n += 1
            else:
                pv(n)
                n += 1
        a.label('L_AFIN')
        a('s_nop 1')
        self.stamp(vm, 4, TMP)
        for k in range(4):
            a('v_permlane32_swap_b32 v%d, v%d' % (ACC + k, ACC + k + 4))
        for k in range(4):
            a('v_add_f32 v%d, v%d, v%d' % (ACC + k, ACC + k, ACC + k + 4))
        for k in range(2):
            a('v_permlane16_swap_b32 v%d, v%d' % (ACC + k, ACC + k + 2))
        for k in range(2):
            a('v_add_f32 v%d, v%d, v%d' % (ACC + k, ACC + k, ACC + k + 2))
        a('ds_write_b64 v%d, v[%d:%d]' % (VO, ACC, ACC + 1))
        a('s_waitcnt lgkmcnt(0)')
        if o.hs:
            a('s_memrealtime s[98:99]')
        a('s_barrier')
        self.stamp(vm, 5, TMP)
        self.end(have=True)

    def a_svc(self):
        a, o = self.a, self.o
        vm = VM(a)
        self.sec('ASVC')
        a.label('L_ASVC')
        self.common(True)
        T = 100
        sB = S_T
        a('s_setprio 3')
        a('s_lshr_b32 s%d, s%d, 2' % (sB, S_SLOT))
        a('s_sub_u32 s%d, s%d, 4' % (sB, sB))
        a('s_barrier')
        if o.cut & 4:
            a('s_branch L_ACUT')
        a('s_lshl_b32 s7, s%d, 2' % S_H)
        a('s_add_u32 s7, s7, s%d' % sB)
        a('s_lshl_b32 s7, s7, 11')
        a('v_lshl_add_u32 v3, v1, 4, s7')
        a('v_add_u32 v5, 0x%x, v3' % WS_QBP)
        a('v_add_u32 v3, 0x%x, v3' % (WS_QAW if o.pax == 2 else WS_QAP))
        if o.pax == 2:
            a('v_add_u32 v3, s7, v3')
        a('s_xor_b32 s7, s%d, %d' % (S_H, o.hx))
        a('s_lshl_b32 s7, s7, 5')
        a('s_add_u32 s7, s7, s%d' % sB)
        a('s_lshl_b32 s7, s7, 8')
        a('s_add_u32 s7, s7, 0x%x' % WS_QAP)
        a('v_lshrrev_b32 v6, 4, v1')
        a('v_lshlrev_b32 v6, 11, v6')
        a('v_and_b32 v%d, 15, v1' % T)
        a('v_lshl_add_u32 v6, v%d, 4, v6' % T)
        a('v_add_u32 v6, s7, v6')
        if o.pw:
            for k in range(4):
                a('v_mov_b32 v%d, 0' % (112 + k))
            for V in (5, 6):
                for e in range(2):
                    a('buffer_store_dwordx4 v[112:115], v%d, %s, 0 offen offset:%d' % (V, srd(SRD_WS), 1024 * e))
        if o.nsl:
            a('s_sleep %d' % o.nsl)
        self.nonce_get(vm, 90, dbl=o.ndb, sig=C_CLR if o.ev else None)
        self.stamp(vm, 4, T)
        if o.cut & 64:
            a('s_branch L_ACUT')
        a('v_lshlrev_b32 v7, 5, v1')
        for r in (112, 116, 120, 124):
            self.set_tag(r)
        for cnt, base, V in ((C_PB, PPART, 5), (C_PA, PPART + 8192, 6))[:1 if o.pax else 2]:
            self.lds_wait(cnt, 4, T, T + 1, sleep=0)
            for w in range(4):
                a('ds_read_b128 %s, v7 offset:%d' % (vr(16 + 8 * w, 4), base + 2048 * w))
                a('ds_read_b128 %s, v7 offset:%d' % (vr(20 + 8 * w, 4), base + 2048 * w + 16))
            a('s_waitcnt lgkmcnt(0)')
            for st in (16, 8):
                for k in range(0, st, 2):
                    self.add2(16 + k, 16 + k, 16 + k + st)
            r = 112 if V == 5 else 120
            for k in range(4):
                a('v_cvt_pk_bf16_f32 v%d, v%d, v%d' % (r + 4 * (k >> 1) + (k & 1), 16 + 2 * k, 17 + 2 * k))
            for e in range(0 if (o.cut & 128 and V == 5) or (o.cut & 256 and V == 6) else 2):
                a('buffer_store_dwordx4 %s, v%d, %s, 0 offen offset:%d%s' % (
                    vr(r + 4 * e, 4), V, srd(SRD_WS), 1024 * e, '' if o.l2 else ' sc1'))
            self.lds_signal(C_OK, T, T + 1)
            self.stamp(vm, V, T)
        a('v_mov_b32 v110, v5')
        a('v_mov_b32 v111, v6')
        if o.l2:
            self.check_in(T)

        def through():
            for r, V in ((112, 110), (120, 111))[:1 if o.pax else 2]:
                for e in range(2):
                    a('buffer_store_dwordx4 %s, v%d, %s, 0 offen offset:%d sc1' % (vr(r + 4 * e, 4), V, srd(SRD_WS), 1024 * e))

        def verify():
            if o.l2:
                self.far_check(T, 32)
                LN = a.uniq('AF')
                a('s_cbranch_scc0 %s' % LN)
                through()
                a.label(LN)
        if o.cut & 32:
            a('s_branch L_ACUT')
        if o.pax:
            a('s_sleep %d' % o.vsl)
            verify()
            if o.cut & 512:
                a('s_sleep %d' % o.cutsl)
                a('s_branch L_ACUT')
        a('s_sleep %d' % o.asl)
        ng = 4 if o.pax == 2 else 2
        self.poll_sel(vm, ['buffer_load_dwordx4 %s, v3, %s, 0 offen offset:%d sc1' % (vr(32 + 4 * e, 4), srd(SRD_WS), 1024 * e)
                           for e in range(ng)], [32 + 4 * e for e in range(ng)], T, sleep=o.qsl, late=through if o.l2 else None)
        if ng == 4:
            for e in range(4):
                self.unpack4(16 + 4 * (e >> 1) + 8 * (e & 1), 32 + 4 * e)
            for k in range(8):
                a('v_add_f32 v%d, v%d, v%d' % (16 + k, 16 + k, 24 + k))
        else:
            self.unpack4(16, 32)
            self.unpack4(20, 36)
        self.row_sum(list(range(16, 24)), 24)
        for k in range(4):
            a('v_cvt_pk_bf16_f32 v%d, v%d, v%d' % (8 + k, 16 + 2 * k, 17 + 2 * k))
        a('v_and_b32 v%d, 15, v1' % T)
        a('v_lshlrev_b32 v%d, 4, v%d' % (T, T))
        a('v_add_u32 v%d, 0x%x, v%d' % (T, QBUF, T))
        a('ds_write_b128 v%d, v[8:11]' % T)
        a.label('L_ACUT')
        if o.cut:
            self.lds_signal(C_OK, T, T + 1)
            self.lds_signal(C_OK, T, T + 1)
        self.lds_signal(C_Q, T, T + 1)
        self.stamp(vm, 1, T)
        if o.tlb & 1:
            mk_srd(a, SRD_B, P_V, 134217728)
            a('s_lshl_b32 s7, s%d, 5' % sB)
            a('s_add_u32 s7, s7, s%d' % S_H)
            a('s_lshl_b32 s7, s7, 20')
            a('s_add_u32 s7, s7, 0xC0000')
            a('v_lshlrev_b32 v96, %d, v1' % o.tls)
            a('s_mov_b64 exec, 0x%x' % ((1 << min(0x40000 >> o.tls, 32)) - 1))
            a('buffer_load_dword v97, v96, %s, s7 offen nt' % srd(SRD_B))
            a('s_mov_b64 exec, -1')
        if not o.pax:
            self.lds_wait(C_ML, 1, T, T + 1, sleep=8)
            verify()
        self.lds_wait(C_ML, NS, T, T + 1, sleep=2)
        if o.bea:
            a('v_mov_b32 v%d, 0x%x' % (T, C_TS))
            a('ds_read_b32 v84, v%d' % T)
            a('v_mov_b32 v85, 0')
            self.set_tag(84)
            a('s_lshl4_add_u32 s7, s%d, s%d' % (S_G, S_SLOT))
            a('s_lshl_b32 s7, s7, 4')
            a('s_add_u32 s7, s7, 0x%x' % (WS_BEA - 256))
            a('v_mov_b32 v%d, s7' % T)
            a('s_waitcnt lgkmcnt(0)')
            a('s_mov_b64 exec, 1')
            a('buffer_store_dwordx4 v[84:87], v%d, %s, 0 offen' % (T, srd(SRD_WS)))
            a('s_mov_b64 exec, -1')
        ML = 8
        a('v_mov_b32 v%d, 0x%x' % (T, MLBUF))
        for k in range(6):
            a('ds_read_b128 %s, v%d offset:%d' % (vr(ML + 4 * k, 4), T, 16 * k))
        a('s_waitcnt lgkmcnt(0)')
        Mx, Ls = T, T + 1
        a('v_max3_f32 v%d, v%d, v%d, v%d' % (Mx, ML, ML + 2, ML + 4))
        for k in range(3, NS, 2):
            a('v_max3_f32 v%d, v%d, v%d, v%d' % (Mx, Mx, ML + 2 * k, ML + 2 * k + 2))
        for k in range(NS):
            a('v_sub_f32 v%d, v%d, v%d' % (ML + 2 * k, ML + 2 * k, Mx))
        for k in range(NS):
            a('v_exp_f32 v%d, v%d' % (ML + 2 * k, ML + 2 * k))
        a('v_mul_f32 v%d, v%d, v%d' % (Ls, ML, ML + 1))
        for k in range(1, NS):
            a('v_fmac_f32 v%d, v%d, v%d' % (Ls, ML + 2 * k, ML + 2 * k + 1))
        a('v_rcp_f32 v%d, v%d' % (Ls, Ls))
        for k in range(NS):
            a('v_mul_f32 v%d, v%d, v%d' % (ML + 2 * k, ML + 2 * k, Ls))
        if o.hj:
            a('v_lshlrev_b32 v2, 4, v1')
            a('v_add_u32 v3, 0x%x, v2' % PT)
            a('ds_read_b128 v[32:35], v3')
            a('v_mul_u32_u24 v4, 47, v1')
            a('v_lshrrev_b32 v4, 9, v4')
            a('v_mul_u32_u24 v4, %d, v4' % NS)
            a('v_sub_u32 v4, v1, v4')
            if o.bal:
                n0 = NS * (o.hj - 2)
                a('v_subrev_u32 v5, %d, v1' % n0)
                a('v_subrev_u32 v6, 7, v5')
                a('v_min_u32 v5, v5, v6')
                a('v_and_b32 v6, 4, v5')
                a('v_add_u32 v5, v5, v6')
                a('v_cmp_le_u32 vcc, %d, v1' % n0)
                a('v_cndmask_b32 v4, v4, v5, vcc')
            a('v_mov_b32 v5, v%d' % ML)
            for k in range(1, NS):
                a('v_cmp_eq_u32 vcc, %d, v4' % (k if o.bal else (k + 3) % NS))
                a('v_cndmask_b32 v5, v5, v%d, vcc' % (ML + 2 * k))
            a('s_lshl_b32 s7, s%d, 2' % S_H)
            a('s_add_u32 s7, s7, s%d' % sB)
            a('s_lshl_b32 s7, s7, 10')
            a('s_add_u32 s7, s7, 0x%x' % WS_PH)
            self.set_tag(36)
            a('s_waitcnt lgkmcnt(0)')
            for k in range(4):
                a('v_mul_f32 v%d, v%d, v5' % (32 + k, 32 + k))
            a('v_cvt_pk_bf16_f32 v36, v32, v33')
            a('v_cvt_pk_bf16_f32 v37, v34, v35')
            a('v_cmp_gt_u32 vcc, %d, v1' % (256 - NS * (NQ - o.hj)))
            a('v_cndmask_b32 v36, 0, v36, vcc')
            a('v_cndmask_b32 v37, 0, v37, vcc')
            if o.l2:
                LN = a.uniq('AF')
                a('buffer_store_dwordx4 v[36:39], v2, %s, s7 offen' % srd(SRD_WS))
                a('s_cmp_eq_u32 s%d, 0' % S_FAR)
                a('s_cbranch_scc1 %s' % LN)
            a('buffer_store_dwordx4 v[36:39], v2, %s, s7 offen sc1' % srd(SRD_WS))
            if o.l2:
                a.label(LN)
        a('v_and_b32 v%d, 15, v1' % T)
        a('v_bfe_u32 v%d, v1, 4, 1' % (T + 1))
        a('v_lshlrev_b32 v3, 5, v%d' % T)
        a('v_lshl_add_u32 v3, v%d, 4, v3' % (T + 1))
        a('v_add_u32 v3, 0x%x, v3' % (OPA if o.bx else OPART))
        a('s_lshl_b32 s7, s%d, 3' % S_H)
        a('s_add_u32 s7, s7, s%d' % sB)
        a('s_lshl_b32 s7, s7, 8')
        a('s_add_u32 s7, s7, 0x%x' % WS_OA)
        a('v_lshlrev_b32 v2, 4, v%d' % T)
        a('v_lshl_add_u32 v2, v%d, 10, v2' % (T + 1))
        a('v_add_u32 v2, s7, v2')
        if o.pw:
            for k in range(4):
                a('v_mov_b32 v%d, 0' % (4 + k))
            a('s_mov_b64 exec, 0xffffffff')
            a('buffer_store_dwordx4 v[4:7], v2, %s, 0 offen' % srd(SRD_WS))
            a('s_mov_b64 exec, -1')
        self.set_tag(4)
        self.stamp(vm, 2, T)
        a('s_barrier')
        X, AC = 40, 32
        for k in range(NS):
            a('ds_read_b128 %s, v3 offset:%d' % (vr(X + 4 * k, 4), 512 * k))
        for k in range(NS):
            a('s_waitcnt lgkmcnt(%d)' % (NS - 1 - k))
            for p in range(2):
                self.pkfma_bcast(AC + 4 * (k & 1) + 2 * p, X + 4 * k + 2 * p, ML + 2 * k, first=(k < 2))
        for p in range(2):
            a('v_pk_add_f32 v[%d:%d], v[%d:%d], v[%d:%d]' % (AC + 2 * p, AC + 2 * p + 1, AC + 2 * p, AC + 2 * p + 1,
                                                          AC + 4 + 2 * p, AC + 5 + 2 * p))
        a('v_cvt_pk_bf16_f32 v4, v%d, v%d' % (AC, AC + 1))
        a('v_cvt_pk_bf16_f32 v5, v%d, v%d' % (AC + 2, AC + 3))
        a('s_mov_b64 exec, 0xffffffff')
        if o.l2:
            LN = a.uniq('AF')
            a('buffer_store_dwordx4 v[4:7], v2, %s, 0 offen' % srd(SRD_WS))
            a('s_cmp_eq_u32 s%d, 0' % S_FAR)
            a('s_cbranch_scc1 %s' % LN)
        a('buffer_store_dwordx4 v[4:7], v2, %s, 0 offen sc1' % srd(SRD_WS))
        if o.l2:
            a.label(LN)
        a('s_mov_b64 exec, -1')
        self.stamp(vm, 3, T)
        self.end()

    def w_role(self):
        a, o = self.a, self.o
        self.sec('W0')
        a.label('L_W')
        self.common()
        if o.cpf:
            a('s_getpc_b64 s[98:99]')
            a.label('L_PC')
            a('s_sub_u32 s98, s98, L_PC-%s_kernel' % NAME)
            a('s_subb_u32 s99, s99, 0')
            a('s_lshl_b32 s7, s%d, 2' % S_SLOT)
            a('s_add_u32 s7, s7, s%d' % S_WAVE)
            a('s_lshl_b32 s7, s7, 11')
            a('v_lshl_add_u32 v4, v1, 4, s7')
            a('s_mov_b32 s7, L_CODE_END-%s_kernel-16' % NAME)
            for k in range(2):
                a('v_add_u32 v5, %d, v4' % (k * 1024))
                a('v_min_u32 v5, s7, v5')
                a('v_mov_b32 v7, s99')
                a('v_add_co_u32 v6, vcc, s98, v5')
                a('v_addc_co_u32 v7, vcc, 0, v7, vcc')
                a('global_load_dwordx4 v[8:11], v[6:7], off')
        T = 160
        a('s_barrier')
        self.touch(0, 'U1')
        self.touch(1, 'W2R')
        if o.pax == 2:
            a('s_branch L_PA')
        a('s_cmp_ge_u32 s%d, 4' % S_SLOT)
        a('s_cbranch_scc1 %s' % ('L_PA' if o.pax else 'L_PF' if o.pf else 'L_VH' if o.hj else 'L_END'))
        self.lds_wait(C_QA if o.hold else C_UK, 4, T, T + 1, sleep=4)
        a('s_branch L_U1')
        if o.pf:
            a.label('L_PF')
            mk_srd(a, SRD_A, P_CKV, 16777216)
            a('s_lshl_b32 s7, s%d, 2' % S_G)
            a('s_add_u32 s7, s7, s%d' % S_SLOT)
            a('s_sub_u32 s7, s7, 4')
            a('s_lshl_b32 s7, s7, 19')
            a('s_lshl_b32 s%d, s%d, 10' % (S_T, S_WAVE))
            a('s_add_u32 s%d, s%d, s7' % (S_T, S_T))
            a('s_add_u32 s%d, s%d, %d' % (S_T, S_T, (256 - o.pf) * 1024))
            a('s_add_u32 s%d, s%d, 0x40000' % (S_T + 1, S_T))
            a('v_lshlrev_b32 v2, 4, v1')
            self.lds_wait(C_UK if o.pfe else C_QA, 4, T, T + 1, sleep=4)
            a('s_mov_b32 s%d, %d' % (S_T + 2, o.pf // 4))
            Lp = a.uniq('PF')
            a.label(Lp)
            for k in range(2):
                a('s_waitcnt vmcnt(%d)' % (o.pfd - 1))
                a('buffer_load_dwordx4 v[4:7], v2, %s, s%d offen%s' % (srd(SRD_A), S_T + k, PFL[o.pfl]))
                a('s_add_u32 s%d, s%d, 4096' % (S_T + k, S_T + k))
            a('s_sub_u32 s%d, s%d, 1' % (S_T + 2, S_T + 2))
            a('s_cmp_lg_u32 s%d, 0' % (S_T + 2))
            a('s_cbranch_scc1 %s' % Lp)
            self.lds_signal(C_PF, T, T + 1)
            if o.hj:
                a('s_branch L_VH')
                self.v_help()
            else:
                a('s_waitcnt vmcnt(0)')
                a('s_branch L_END')

        if o.hj and not o.pf:
            self.v_help()
        if o.pax:
            self.x_proj()
        a.label('L_W1')
        self.common()
        vm = VM(a)
        sHH, sW = S_T + 1, S_T + 2
        VA, VG = 2, 3
        FR, GQ, U, QB, D = 8, 72, 104, 136, 104
        a('s_setprio 3')
        a('s_barrier')
        if o.cut & 8:
            self.lds_wait(C_UK, 4, T, T + 1, sleep=4)
            a('s_sleep %d' % o.cutsl)
            self.lds_signal(C_QA, T, T + 1)
            a('s_cmp_ge_u32 s%d, 4' % S_SLOT)
            a('s_cbranch_scc1 L_END')
            a('s_branch L_U1')
        LN = a.uniq('W4')
        a('s_cmp_lg_u32 s%d, 4' % S_WAVE)
        a('s_cbranch_scc1 %s' % LN)
        a('s_sleep %d' % o.nsl)
        self.nonce_get(vm, 152, dbl=o.ndb)
        self.nonce_share(T)
        if o.l2:
            self.check_in(T)
        self.stamp(vm, 8, T)
        a.label(LN)
        a('s_sub_u32 s%d, s%d, 4' % (sW, S_WAVE))
        a('s_lshl_b32 s%d, s%d, 2' % (sHH, S_G))
        a('s_add_u32 s%d, s%d, s%d' % (sHH, sHH, sW))
        a('v_lshrrev_b32 v%d, 4, v1' % (T + 2))
        a('v_and_b32 v%d, 15, v1' % (T + 1))
        a('v_lshlrev_b32 v%d, 16, v%d' % (VA, T + 2))
        a('v_lshl_add_u32 v%d, v%d, 4, v%d' % (VA, T + 1, VA))
        a('s_lshl_b32 s7, s%d, 3' % sHH)
        a('s_add_u32 s7, s7, s%d' % S_SLOT)
        a('s_lshl_b32 s7, s7, 8')
        a('s_add_u32 s7, s7, 0x%x' % WS_QABS)
        a('v_add_u32 v%d, s7, v%d' % (VA, VA))
        a('v_lshlrev_b32 v%d, 6, v%d' % (VG, T + 1))
        a('v_lshl_add_u32 v%d, v%d, 4, v%d' % (VG, T + 2, VG))
        a('s_lshl_b32 s7, s%d, 13' % sHH)
        a('s_add_u32 s7, s7, 0x%x' % WS_QBP)
        a('v_add_u32 v%d, s7, v%d' % (VG, VG))
        a('v_xor_b32 v5, v%d, v%d' % (T + 2, T + 1))
        a('v_lshlrev_b32 v5, 4, v5')
        a('v_lshl_add_u32 v4, v%d, 12, v5' % (T + 1))
        a('s_lshl_b32 s7, s%d, 8' % sW)
        a('v_add_u32 v4, s7, v4')
        self.nonce_lds(T)
        a('s_sleep %d' % o.wsl)
        self.stamp(vm, 0, T)
        a('s_mov_b32 s%d, 4096' % (S_T + 3))
        loads = ['buffer_load_dwordx4 %s, v%d, %s, %s offen offset:%d sc1' % (
            vr(GQ + 4 * r, 4), VG, srd(SRD_WS), '0' if r < 4 else 's%d' % (S_T + 3), (r & 3) * 1024) for r in range(8)]

        def frags():
            self.lds_wait(C_UK, 4, T, T + 1, sleep=1)
            for ks in range(4):
                a('v_xor_b32 v%d, 0x%x, v4' % (T + ks, ks << 6))
            for t in range(4):
                for ks in range(4):
                    a('ds_read_b128 %s, v%d offset:%d' % (vr(FR + 16 * t + 4 * ks, 4), T + ks, t * 1024))
            if o.dev:
                self.stamp(vm, 9, T + 4)
                a('s_waitcnt vmcnt(1)')
                self.stamp(vm, 10, T + 4)
        self.poll_sel(vm, loads, [GQ + 4 * r for r in range(8)], T + 4, first=frags)
        self.stamp(vm, 1, T)
        for r in range(4):
            u = U + 8 + 8 * (r & 1) if r else U
            self.unpack4(u, GQ + 8 * r)
            self.unpack4(u + 4, GQ + 8 * r + 4)
            if r:
                for k in range(4):
                    self.add2(U + 2 * k, U + 2 * k, u + 2 * k)
        for k in range(4):
            a('v_cvt_pk_bf16_f32 v%d, v%d, v%d' % (QB + k, U + 2 * k, U + 2 * k + 1))
        for r in range(1, 4):
            for k in range(4):
                a('v_mov_b32_dpp v%d, v%d quad_perm:[%d,%d,%d,%d] row_mask:0xf bank_mask:0xf' % (
                    QB + 4 * r + k, QB + k, r & 3, (r + 1) & 3, (r + 2) & 3, (r + 3) & 3))
        self.set_tag(GQ)
        a('s_waitcnt lgkmcnt(0)')
        for r in range(4):
            for t in range(4):
                a('v_mfma_f32_16x16x32_bf16 %s, %s, %s, %s' % (
                    vr(D + 4 * t, 4), vr(QB + 4 * r, 4), vr(FR + 16 * t + 4 * ((t + r) & 3), 4),
                    '0' if r == 0 else vr(D + 4 * t, 4)))
        a('v_cvt_pk_bf16_f32 v%d, v%d, v%d' % (GQ, D, D + 5))
        a('v_cvt_pk_bf16_f32 v%d, v%d, v%d' % (GQ + 1, D + 10, D + 15))
        vm.issue('buffer_store_dwordx4 %s, v%d, %s, 0 offen sc1' % (vr(GQ, 4), VA, srd(SRD_WS)), 'qa')
        self.lds_signal(C_QA, T, T + 1)
        self.stamp(vm, 2, T)
        a('s_setprio 0')
        a('s_cmp_ge_u32 s%d, 4' % S_SLOT)
        a('s_cbranch_scc1 %s' % ('L_VH' if o.hj else 'L_END'))
        self.u_stage1()
        self.w_stage2()

    def x_proj(self):
        a, o = self.a, self.o
        vm = VM(a)
        self.sec('VH')
        a.label('L_PA')
        XR, RAW, OP, D, T = 8, 24, 88, 120, 160
        sOff, sHH, sRb = S_T, S_T + 1, S_T + 2
        mk_srd(a, SRD_A, P_AX, 4096)
        mk_srd(a, SRD_B, P_WQ, 4194304)
        a('s_lshl2_add_u32 s%d, s%d, s%d' % (sHH, S_G, S_WAVE))
        W2 = o.pax == 2
        nb = 2 if W2 else 4
        a('s_sub_u32 s%d, s%d, %d' % (sRb, S_SLOT, 0 if W2 else 4))
        a('v_lshrrev_b32 v4, 4, v1')
        a('v_and_b32 v5, 15, v1')
        a('v_lshlrev_b32 v2, 16, v4')
        a('v_lshl_add_u32 v2, v5, 4, v2')
        a('v_lshlrev_b32 v3, %d, v4' % (12 if W2 else 11))
        a('v_lshl_add_u32 v3, v5, 4, v3')
        a('s_lshl_b32 s7, s%d, %d' % (sHH, 6 if W2 else 5))
        a('s_add_u32 s7, s7, s%d' % sRb)
        a('s_lshl_b32 s7, s7, 8')
        a('s_add_u32 s7, s7, 0x%x' % (WS_QAW if W2 else WS_QAP))
        a('v_add_u32 v3, s7, v3')
        a('v_bfe_u32 v5, v1, 2, 2')
        a('v_lshlrev_b32 v5, 10, v5')
        a('v_lshl_add_u32 v5, v4, 4, v5')
        a('s_getreg_b32 s%d, hwreg(HW_REG_XCC_ID, 0, 4)' % S_XCC)
        if W2:
            self.lds_wait(C_UI, 4, T, T + 1, sleep=2)
        else:
            self.nonce_lds(T)
            self.lds_wait(C_QA if o.pah else C_UK, 4, T, T + 1, sleep=4)
        a('s_lshl_b32 s7, s%d, %d' % (sRb, 7 if W2 else 8))
        for kb in range(nb):
            vm.issue('buffer_load_dwordx4 %s, v5, %s, s7 offen offset:%d' % (vr(XR + 4 * kb, 4), srd(SRD_A), 64 * kb), 'x')
        a('s_lshl_b32 s%d, s%d, %d' % (sOff, sRb, 19 if W2 else 20))
        a('s_lshl_b32 s7, s%d, 8' % sHH)
        a('s_add_u32 s%d, s%d, s7' % (sOff, sOff))

        def ld(kb):
            for i in range(8):
                if not W2:
                    vm.wait_n(o.pad - 1)
                vm.issue('buffer_load_dwordx4 %s, v2, %s, s%d offen nt' % (
                    vr(RAW + 32 * (kb & 1) + 4 * i, 4), srd(SRD_B), sOff), ('w', kb))
                a('s_add_u32 s%d, s%d, %d' % (sOff, sOff, 8192 if i < 7 else 25 * 8192))
        ld(0)
        if W2:
            self.nonce_lds(T)
            self.lds_wait(C_QA, 4, T, T + 1, sleep=2)
        ld(1)
        for kb in range(nb):
            if kb == nb - 1 and o.l2:
                self.far_check(T, 152)
                vm.q = []
            vm.wait(('w', kb))
            self.perm_block(OP, RAW + 32 * (kb & 1))
            if kb + 2 < nb:
                ld(kb + 2)
            for c in range(8):
                a('v_mfma_f32_16x16x32_bf16 %s, %s, %s, %s' % (
                    vr(D + 4 * c, 4), vr(XR + 4 * kb, 4), vr(OP + 4 * c, 4), '0' if kb == 0 else vr(D + 4 * c, 4)))
        self.set_tag(RAW)
        self.set_tag(RAW + 4)
        for k in range(4):
            a('v_cvt_pk_bf16_f32 v%d, v%d, v%d' % (RAW + 4 * (k >> 1) + (k & 1), D + 8 * k, D + 8 * k + 4))
        LN = a.uniq('XF')
        if o.l2:
            for e in range(2):
                a('buffer_store_dwordx4 %s, v3, %s, 0 offen offset:%d' % (vr(RAW + 4 * e, 4), srd(SRD_WS), (2048 if W2 else 1024) * e))
            a('s_cmp_eq_u32 s%d, 0' % S_FAR)
            a('s_cbranch_scc1 %s' % LN)
        for e in range(2):
            a('buffer_store_dwordx4 %s, v3, %s, 0 offen offset:%d sc1' % (vr(RAW + 4 * e, 4), srd(SRD_WS), (2048 if W2 else 1024) * e))
        a.label(LN)
        self.lds_signal(C_PF, T, T + 1)
        self.stamp(vm, 7, T)
        if W2:
            a('s_cmp_lt_u32 s%d, 4' % S_SLOT)
            a('s_cbranch_scc1 L_U1')
        self.end()
        self.sec('W0')

    def v_help(self):
        a, o = self.a, self.o
        vm = VM(a)
        vm.q = ['old'] * 8
        self.sec('VH')
        a.label('L_VH')
        q0 = NS * (NQ - o.hj)
        n = (256 - q0 + 1) // 2
        VR, P, ACC, G, T = 40, 8, 152, 148, 160
        assert VR + 4 * n <= 148 and P + n <= VR
        sOff = S_T
        mk_srd(a, SRD_B, P_V, 134217728)
        a('s_lshr_b32 s7, s%d, 1' % S_WAVE)
        a('s_lshl_b32 s%d, s7, 5' % sOff)
        a('s_add_u32 s%d, s%d, s%d' % (sOff, sOff, S_H))
        a('s_lshl_b32 s%d, s%d, 20' % (sOff, sOff))
        a('s_and_b32 s%d, s%d, 1' % (sOff + 1, S_WAVE))
        a('s_lshl_b32 s%d, s%d, 10' % (sOff + 2, sOff + 1))
        a('s_add_u32 s%d, s%d, s%d' % (sOff, sOff, sOff + 2))
        a('s_add_u32 s%d, s%d, 0x%x' % (sOff, sOff, 0xC0000 + q0 * 1024))
        a('v_lshlrev_b32 v2, 4, v1')
        a('s_lshl_b32 s%d, s%d, 2' % (sOff + 2, S_H))
        a('s_add_u32 s7, s7, s%d' % (sOff + 2))
        a('s_lshl_b32 s7, s7, 10')
        a('s_add_u32 s7, s7, 0x%x' % WS_PH)
        a('v_add_u32 v3, s7, v2')
        self.lds_wait(C_PF if o.pf else C_QA, 4, T, T + 1, sleep=8)
        for _ in range(o.vdl):
            a('s_sleep 36')
        odd = (256 - q0) & 1
        for i in range(n):
            vm.wait_n(o.vhd - 1)
            if odd and i == n - 1:
                a('s_cmp_eq_u32 s%d, 0' % (sOff + 1))
                a('s_cselect_b32 s%d, s%d, 0x40000000' % (sOff, sOff))
            vm.issue('buffer_load_dwordx4 %s, v2, %s, s%d offen nt' % (vr(VR + 4 * i, 4), srd(SRD_B), sOff), 'v')
            a('s_add_u32 s%d, s%d, 2048' % (sOff, sOff))
        self.nonce_lds(T)
        a('s_lshl_b32 s7, s%d, 9' % S_WAVE)
        a('s_add_u32 s7, s7, 0x%x' % PHL)
        a('v_lshl_add_u32 v4, v1, 3, s7')
        a('s_lshl_b32 s%d, s%d, 3' % (sOff + 1, sOff + 1))
        a('s_add_u32 s7, s7, s%d' % (sOff + 1))
        a('v_lshrrev_b32 v5, 4, v1')
        a('v_lshl_add_u32 v5, v5, 1, s7')
        for i in range(n):
            a('v_mov_b32 v%d, 0' % (P + i))
        a('v_and_b32 v6, 15, v1')
        a('v_lshlrev_b32 v6, 4, v6')
        a('v_bfe_u32 v7, v1, 5, 1')
        a('v_lshl_add_u32 v6, v7, 3, v6')
        a('v_bfe_u32 v7, v1, 4, 1')
        a('v_lshl_add_u32 v6, v7, 2, v6')
        a('s_lshl_b32 s7, s%d, 8' % S_WAVE)
        a('s_add_u32 s7, s7, 0x%x' % OHB)
        a('v_add_u32 v6, s7, v6')
        self.stamp(vm, 3, T)
        self.poll(vm, ['buffer_load_dwordx4 %s, v3, %s, 0 offen sc1' % (vr(G, 4), srd(SRD_WS))], G, T, sleep=8)
        a('ds_write_b64 v4, v[%d:%d]' % (G, G + 1))
        for i in range(n):
            if i == 12:
                a('s_waitcnt lgkmcnt(0)')
            a('ds_read_u16_d16_hi v%d, v5 offset:%d' % (P + i, 16 * i))
        a('s_waitcnt lgkmcnt(0)')
        for i in range(n):
            self.unpack8(T, VR + 4 * i)
            for k in range(4):
                self.pkfma_bcast(ACC + 2 * k, T + 2 * k, P + i, first=(i == 0))
        for k in range(4):
            a('v_permlane32_swap_b32 v%d, v%d' % (ACC + k, ACC + k + 4))
        for k in range(4):
            a('v_add_f32 v%d, v%d, v%d' % (ACC + k, ACC + k, ACC + k + 4))
        for k in range(2):
            a('v_permlane16_swap_b32 v%d, v%d' % (ACC + k, ACC + k + 2))
        for k in range(2):
            a('v_add_f32 v%d, v%d, v%d' % (ACC + k, ACC + k, ACC + k + 2))
        a('v_cvt_pk_bf16_f32 v%d, v%d, v%d' % (ACC, ACC, ACC + 1))
        a('ds_write_b32 v6, v%d' % ACC)
        self.lds_signal(C_VH, T, T + 1)
        self.stamp(vm, 4, T)
        self.end()
        self.sec('W0')

    def y_addr(self, V, Vt, sCg):
        a = self.a
        a('v_lshrrev_b32 v%d, 4, v1' % V)
        a('v_lshlrev_b32 v%d, 16, v%d' % (V, V))
        a('v_bfe_u32 v%d, v1, 3, 1' % Vt)
        a('v_lshl_add_u32 v%d, v%d, 13, v%d' % (V, Vt, V))
        a('v_and_b32 v%d, 7, v1' % Vt)
        a('v_lshl_add_u32 v%d, v%d, 4, v%d' % (V, Vt, V))
        a('s_cmp_lt_u32 s%d, 4' % S_SLOT)
        a('s_cselect_b32 s7, 0x%x, 0x%x' % (0x40000 >> 7, 0))
        a('s_add_u32 s7, s7, s%d' % S_H)
        a('s_lshl_b32 s7, s7, 7')
        a('s_add_u32 s7, s7, 0x%x' % WS_Y)
        a('v_add_u32 v%d, s7, v%d' % (V, V))
        a('s_lshl_b32 s7, s%d, 14' % sCg)
        a('v_add_u32 v%d, s7, v%d' % (V, V))

    def u_stage1(self):
        a, o = self.a, self.o
        vm = VM(a)
        vm.q = ['old', 'old', 'old']
        self.sec('U1', True)
        T = 160
        VW, VM_, VC, VP = 2, 3, 4, 5
        RAW, FW, X, U, AC, WJ, D = 8, 40, 8, 104, 120, 136, 104
        sOff = S_T + 10
        mk_srd(a, SRD_B, P_WUV, 4194304)
        a('v_lshrrev_b32 v%d, 4, v1' % (T + 2))
        a('v_lshlrev_b32 v%d, 16, v%d' % (VW, T + 2))
        a('v_and_b32 v%d, 15, v1' % T)
        a('v_lshl_add_u32 v%d, v%d, 4, v%d' % (VW, T, VW))
        a('s_lshl_b32 s7, s%d, 8' % S_H)
        a('v_add_u32 v%d, s7, v%d' % (VW, VW))
        a('s_lshl_b32 s%d, s%d, 19' % (sOff, S_WAVE))
        if o.pax == 2:
            self.lds_wait(C_PF, 4, T + 4, T + 5, sleep=2)
        for kb in range(2):
            for i in range(8):
                vm.wait_n(o.ud - 1)
                vm.issue('buffer_load_dwordx4 %s, v%d, %s, s%d offen nt' % (
                    vr((RAW, 104)[kb] + 4 * i, 4), VW, srd(SRD_B), sOff), ('w', kb))
                a('s_add_u32 s%d, s%d, %d' % (sOff, sOff, 8192 if i < 7 else 25 * 8192))
        a('v_lshlrev_b32 v%d, 4, v1' % VM_)
        a('v_add_u32 v%d, 0x%x, v%d' % (VM_, MLS, VM_))
        a('v_lshrrev_b32 v%d, 1, v%d' % (VC, T))
        a('v_lshlrev_b32 v%d, 18, v%d' % (VC, VC))
        a('v_lshl_add_u32 v%d, v%d, 4, v%d' % (VC, T + 2, VC))
        a('v_and_b32 v%d, 1, v1' % (T + 3))
        a('v_lshl_add_u32 v%d, v%d, 6, v%d' % (VC, T + 3, VC))
        a('v_cmp_eq_u32 s[%d:%d], 1, v%d' % (S_MK, S_MK + 1, T + 3))
        a('s_lshl_b32 s7, s%d, 5' % S_WAVE)
        a('s_add_u32 s7, s7, s%d' % S_H)
        a('s_lshl_b32 s7, s7, 7')
        a('s_add_u32 s7, s7, 0x%x' % WS_CTX)
        a('v_add_u32 v%d, s7, v%d' % (VC, VC))
        a('s_lshl_b32 s7, s%d, 11' % S_WAVE)
        a('s_add_u32 s7, s7, 0x%x' % OPART)
        a('v_lshl_add_u32 v%d, v1, 5, s7' % VP)
        vm.wait(('w', 0))
        self.perm_block(FW, RAW)
        vm.wait(('w', 1))
        self.perm_block(FW + 32, 104)
        self.stamp(vm, 3, T)
        if o.cut & 1:
            a('s_branch L_END')
        self.nonce_lds(T)
        self.lds_wait(C_OK2, 1, T, T + 1, sleep=4)
        a('s_setprio 3')
        loads = ['s_mov_b32 s%d, %d\nbuffer_load_dwordx4 %s, v%d, %s, s%d offen sc1%s' % (
            sOff, 32768 * n, vr(X + 4 * n, 4), VC, srd(SRD_WS), sOff, ' nt' if o.cnt & 2 else '') for n in range(8)]
        WN = 148
        Lp, Lpd = a.uniq('UM'), a.uniq('UMD')
        a('s_mov_b64 s[%d:%d], 0' % (S_MK2, S_MK2 + 1))
        a('s_mov_b32 s%d, %d' % (S_SPIN, o.spin * 8))
        a.label(Lp)
        a('ds_read_b128 %s, v%d' % (vr(WJ, 4), VM_))
        a('s_waitcnt lgkmcnt(0)')
        self.bad(WJ, T)
        a('s_or_b64 s[%d:%d], vcc, s[%d:%d]' % (S_MK3, S_MK3 + 1, S_MK2, S_MK2 + 1))
        for n in range(8):
            Ls = a.uniq('UMS')
            m = (0xAAAA if n >> 2 else 0x5555) << (16 * (n & 1))
            hi = (n >> 1) & 1
            a('s_and_b32 s7, s%d, 0x%x' % (S_MK3 + hi, m))
            a('s_cbranch_scc1 %s' % Ls)
            a(loads[n])
            a('s_or_b32 s%d, s%d, 0x%x' % (S_MK2 + hi, S_MK2 + hi, m))
            a.label(Ls)
        a('s_cbranch_vccz %s' % Lpd)
        a('s_sleep 1')
        a('s_sub_u32 s%d, s%d, 1' % (S_SPIN, S_SPIN))
        a('s_cmp_lg_u32 s%d, 0' % S_SPIN)
        a('s_cbranch_scc1 %s' % Lp)
        a.label(Lpd)
        self.stamp(vm, 4, T)

        def weights():
            M, Lx = WJ, WJ + 1
            mx = WJ + 2
            a('v_max_f32_dpp v%d, v%d, v%d quad_perm:[1,0,3,2] row_mask:0xf bank_mask:0xf' % (mx, M, M))
            a('v_max_f32_dpp v%d, v%d, v%d quad_perm:[2,3,0,1] row_mask:0xf bank_mask:0xf' % (mx, mx, mx))
            for sw in ('v_permlane32_swap_b32', 'v_permlane16_swap_b32'):
                a('v_mov_b32 v%d, v%d' % (mx + 1, mx))
                a('%s v%d, v%d' % (sw, mx, mx + 1))
                a('v_max_f32 v%d, v%d, v%d' % (mx, mx, mx + 1))
            a('v_sub_f32 v%d, v%d, v%d' % (M, M, mx))
            a('v_exp_f32 v%d, v%d' % (M, M))
            a('v_mul_f32 v%d, v%d, v%d' % (Lx, Lx, M))
            a('v_add_f32_dpp v%d, v%d, v%d quad_perm:[1,0,3,2] row_mask:0xf bank_mask:0xf' % (Lx, Lx, Lx))
            a('v_add_f32_dpp v%d, v%d, v%d quad_perm:[2,3,0,1] row_mask:0xf bank_mask:0xf' % (Lx, Lx, Lx))
            self.row_sum([Lx], mx)
            a('v_rcp_f32 v%d, v%d' % (Lx, Lx))
            a('v_mul_f32 v%d, v%d, v%d' % (WJ, M, Lx))
            a('v_mov_b32 v%d, v%d' % (WJ + 1, WJ))
            a('v_permlane16_swap_b32 v%d, v%d' % (WJ, WJ + 1))
            a('v_mov_b32 v%d, v%d' % (WJ + 2, WJ))
            a('v_mov_b32 v%d, v%d' % (WJ + 3, WJ + 1))
            a('v_permlane32_swap_b32 v%d, v%d' % (WJ, WJ + 2))
            a('v_permlane32_swap_b32 v%d, v%d' % (WJ + 1, WJ + 3))
            for e in range(2):
                for jj in range(4):
                    a('v_mov_b32_dpp v%d, v%d quad_perm:[%d,%d,%d,%d] row_mask:0xf bank_mask:0xf' % (
                        WN + 4 * e + jj, WJ + jj, e, e, 2 + e, 2 + e))
        weights()
        a('s_waitcnt vmcnt(0)')
        self.stamp(vm, 5, T)
        OPN = 140
        for n in range(8):
            u = U + 8 * (n & 1)
            self.unpack8(u, X + 4 * n)
            for e in range(8):
                a('%s v%d, v%d, v%d' % ('v_fmac_f32' if n else 'v_mul_f32', AC + e, u + e, WN + n))
        for k in range(4):
            a('v_cvt_pk_bf16_f32 v%d, v%d, v%d' % (AC + 8 + k, AC + 2 * k, AC + 2 * k + 1))
        for k in range(4):
            a('v_cndmask_b32 v%d, v%d, 0, s[%d:%d]' % (OPN + k, AC + 8 + k, S_MK, S_MK + 1))
            a('v_cndmask_b32 v%d, 0, v%d, s[%d:%d]' % (OPN + 4 + k, AC + 8 + k, S_MK, S_MK + 1))
        if o.dump & 2:
            a('s_lshl_b32 s7, s%d, 3' % S_H)
            a('s_add_u32 s7, s7, s%d' % S_WAVE)
            a('s_lshl_b32 s7, s7, 15')
            a('s_add_u32 s7, s7, 0x800000')
            a('v_lshl_add_u32 v%d, v1, 4, s7' % T)
            for k in range(8):
                a('s_mov_b32 s7, %d' % (1024 * (21 + k)))
                a('buffer_store_dwordx4 %s, v%d, %s, s7 offen' % (vr(X + 4 * k, 4), T, srd(SRD_WS)))
            a('s_waitcnt vmcnt(0)')
        D = 8
        for kb in range(2):
            for c in range(8):
                a('v_mfma_f32_16x16x32_bf16 %s, %s, %s, %s' % (
                    vr(D + 4 * c, 4), vr(OPN + 4 * kb, 4), vr(FW + 32 * kb + 4 * c, 4),
                    '0' if kb == 0 else vr(D + 4 * c, 4)))
        R = 104
        for c in range(8):
            self.add2(D + 4 * c, D + 4 * c, D + 4 * c + 2)
        for c in range(8):
            a('v_add_f32 v%d, v%d, v%d' % (R + c, D + 4 * c, D + 4 * c + 1))
        a('ds_write_b128 v%d, %s' % (VP, vr(R, 4)))
        a('ds_write_b128 v%d, %s offset:16' % (VP, vr(R + 4, 4)))
        if o.dump:
            a('s_lshl_b32 s7, s%d, 3' % S_H)
            a('s_add_u32 s7, s7, s%d' % S_WAVE)
            a('s_lshl_b32 s7, s7, 15')
            a('s_add_u32 s7, s7, 0x800000')
            a('v_lshl_add_u32 v%d, v1, 4, s7' % T)
            regs = [R, R + 4, AC + 8, WN, WN + 4] + [AC, AC + 4, AC + 12, OPN, OPN + 4] + [FW + 4 * k for k in range(11)]
            for k, r in enumerate(regs):
                a('s_mov_b32 s7, %d' % (1024 * k))
                a('buffer_store_dwordx4 %s, v%d, %s, s7 offen' % (vr(r, 4), T, srd(SRD_WS)))
        a('v_and_b32 v%d, 31, v1' % T)
        a('s_lshl_b32 s7, s%d, 8' % S_WAVE)
        a('s_add_u32 s7, s7, 0x%x' % OPART)
        a('v_lshl_add_u32 v%d, v%d, 3, s7' % (VP, T))
        a('s_lshl_b32 s7, s%d, 7' % S_WAVE)
        a('s_add_u32 s7, s7, 0x%x' % OBUF)
        a('v_lshl_add_u32 v%d, v%d, 2, s7' % (VC, T))
        a('s_waitcnt lgkmcnt(0)')
        a('s_barrier')
        for k in range(8):
            a('ds_read_b64 v[%d:%d], v%d offset:%d' % (D + 2 * k, D + 2 * k + 1, VP, 2048 * k))
        a('s_waitcnt lgkmcnt(0)')
        for st in (8, 4, 2):
            for k in range(0, st, 2):
                self.add2(D + k, D + k, D + k + st)
        a('v_cvt_pk_bf16_f32 v%d, v%d, v%d' % (D, D, D + 1))
        a('ds_write_b32 v%d, v%d' % (VC, D))
        a('s_waitcnt lgkmcnt(0)')
        a('s_barrier')
        self.stamp(vm, 6, T)
        if o.wb:
            LN = a.uniq('WB')
            a('s_lshl4_add_u32 s7, s%d, s%d' % (S_SLOT, S_WAVE))
            a('s_cmp_lg_u32 s7, 0')
            a('s_cbranch_scc1 %s' % LN)
            a('s_sleep %d' % o.wb)
            a('buffer_wbl2 sc1')
            if o.hs:
                a('s_waitcnt vmcnt(0)')
            a.label(LN)
        self.end()

    def w_stage2(self):
        a, o = self.a, self.o
        vm = VM(a)
        self.sec('W2A')
        a.label('L_W2')
        self.common(True, split=True)
        sW, sOff, sM0 = S_T + 2, S_T + 10, S_T + 11
        VW, VY, VO, T = 2, 3, 4, 4
        a('s_sub_u32 s%d, s%d, 8' % (sW, S_WAVE))
        a('s_lshl_b32 s7, s%d, 2' % S_SLOT)
        a('s_add_u32 s7, s7, s%d' % sW)
        a('s_lshl_b32 s7, s7, 17')
        a('s_lshl_b32 s%d, s%d, 10' % (sOff, S_G))
        a('s_add_u32 s%d, s%d, s7' % (sOff, sOff))
        a('s_lshl_b32 s%d, s%d, 14' % (sM0, sW))
        a('v_lshlrev_b32 v%d, 4, v1' % VW)
        a('s_lshl_b32 s7, s%d, 6' % sW)
        a('v_xor_b32 v%d, s7, v%d' % (T, VW))
        for k in range(1, 4):
            a('v_xor_b32 v%d, %d, v%d' % (T + k, k << 4, T))
        a('s_waitcnt lgkmcnt(0)')
        self.nonce_make(8)
        vm.q.append('nonce')
        mk_srd(a, SRD_C, P_WUK, 4194304)
        for i in range(16):
            vt = T + (i >> 2)
            if i == o.ukd:
                self.sec('W2B', True)
                self.common(True)
                a('s_barrier')
            a('s_mov_b32 m0, s%d' % sM0)
            if i >= o.ukd:
                vm.wait_n(o.ukd - 1)
            vm.issue('buffer_load_dwordx4 v%d, %s, s%d offen nt lds' % (vt, srd(SRD_C), sOff), 'uk')
            a('s_addk_i32 s%d, 8192' % sOff)
            a('s_addk_i32 s%d, 1024' % sM0)
        if o.pax == 2:
            self.lds_signal(C_UI, 8, 9)
        self.sec('W2R', True)
        a('s_cmp_lt_u32 s%d, 4' % S_SLOT)
        a('s_cselect_b32 s%d, s%d, s%d' % (S_T + 12, P_BWO, P_WO))
        a('s_cselect_b32 s%d, s%d, s%d' % (S_T + 13, P_BWO + 1, P_WO + 1))
        mk_srd(a, SRD_D, S_T + 12, 4194304)
        a('v_lshrrev_b32 v%d, 4, v1' % T)
        a('v_lshlrev_b32 v%d, 13, v%d' % (VW, T))
        a('v_and_b32 v%d, 15, v1' % T)
        a('v_lshl_add_u32 v%d, v%d, 4, v%d' % (VW, T, VW))
        a('s_lshl_b32 s7, s%d, 17' % S_H)
        a('s_lshl_b32 s%d, s%d, 8' % (sOff, sW))
        a('s_add_u32 s7, s7, s%d' % sOff)
        a('v_add_u32 v%d, s7, v%d' % (VW, VW))
        self.y_addr(VY, T, sW)
        vm.wait_all()
        self.lds_signal(C_UK, T, T + 1)
        self.stamp(vm, 0, T)
        LU, LJ = a.uniq('S2U'), a.uniq('S2J')

        def stream(depth, slow=0):
            q0 = list(vm.q)
            for kb in range(4):
                for i in range(8):
                    if i & 3 == 0:
                        vm.wait_n(depth)
                    elif i & 1 == 0 and 8 * kb + i < slow:
                        vm.wait_n(0)
                    vm.issue('buffer_load_dwordx4 %s, v%d, %s, s%d offen offset:%d nt' % (
                        vr(40 + 32 * kb + 4 * i, 4), VW, srd(SRD_D), sOff, (i & 3) * 1024), ('w', kb))
                    if i == 3:
                        a('s_add_u32 s%d, s%d, 4096' % (sOff, sOff))
                    if i == 7:
                        a('s_add_u32 s%d, s%d, %d' % (sOff, sOff, 32768 - 4096))
            vm.wait_all()
            vm.q = q0
        a('s_mov_b32 s%d, 0' % sOff)
        if o.hold:
            self.lds_wait(C_PF if o.pax == 2 else C_QA, 4, T, T + 1, sleep=4)
        a('s_cmp_lt_u32 s%d, 4' % S_SLOT)
        a('s_cbranch_scc1 %s' % LU)
        if o.pf or o.pax:
            self.lds_wait(C_PF, 4, T, T + 1, sleep=8)
        for _ in range(o.xdl):
            a('s_sleep 36')
        stream(o.sdx, o.xsw)
        a('s_branch %s' % LJ)
        a.label(LU)
        for _ in range(o.udl):
            a('s_sleep 36')
        stream(o.sdu)
        a.label(LJ)
        vm.q = []
        for kb in range(4):
            self.perm_block(8 + 32 * kb, 40 + 32 * kb)
        OP, D0, T = 136, 152, 160
        self.stamp(vm, 1, T)
        if o.cut & 1:
            a('s_branch L_END')
        self.nonce_lds(T)
        LX, LM = a.uniq('S2X'), a.uniq('S2M')
        a('v_bfe_u32 v%d, v1, 2, 2' % VO)
        a('v_lshlrev_b32 v%d, 8, v%d' % (VO, VO))
        a('v_lshrrev_b32 v%d, 4, v1' % T)
        a('v_lshl_add_u32 v%d, v%d, 4, v%d' % (VO, T, VO))
        a('s_mov_b32 s%d, 4096' % sOff)
        a('s_cmp_ge_u32 s%d, 4' % S_SLOT)
        a('s_cbranch_scc1 %s' % LX)
        a('v_add_u32 v%d, 0x%x, v%d' % (VO, OBUF, VO))
        LN = a.uniq('U8')
        a('s_cmp_lg_u32 s%d, 8' % S_WAVE)
        a('s_cbranch_scc1 %s' % LN)
        a('v_and_b32 v5, 15, v1')
        a('v_lshl_add_u32 v5, v5, 2, v%d' % T)
        a('s_lshl_b32 s7, s%d, 4' % S_H)
        a('s_add_u32 s7, s7, 0x%x' % WS_MLB)
        a('v_lshl_add_u32 v5, v5, 9, s7')
        a('v_lshlrev_b32 v6, 4, v1')
        a('v_add_u32 v6, 0x%x, v6' % MLS)
        bufs = [OP, OP + 4, OP + 8][:o.upp]
        if o.tlb & 2:
            a('v_lshlrev_b32 v7, 15, v1')
            a('s_mov_b32 s7, 0x%x' % (WS_CTX + 0x7f80))
            a('buffer_load_dword v%d, v7, %s, s7 offen nt' % (OP + 12, srd(SRD_WS)))

        def mld(r):
            return 'buffer_load_dwordx4 %s, v5, %s, 0 offen sc1' % (vr(r, 4), srd(SRD_WS))
        self.poll(vm, [mld(OP)], OP, T, sleep=o.usl, anyok=True)
        a('s_setprio 3')
        a('ds_write_b128 v6, %s' % vr(OP, 4))
        self.lds_signal(C_OK2, T, T + 1)
        Lp, Lpd = a.uniq('U8P'), a.uniq('U8D')
        a('s_cbranch_vccz %s' % Lpd)
        for r in bufs:
            a(mld(r))
            a('s_sleep 4')
        a('s_mov_b32 s%d, %d' % (S_SPIN, o.spin))
        a.label(Lp)
        for r in bufs:
            a('s_waitcnt vmcnt(%d)' % (len(bufs) - 1))
            a('ds_write_b128 v6, %s' % vr(r, 4))
            self.bad(r, T)
            a('s_cbranch_vccz %s' % Lpd)
            a('s_waitcnt lgkmcnt(0)')
            a(mld(r))
        a('s_sub_u32 s%d, s%d, 1' % (S_SPIN, S_SPIN))
        a('s_cmp_lg_u32 s%d, 0' % S_SPIN)
        a('s_cbranch_scc1 %s' % Lp)
        a.label(Lpd)
        a('s_waitcnt vmcnt(0)')
        a.label(LN)
        a('s_setprio 3')
        a('s_barrier')
        a('s_barrier')
        for kb in range(4):
            a('ds_read_b128 %s, v%d offset:%d' % (vr(OP + 4 * kb, 4), VO, 64 * kb))
        a('s_waitcnt lgkmcnt(0)')
        a('s_branch %s' % LM)
        a.label(LX)
        if o.hj:
            a('v_bfe_u32 v5, v1, 2, 2')
            a('v_lshl_add_u32 v5, v5, 8, v%d' % VO)
            a('v_add_u32 v6, 1, v1')
            a('v_and_b32 v6, 1, v6')
            a('v_lshl_add_u32 v5, v6, 8, v5')
            a('v_add_u32 v5, 0x%x, v5' % OHB)
            a('v_and_b32 v6, 3, v1')
            a('v_cmp_ne_u32 s[%d:%d], 0, v6' % (S_MK, S_MK + 1))
            self.lds_wait(C_VH, 8, T, T + 1, sleep=4)
            for kb in range(4):
                a('ds_read_b128 %s, v5 offset:%d' % (vr(OP + 4 * kb, 4), 64 * kb))
            a('s_waitcnt lgkmcnt(0)')
            self.stamp(vm, 4, T)
        a('v_and_b32 v%d, 3, v1' % T)
        a('v_lshl_add_u32 v%d, v%d, 6, v%d' % (VO, T, VO))
        a('s_lshl_b32 s7, s%d, 11' % S_H)
        a('s_add_u32 s7, s7, 0x%x' % WS_OA)
        a('v_add_u32 v%d, s7, v%d' % (VO, VO))
        ld = ['buffer_load_dwordx4 %s, v%d, %s, 0 offen offset:%d sc1' % (vr(D0 + 4 * e, 4), VO, srd(SRD_WS), 1024 * e)
              for e in range(2)]
        self.poll(vm, ld[:1], D0, T, sleep=o.xsl, anyok=True)
        a('s_setprio 3')

        def mk(r):
            return (['buffer_load_dwordx4 %s, v%d, %s, 0 offen offset:%d sc1' % (vr(r + 4 * e, 4), VO, srd(SRD_WS), 1024 * e)
                     for e in range(2)], [r, r + 4])

        def spread(r):
            if o.hj:
                a('s_mov_b64 vcc, s[%d:%d]' % (S_MK, S_MK + 1))
            for kb in range(4):
                for k in range(4):
                    d, x = OP + 4 * kb + k, r + 4 * (k >> 1) + (k & 1)
                    if o.hj:
                        a('v_cndmask_b32_dpp v%d, v%d, v%d, vcc quad_perm:[%d,%d,%d,%d] row_mask:0xf bank_mask:0xf' % (
                            d, x, d, kb, kb, kb, kb))
                    else:
                        a('v_mov_b32_dpp v%d, v%d quad_perm:[%d,%d,%d,%d] row_mask:0xf bank_mask:0xf' % (d, x, kb, kb, kb, kb))
        if o.xpp:
            self.poll_pipe(vm, mk, [D0, D0 + 8], spread, gap=o.xpp)
        else:
            self.poll_sel(vm, ld, [D0, D0 + 4], T)
            spread(D0)
        a.label(LM)
        a('s_nop 1')
        T = 4
        self.stamp(vm, 2, T)

        def D(c):
            return 4 if c == 0 else 8 + 4 * (c - 1)
        for c in range(8):
            for kb in range(4):
                a('v_mfma_f32_16x16x32_bf16 %s, %s, %s, %s' % (
                    vr(D(c), 4), vr(OP + 4 * kb, 4), vr(8 + 32 * kb + 4 * c, 4), '0' if kb == 0 else vr(D(c), 4)))
        T = 48
        if o.hj:
            LN = a.uniq('S2A')
            a('s_cmp_lt_u32 s%d, 4' % S_SLOT)
            a('s_cbranch_scc1 %s' % LN)
            for k in (1, 2):
                for c in range(8):
                    a('v_add_f32 v%d, v%d, v%d' % (D(c), D(c), D(c) + k))
            a.label(LN)
            a('s_nop 7')
        Y = 40
        for e in range(2):
            self.set_tag(Y + 4 * e)
            for m in range(2):
                a('v_cvt_pk_bf16_f32 v%d, v%d, v%d' % (Y + 4 * e + m, D(4 * e + 2 * m), D(4 * e + 2 * m + 1)))
            a('buffer_store_dwordx4 %s, v%d, %s, %s offen sc1' % (
                vr(Y + 4 * e, 4), VY, srd(SRD_WS), 's%d' % sOff if e else '0'))
        self.stamp(vm, 3, T)
        if o.wbx:
            LN = a.uniq('WB')
            a('s_cmp_lg_u32 s%d, 8' % S_WAVE)
            a('s_cbranch_scc1 %s' % LN)
            a('s_cmp_lt_u32 s%d, %d' % (S_SLOT, 4 if o.wbx == 1 else 7))
            a('s_cbranch_scc1 %s' % LN)
            a('s_waitcnt vmcnt(0)')
            a('buffer_wbl2 sc1')
            if o.hs:
                a('s_waitcnt vmcnt(0)')
            a.label(LN)
        self.end()

    def build(self):
        a = self.a
        hdr = open(os.path.join(os.path.dirname(os.path.abspath(__file__)), '..', NAME + '.s.ref')).read()
        head = []
        for line in hdr.split('\n'):
            if line.startswith('; @launch'):
                if self.o.hs:
                    head.append('; @launch kernel=%s_kernel grid=(256,1,1) block=(768,1,1) lds=%d' % (NAME, LDS_BYTES))
                    head.append('; @launch kernel=hs_kernel grid=(1,1,1) block=(64,1,1) lds=0')
                else:
                    head.append('; @launch grid=(256,1,1) block=(768,1,1) lds=%d' % LDS_BYTES)
            elif line.startswith(';'):
                head.append(line)
            else:
                break
        a.raw('\n'.join(head))
        a.raw('.amdgcn_target "amdgcn-amd-amdhsa--gfx950"\n.text\n.globl %s_kernel\n.p2align 12\n.p2align 8\n'
              '.type %s_kernel,@function\n%s_kernel:' % (NAME, NAME, NAME))
        self.sec('ENTRY')
        self.entry()
        self.a_att()
        self.a_svc()
        self.w_role()
        from gen3_c import c_role
        c_role(self)
        self.sec('END')
        a.label('L_END')
        self.end()
        a.label('L_END0')
        a('s_endpgm')
        self.sec('TAIL')
        a.label('L_CODE_END')
        a.raw('''.section .rodata,"a"
.p2align 6
.amdhsa_kernel %s_kernel
  .amdhsa_next_free_vgpr 168
  .amdhsa_next_free_sgpr 102
  .amdhsa_accum_offset 168
  .amdhsa_group_segment_fixed_size 0
  .amdhsa_kernarg_size 112
  .amdhsa_user_sgpr_count 2
  .amdhsa_user_sgpr_kernarg_segment_ptr 1
  .amdhsa_system_sgpr_workgroup_id_x 1
  .amdhsa_float_denorm_mode_32 3
.end_amdhsa_kernel
''' % NAME)
        if self.o.hs:
            from hs import hs_kernel
            a.raw(hs_kernel(WS_HS, 256 * 12, self.o.hs))
        txt = a.text()
        if self.o.hnt:
            out = []
            for l in txt.split('\n'):
                if l.rstrip().endswith(' sc1') and 'buffer_' in l and 'wbl2' not in l:
                    if ('store' in l and self.o.hnt & 1) or ('load' in l and self.o.hnt & 2):
                        l = l.rstrip() + ' nt'
                out.append(l)
            txt = '\n'.join(out)
        return layout(txt) if self.o.lay else txt


ORD = os.environ.get('ORD', 'W2A,AA,CA').split(',')


def sizes_of(lines):
    import subprocess, tempfile, re
    txt = []
    for l in lines:
        txt.append(l)
        if l.startswith(';@SEC TAIL'):
            txt += ['LT_%s:' % p for p in ('AR', 'AR2', 'U1', 'W2R', 'CR', 'CR2')]
    with tempfile.TemporaryDirectory() as d:
        open(d + '/t.s', 'w').write('\n'.join(txt))
        subprocess.check_call(['clang', '-x', 'assembler', '-target', 'amdgcn-amd-amdhsa', '-mcpu=gfx950',
                               '-c', d + '/t.s', '-o', d + '/t.o'])
        dis = subprocess.check_output(['llvm-objdump', '-d', '--mcpu=gfx950', d + '/t.o']).decode()
    sz = [4 * len(m.group(1).split()) for m in re.finditer(r'// [0-9A-F]+: ((?:[0-9A-F]{8} ?)+)', dis)]
    out, k = [], 0
    for l in lines:
        if l.startswith('    ') and not l.strip().startswith(';'):
            out.append(sz[k])
            k += 1
        else:
            out.append(0)
    return out


def layout(text):
    lines = text.split('\n')
    sz = sizes_of(lines)
    secs, cur = {}, 'HEAD'
    for l, n in zip(lines, sz):
        if l.startswith(';@SEC '):
            cur = l.split()[1]
            continue
        secs.setdefault(cur, []).append((l, n))

    def size(n):
        return sum(x[1] for x in secs[n])

    def body(n):
        return [x[0] for x in secs[n]]

    def stub(p):
        return ['.p2align 12', 'LT_%s:' % p, '    s_branch LR_%s' % p]

    def split(n):
        out, pos, done = [], 4, False
        for l, k in secs[n]:
            if not done and k and pos + k + 4 > 4096:
                out += ['    s_branch LC_%s' % n] + stub(n + '2') + ['LC_%s:' % n]
                done, pos = True, 4
            out.append(l)
            pos += k
        assert done
        return out, pos
    out = body('HEAD')
    p0 = ['ENTRY'] + ORD + ['AB', 'W2B', 'CB', 'END']
    print('first bursts:', [(n, size(n)) for n in p0])
    for n in p0:
        out += body(n)
    ar, rest = split('AR')
    out += stub('AR') + ar + body('ASVC')
    out += ['.p2align 12'] + body('W0') + body('CSVC')
    if 'VH' in secs:
        out += ['.p2align 12'] + body('VH')
    out += stub('U1') + body('U1') + stub('W2R') + body('W2R')
    cr, crest = split('CR')
    out += stub('CR') + cr + body('TAIL')
    print('layout: page0 %d (+768 harness), AR2+ASVC %d, W0+CSVC %d, U1 %d, W2R %d, CR2 %d' % (
        sum(map(size, p0)), rest + size('ASVC'), size('W0') + size('CSVC'), size('U1'), size('W2R'), crest))
    return '\n'.join(out)


if __name__ == '__main__':
    import gen3
    opt = gen3.Opt()
    out = os.path.join(os.path.dirname(os.path.abspath(__file__)), '..', NAME + '.s')
    for arg in sys.argv[1:]:
        if arg.startswith('out='):
            out = arg[4:]
        else:
            k, v = arg.split('=')
            assert hasattr(opt, k), k
            setattr(opt, k, int(v))
    g = gen3.Gen(opt)
    txt = g.build()
    open(out, 'w').write(txt)
    print('wrote', out, len(txt), 'bytes; auto nops:', g.a.nops)
```

```python
import sys
sys.path.insert(0, "gen"); sys.path.insert(0, "/code")
from asmlib import *
import hs
N = 'concat_heads__sliding_block_cached__compressed_kv_cla__decode'
WS_HS = 0xF00000
def mk(name, nw, lds, vg):
    a = Asm()
    a.raw('.text\n.globl probe_kernel\n.p2align 8\n.type probe_kernel,@function\nprobe_kernel:')
    a('s_memrealtime s[60:61]')
    a('s_cmp_ge_u32 s2, 256')
    a('s_cbranch_scc1 PR_END')
    a('s_load_dwordx4 s[32:35], s[0:1], 96')
    a('v_lshrrev_b32 v1, 6, v0')
    a('v_readfirstlane_b32 s3, v1')
    a('s_waitcnt lgkmcnt(0)')
    a('s_mov_b32 s40, s34')
    a('s_and_b32 s41, s35, 0xffff')
    a('s_mov_b32 s42, 0x1000000')
    a('s_mov_b32 s43, 0x20000')
    a('s_mul_i32 s7, s2, %d' % nw)
    a('s_add_u32 s7, s7, s3')
    a('s_lshl_b32 s7, s7, 3')
    a('s_add_u32 s7, s7, 0x%x' % WS_HS)
    a('v_mov_b32 v2, s7')
    a('v_mov_b32 v4, s60')
    a('v_mov_b32 v5, s60')
    a('s_mov_b64 exec, 1')
    a('buffer_store_dwordx2 v[4:5], v2, s[40:43], 0 offen')
    a.label('PR_END')
    a('s_endpgm')
    a.raw('''.section .rodata,"a"
.p2align 6
.amdhsa_kernel probe_kernel
  .amdhsa_next_free_vgpr %d
  .amdhsa_next_free_sgpr 80
  .amdhsa_accum_offset %d
  .amdhsa_group_segment_fixed_size 0
  .amdhsa_kernarg_size 112
  .amdhsa_user_sgpr_count 2
  .amdhsa_user_sgpr_kernarg_segment_ptr 1
  .amdhsa_system_sgpr_workgroup_id_x 1
.end_amdhsa_kernel
''' % (vg, vg))
    t = open('/code/%s.s' % N).read()
    old = '; @launch grid=(256,1,1) block=(768,1,1) lds=163840'
    new = ('; @launch kernel=probe_kernel grid=(256,1,1) block=(%d,1,1) lds=%d\n' % (nw * 64, lds) +
           '; @launch kernel=%s_kernel grid=(256,1,1) block=(768,1,1) lds=163840\n' % N +
           '; @launch kernel=hs_kernel grid=(1,1,1) block=(64,1,1) lds=0')
    h = hs.hs_kernel(WS_HS, 256 * nw, 2, nw).replace('s_lshl_b32 s30, s26, 3', 's_mov_b32 s30, 0')
    open('scratch/%s.s' % name, 'w').write(t.replace(old, new) + a.text() + h)
mk('pre_a', 12, 163840, 168); mk('pre_b', 12, 0, 168); mk('pre_c', 1, 0, 8); mk('pre_a2', 12, 163840, 168); mk('pre_c2', 1, 0, 8); mk('pre_d', 4, 163840, 64)
```

```python
import sys
import os
sys.path.insert(0, os.path.dirname(os.path.abspath(__file__)))
from asmlib import Asm, vr, sr
import struct

NAME = 'concat_heads__sliding_block_cached__compressed_kv_cla__decode'


class Opt:
    dev = 0
    hs = 0
    spin = 200000
    kd = 3
    kd1 = 4
    kn1 = 0
    rot = 0
    bd = 4
    ud = 3
    sdu = 2
    sdx = 0
    xmap = 0
    bap = 0
    noswz = 0
    rsl = 20
    xsl = 2
    hold = 1
    ev = 1
    xsw = 16
    q3e = 0
    q3d = 2
    fq = 0
    nl = 0
    qg = 2
    wrot = 0
    pvb = 0
    bea = 0
    qsl = 8
    vsl = 70
    hx = 2
    bx = 6
    kw = 0
    kwl = 4
    knb = 0
    qb = 5
    pax = 0
    pad = 8
    pah = 1
    xdl = 0
    udl = 0
    vdl = 0
    q3r = 1
    q3b = 2
    hnt = 0
    cnt = 0
    xr = 0
    xm = 1
    pw1 = 0
    pw2 = 0
    po1 = 8
    po2 = 130
    pws = 5
    wbx = 0
    wb = 0
    ofl = 0
    tlb = 0
    tls = 16
    srot = 0
    spf = 0
    spd = 2
    pfl = 0
    lay = 1
    psl8 = 40
    dump = 0
    kdl = 5
    knl = 0
    bal = 1
    hj = 0
    vhd = 3
    cpf = 0
    n2b = 2
    n2s = 4
    n3b = 0
    q3sl = 8
    kh = 0
    qpl = 0
    qev = 21
    pw = 0
    q3p = 3
    cany = 1
    xpp = 4
    upp = 2
    rpp = 4
    pf = 0
    pfe = 0
    pfd = 8
    ndb = 16
    n3 = 0
    bd3e = 2
    swp = 0
    n2 = 8
    nb = 7
    cpre = 0
    l2 = 1
    pv = 32
    pvd = 2
    rpn = 2
    pvs = 0
    cutsl = 1
    csl2 = 1
    asl = 16
    usl = 16
    cut = 0
    q0 = 16
    qr = 2
    bu = 1
    noclr = 0
    psl = 26
    wfe = 0
    nsl = 8
    ukd = 8
    ukd1 = 8
    ukn1 = 0
    bd3 = 8
    csl = 24
    wsl = 4
    wsl2 = 4


NW = 12
NS = 11
NQ = 24

WS_QABS = 0x000000
WS_QBP = 0x040000
WS_QAP = 0x080000
WS_CHK = 0x0C0000
WS_BEA = 0x0C2000
WS_OA = 0x0D0000
WS_MLB = 0x0E0000
WS_PH = 0x200000
WS_QAW = 0x180000
WS_Y = 0x100000
WS_CTX = 0x500000
WS_TS = 0x800000
WS_HS = 0xF00000
WS_SIZE = 0x1000000

RING0 = 0
RING1 = 65536
QST = 98304
MISC = 147456
C_CLR = MISC + 0
C_Q = MISC + 4
C_ML = MISC + 8
C_O = MISC + 12
C_ATT = MISC + 16
C_UK = MISC + 20
C_OK = MISC + 24
C_OK2 = MISC + 28
C_OB = MISC + 32
C_FL = MISC + 36
C_QST = MISC + 40
C_S0 = MISC + 44
C_Q3 = MISC + 48
C_X1 = MISC + 52
C_X2 = MISC + 56
C_X3 = MISC + 60
C_PA = MISC + 64
C_PB = MISC + 68
C_QA = MISC + 72
C_N = MISC + 76
C_PUB = MISC + 88
C_PF = MISC + 92
C_VH = MISC + 96
C_UI = MISC + 100
C_TS = MISC + 104
NONCE = MISC + 80
QBUF = MISC + 256
MLBUF = MISC + 512
OBUF = MISC + 1024
PT = MISC + 2048
PHL = MISC + 4096
OHB = MISC + 8192
MLS = MISC + 2048
PBUF = MISC + 4608
TMAX = MISC + 12800
LBUF = MISC + 13312
ALPHA = MISC + 15872
MBUF = MISC + 16000
PPART = 0
OPART = 65536
OPA = MISC + 4096
VST = 16384
LDS_BYTES = 163840

SCALE_LOG2E = 0.08838834764831845 * 1.4426950408889634


def f32bits(x):
    return struct.unpack('<I', struct.pack('<f', x))[0]


P_AX, P_K, P_V, P_WQ, P_WO, P_BX, P_CKV, P_BWQ, P_WUK, P_WUV, P_BWO, P_OUT, P_DBG, P_WS = [8 + 2 * i for i in range(14)]
S_WAVE, S_G, S_SLOT, S_H = 3, 4, 5, 6
SRD_WS, SRD_DBG = 36, 40
SRD_A, SRD_B, SRD_C, SRD_D = 44, 48, 52, 56
S_T = 60
S_SPIN = 80
S_TS = 82
S_EX = 84
S_MK = 86
S_MK2 = 88
S_MK3 = 90
S_LO, S_HI = 92, 93
S_XCC = 96
S_FAR = 97
S_NON = 94


PFL = ['', ' nt', ' sc0', ' sc1', ' sc0 sc1', ' sc0 nt', ' sc1 nt', ' sc0 sc1 nt']


class VM:
    def __init__(self, a):
        self.a = a
        self.q = []

    def issue(self, text, tag=None):
        self.a(text)
        self.q.append(tag)

    def wait(self, tag):
        if tag not in self.q:
            return
        idx = max(i for i, t in enumerate(self.q) if t == tag)
        n = len(self.q) - 1 - idx
        self.a('s_waitcnt vmcnt(%d)' % n)
        self.q = self.q[idx + 1:]

    def wait_n(self, n):
        if len(self.q) > n:
            self.a('s_waitcnt vmcnt(%d)' % n)
            self.q = self.q[len(self.q) - n:]

    def wait_all(self):
        self.a('s_waitcnt vmcnt(0)')
        self.q = []


def mk_srd(a, d, p, nbytes):
    a('s_mov_b32 s%d, s%d' % (d, p))
    a('s_and_b32 s%d, s%d, 0xffff' % (d + 1, p + 1))
    a('s_mov_b32 s%d, 0x%x' % (d + 2, nbytes))
    a('s_mov_b32 s%d, 0x20000' % (d + 3))


def srd(d):
    return 's[%d:%d]' % (d, d + 3)


class Gen:
    def __init__(self, opt):
        self.o = opt
        self.a = Asm()

    def stamp(self, vm, idx, vt):
        if not self.o.dev:
            return
        a = self.a
        a('s_memrealtime s[%d:%d]' % (S_TS, S_TS + 1))
        a('s_waitcnt lgkmcnt(0)')
        a('v_mov_b32 v%d, s%d' % (vt, S_TS))
        a('v_mov_b32 v%d, s%d' % (vt + 1, S_TS + 1))
        a('s_lshl3_add_u32 s%d, s%d, s%d' % (S_TS, S_SLOT, S_G))
        a('s_mul_i32 s%d, s%d, 12' % (S_TS, S_TS))
        a('s_add_u32 s%d, s%d, s%d' % (S_TS, S_TS, S_WAVE))
        a('s_lshl_b32 s%d, s%d, 7' % (S_TS, S_TS))
        a('s_add_u32 s%d, s%d, 0x%x' % (S_TS, S_TS, WS_TS + idx * 8))
        a('v_mov_b32 v%d, s%d' % (vt + 2, S_TS))
        a('s_mov_b64 s[%d:%d], exec' % (S_EX, S_EX + 1))
        a('s_mov_b64 exec, 1')
        vm.issue('buffer_store_dwordx2 v[%d:%d], v%d, %s, 0 offen' % (vt, vt + 1, vt + 2, srd(SRD_WS)), 'ts')
        a('s_mov_b64 exec, s[%d:%d]' % (S_EX, S_EX + 1))

    def sec(self, name, jump=False):
        if jump:
            self.a('s_branch L_%s' % name)
        self.a.raw(';@SEC %s' % name)
        if jump:
            self.a.label('L_%s' % name)

    def touch(self, wave, page):
        a = self.a
        if not self.o.lay:
            return
        a('s_cmp_eq_u32 s%d, %d' % (S_WAVE, wave))
        a('s_cbranch_scc1 LT_%s' % page)
        a.label('LR_%s' % page)

    def xkey(self, d, slot):
        a = self.a
        a('s_lshl3_add_u32 s%d, s%d, s%d' % (d, slot, S_G))
        a('s_mul_i32 s%d, s%d, %d' % (d, d, self.o.xm))
        a('s_lshl_b32 s%d, s%d, %d' % (d, d, self.o.xr))
        a('s_and_b32 s%d, s%d, 0x3ffff' % (d, d))

    def end(self, have=False):
        a = self.a
        if self.o.hs:
            a('s_mov_b64 exec, 1')
            if not have:
                a('s_memrealtime s[98:99]')
            a('s_lshl3_add_u32 s7, s%d, s%d' % (S_SLOT, S_G))
            a('s_mul_i32 s7, s7, 12')
            a('s_add_u32 s7, s7, s%d' % S_WAVE)
            a('s_lshl_b32 s7, s7, 3')
            a('s_add_u32 s7, s7, 0x%x' % WS_HS)
            a('v_mov_b32 v2, s7')
            a('s_waitcnt lgkmcnt(0)')
            a('v_mov_b32 v4, s100')
            a('v_mov_b32 v5, s98')
            a('buffer_store_dwordx2 v[4:5], v2, %s, 0 offen' % srd(SRD_WS))
        a('s_endpgm')

    def lds_signal(self, addr, va, vb):
        a = self.a
        a('v_mov_b32 v%d, 0x%x' % (va, addr))
        a('v_mov_b32 v%d, 1' % vb)
        a('s_waitcnt lgkmcnt(0)')
        a('s_mov_b64 exec, 1')
        a('ds_add_u32 v%d, v%d' % (va, vb))
        a('s_mov_b64 exec, -1')

    def lds_wait(self, addr, target, va, vb, sleep=4):
        a = self.a
        L = a.uniq('LW')
        Ld = a.uniq('LWD')
        a('v_mov_b32 v%d, 0x%x' % (va, addr))
        a('s_mov_b32 s%d, %d' % (S_SPIN, self.o.spin * 8))
        a.label(L)
        a('ds_read_b32 v%d, v%d' % (vb, va))
        a('s_waitcnt lgkmcnt(0)')
        a('v_readfirstlane_b32 s%d, v%d' % (S_T + 19, vb))
        a('s_cmp_ge_u32 s%d, %d' % (S_T + 19, target))
        a('s_cbranch_scc1 %s' % Ld)
        if sleep:
            a('s_sleep %d' % int(sleep))
        a('s_sub_u32 s%d, s%d, 1' % (S_SPIN, S_SPIN))
        a('s_cmp_lg_u32 s%d, 0' % S_SPIN)
        a('s_cbranch_scc1 %s' % L)
        a.label(Ld)

    def nonce_make(self, t):
        if self.o.noclr & 8:
            return
        a = self.a
        L = a.uniq('NM')
        a('s_lshl_b32 s7, s2, 4')
        a('s_add_u32 s7, s7, s%d' % S_WAVE)
        a('s_cmp_lg_u32 s7, %d' % (8 + (2048 if self.o.srot == 1 else 0)))
        a('s_cbranch_scc1 %s' % L)
        a('s_memrealtime s[%d:%d]' % (S_NON, S_NON + 1))
        mk_srd(a, SRD_DBG, P_DBG, 256)
        a('v_mov_b32 v%d, 0' % t)
        a('s_waitcnt lgkmcnt(0)')
        a('s_or_b32 s%d, s%d, 0x80000000' % (S_NON + 1, S_NON + 1))
        a('v_mov_b32 v%d, s%d' % (t + 2, S_NON))
        a('v_mov_b32 v%d, s%d' % (t + 3, S_NON + 1))
        a('s_mov_b64 exec, 1')
        a('buffer_store_dwordx2 v[%d:%d], v%d, %s, 0 offen sc1' % (t + 2, t + 3, t, srd(SRD_DBG)))
        a('s_mov_b64 exec, -1')
        a.label(L)

    def nonce_get(self, vm, t, sleep=4, dbl=0, sig=None):
        if self.o.noclr & 8:
            return
        a = self.a
        L, Ld = a.uniq('NG'), a.uniq('NGD')
        a('v_mov_b32 v%d, 0' % t)
        a('s_mov_b32 s%d, %d' % (S_SPIN, self.o.spin))
        if dbl:
            L2 = a.uniq('NG2')
            a('s_mov_b64 exec, 1')
            a('buffer_load_dwordx2 v[%d:%d], v%d, %s, 0 offen sc1' % (t + 4, t + 5, t, srd(SRD_DBG)))
            a('s_sleep %d' % dbl)
            a('buffer_load_dwordx2 v[%d:%d], v%d, %s, 0 offen sc1' % (t + 2, t + 3, t, srd(SRD_DBG)))
            a('s_mov_b64 exec, -1')
            if sig:
                self.lds_signal(sig, t + 6, t + 7)
            a('s_waitcnt vmcnt(1)')
            a('v_readfirstlane_b32 s%d, v%d' % (S_NON, t + 4))
            a('v_readfirstlane_b32 s%d, v%d' % (S_NON + 1, t + 5))
            a('s_cmp_lg_u32 s%d, 0' % (S_NON + 1))
            a('s_cbranch_scc1 %s' % Ld)
            a('s_branch %s' % L2)
        a.label(L)
        a('s_mov_b64 exec, 1')
        a('buffer_load_dwordx2 v[%d:%d], v%d, %s, 0 offen sc1' % (t + 2, t + 3, t, srd(SRD_DBG)))
        a('s_mov_b64 exec, -1')
        if dbl:
            a.label(L2)
        a('s_waitcnt vmcnt(0)')
        vm.q = []
        a('v_readfirstlane_b32 s%d, v%d' % (S_NON, t + 2))
        a('v_readfirstlane_b32 s%d, v%d' % (S_NON + 1, t + 3))
        a('s_cmp_lg_u32 s%d, 0' % (S_NON + 1))
        a('s_cbranch_scc1 %s' % Ld)
        a('s_sleep %d' % sleep)
        a('s_sub_u32 s%d, s%d, 1' % (S_SPIN, S_SPIN))
        a('s_cmp_lg_u32 s%d, 0' % S_SPIN)
        a('s_cbranch_scc1 %s' % L)
        a.label(Ld)

    def check_in(self, t):
        a = self.a
        a('s_getreg_b32 s%d, hwreg(HW_REG_XCC_ID, 0, 4)' % S_XCC)
        a('s_lshl_b32 s7, s%d, 5' % S_G)
        a('s_add_u32 s7, s7, s%d' % S_SLOT)
        a('s_lshl_b32 s7, s7, 4')
        a('s_add_u32 s7, s7, 0x%x' % WS_CHK)
        a('v_mov_b32 v%d, s7' % t)
        a('v_mov_b32 v%d, s%d' % (t + 2, S_XCC))
        a('v_mov_b32 v%d, 0' % (t + 3))
        self.set_tag(t + 2)
        a('s_mov_b64 exec, 1')
        a('buffer_store_dwordx4 v[%d:%d], v%d, %s, 0 offen' % (t + 2, t + 5, t, srd(SRD_WS)))
        a('s_mov_b64 exec, -1')

    def far_check(self, t, r):
        a = self.a
        a('v_and_b32 v%d, 31, v1' % t)
        a('s_lshl_b32 s7, s%d, 9' % S_G)
        a('s_add_u32 s7, s7, 0x%x' % WS_CHK)
        a('v_lshl_add_u32 v%d, v%d, 4, s7' % (t, t))
        a('buffer_load_dwordx4 %s, v%d, %s, 0 offen sc1' % (vr(r, 4), t, srd(SRD_WS)))
        a('s_waitcnt vmcnt(0)')
        self.bad(r, t)
        a('v_cmp_ne_u32 s[%d:%d], s%d, v%d' % (S_MK, S_MK + 1, S_XCC, r))
        a('s_or_b32 s%d, vcc_lo, s%d' % (S_FAR, S_MK))
        a('s_and_b32 s%d, s%d, 0xffff00ff' % (S_FAR, S_FAR))

    def nonce_share(self, t):
        a = self.a
        a('v_mov_b32 v%d, 0x%x' % (t, NONCE))
        a('v_mov_b32 v%d, s%d' % (t + 2, S_NON))
        a('v_mov_b32 v%d, s%d' % (t + 3, S_NON + 1))
        a('ds_write_b64 v%d, v[%d:%d]' % (t, t + 2, t + 3))
        self.lds_signal(C_N, t, t + 1)

    def nonce_lds(self, t, sleep=2):
        a = self.a
        self.lds_wait(C_N, 1, t, t + 1, sleep=sleep)
        a('v_mov_b32 v%d, 0x%x' % (t, NONCE))
        a('ds_read_b64 v[%d:%d], v%d' % (t + 2, t + 3, t))
        a('s_waitcnt lgkmcnt(0)')
        a('v_readfirstlane_b32 s%d, v%d' % (S_NON, t + 2))
        a('v_readfirstlane_b32 s%d, v%d' % (S_NON + 1, t + 3))

    def bad(self, regs, vt):
        if isinstance(regs, int):
            self.a('v_cmp_ne_u64 vcc, s[%d:%d], v[%d:%d]' % (S_NON, S_NON + 1, regs + 2, regs + 3))
        else:
            self.any_sentinel(regs, vt)

    def set_tag(self, r):
        self.a('v_mov_b32 v%d, s%d' % (r + 2, S_NON))
        self.a('v_mov_b32 v%d, s%d' % (r + 3, S_NON + 1))

    def unpack4(self, dst, src):
        a = self.a
        for k in range(2):
            a('v_lshlrev_b32 v%d, 16, v%d' % (dst + 2 * k, src + k))
            a('v_and_b32 v%d, 0xffff0000, v%d' % (dst + 2 * k + 1, src + k))

    def poll(self, vm, loads, regs, vt, sleep=1, first=None, anyok=False):
        a = self.a
        L, L2, Ld = a.uniq('PO'), a.uniq('PO2'), a.uniq('POD')
        if first:
            for t in loads:
                a(t)
            first()
            a('s_mov_b32 s%d, %d' % (S_SPIN, self.o.spin))
            a('s_branch %s' % L2)
        else:
            a('s_mov_b32 s%d, %d' % (S_SPIN, self.o.spin))
        a.label(L)
        for t in loads:
            a(t)
        a.label(L2)
        a('s_waitcnt vmcnt(0)')
        vm.q = []
        self.bad(regs, vt)
        if anyok:
            a('s_cmp_lg_u64 vcc, -1')
            a('s_cbranch_scc1 %s' % Ld)
        else:
            a('s_cbranch_vccz %s' % Ld)
        if sleep:
            a('s_sleep %d' % sleep)
        a('s_sub_u32 s%d, s%d, 1' % (S_SPIN, S_SPIN))
        a('s_cmp_lg_u32 s%d, 0' % S_SPIN)
        a('s_cbranch_scc1 %s' % L)
        a.label(Ld)

    def poll_sel(self, vm, loads, regs, vt, sleep=1, first=None, late=None, plain=False):
        a = self.a
        sM = S_T + 18
        L, Ld = a.uniq('PS'), a.uniq('PSD')
        for t in loads:
            a(t.replace(' sc1', '') if plain else t)
        if first:
            first()
        a('s_mov_b32 s%d, %d' % (S_SPIN, self.o.spin))
        a.label(L)
        a('s_waitcnt vmcnt(0)')
        vm.q = []
        a('s_mov_b32 s%d, 0' % sM)
        for k, (t, r) in enumerate(zip(loads, regs)):
            Ls = a.uniq('PSS')
            self.bad(r, vt)
            a('s_cbranch_vccz %s' % Ls)
            a(t)
            a('s_mov_b32 s%d, 1' % sM)
            a.label(Ls)
        a('s_cmp_eq_u32 s%d, 0' % sM)
        a('s_cbranch_scc1 %s' % Ld)
        if sleep > 1:
            a('s_sleep %d' % sleep)
        if late:
            Ll = a.uniq('PSL')
            a('s_cmp_lg_u32 s%d, %d' % (S_SPIN, self.o.spin - 16))
            a('s_cbranch_scc1 %s' % Ll)
            late()
            a.label(Ll)
        a('s_sub_u32 s%d, s%d, 1' % (S_SPIN, S_SPIN))
        a('s_cmp_lg_u32 s%d, 0' % S_SPIN)
        a('s_cbranch_scc1 %s' % L)
        a('s_waitcnt vmcnt(0)')
        a.label(Ld)

    def poll_pipe(self, vm, mk_loads, bufs, done, gap=2):
        a = self.a
        L, Ld = a.uniq('PP'), a.uniq('PPD')
        n = len(mk_loads(bufs[0])[0])
        for r in bufs:
            for t in mk_loads(r)[0]:
                a(t)
            if gap:
                a('s_sleep %d' % gap)
        a('s_mov_b32 s%d, %d' % (S_SPIN, self.o.spin))
        a.label(L)
        outs = []
        for r in bufs:
            loads, gran = mk_loads(r)
            Lo = a.uniq('PPO')
            outs.append(Lo)
            a('s_waitcnt vmcnt(%d)' % (n * (len(bufs) - 1)))
            for k, g in enumerate(gran):
                if k == 0:
                    a('v_cmp_ne_u64 vcc, s[%d:%d], v[%d:%d]' % (S_NON, S_NON + 1, g + 2, g + 3))
                else:
                    a('v_cmp_ne_u64 s[%d:%d], s[%d:%d], v[%d:%d]' % (S_EX, S_EX + 1, S_NON, S_NON + 1, g + 2, g + 3))
                    a('s_or_b64 vcc, vcc, s[%d:%d]' % (S_EX, S_EX + 1))
            a('s_cmp_eq_u64 vcc, 0')
            a('s_cbranch_scc1 %s' % Lo)
            for t in loads:
                a(t)
        a('s_sub_u32 s%d, s%d, 1' % (S_SPIN, S_SPIN))
        a('s_cmp_lg_u32 s%d, 0' % S_SPIN)
        a('s_cbranch_scc1 %s' % L)
        for i, (r, Lo) in enumerate(zip(bufs, outs)):
            a.label(Lo)
            done(r)
            if i + 1 < len(bufs):
                a('s_branch %s' % Ld)
        a.label(Ld)
        vm.q = ['x'] * (n * len(bufs))

    def add2(self, d, x, y):
        for k in range(2):
            self.a('v_add_f32 v%d, v%d, v%d' % (d + k, x + k, y + k))

    def pkfma_bcast(self, dst, src, e, first=False):
        a = self.a
        if e % 2 == 0:
            m1 = 'v[%d:%d]' % (e, e + 1)
            if first:
                a('v_pk_mul_f32 v[%d:%d], v[%d:%d], %s op_sel_hi:[1,0]' % (dst, dst + 1, src, src + 1, m1))
            else:
                a('v_pk_fma_f32 v[%d:%d], v[%d:%d], %s, v[%d:%d] op_sel_hi:[1,0,1]' % (
                    dst, dst + 1, src, src + 1, m1, dst, dst + 1))
        else:
            m1 = 'v[%d:%d]' % (e - 1, e)
            if first:
                a('v_pk_mul_f32 v[%d:%d], v[%d:%d], %s op_sel:[0,1] op_sel_hi:[1,1]' % (
                    dst, dst + 1, src, src + 1, m1))
            else:
                a('v_pk_fma_f32 v[%d:%d], v[%d:%d], %s, v[%d:%d] op_sel:[0,1,0] op_sel_hi:[1,1,1]' % (
                    dst, dst + 1, src, src + 1, m1, dst, dst + 1))

    def unpack8(self, dst, src):
        a = self.a
        for k in range(4):
            a('v_lshlrev_b32 v%d, 16, v%d' % (dst + 2 * k, src + k))
            a('v_and_b32 v%d, 0xffff0000, v%d' % (dst + 2 * k + 1, src + k))

    def any_sentinel(self, regs, vt):
        a = self.a
        regs = list(regs)
        a('v_max_u32 v%d, v%d, v%d' % (vt, regs[0], regs[1]))
        i = 2
        while i + 1 < len(regs):
            a('v_max3_u32 v%d, v%d, v%d, v%d' % (vt, vt, regs[i], regs[i + 1]))
            i += 2
        if i < len(regs):
            a('v_max_u32 v%d, v%d, v%d' % (vt, vt, regs[i]))
        a('v_cmp_eq_u32 vcc, -1, v%d' % vt)

    def perm_block(self, dst, src):
        a = self.a
        for k in range(4):
            for e in range(2):
                for p in range(4):
                    a('v_perm_b32 v%d, v%d, v%d, s%d' % (dst + 4 * (2 * k + e) + p, src + 4 * (2 * p + 1) + k,
                                                        src + 4 * (2 * p) + k, S_HI if e else S_LO))

    def row_sum(self, regs, tmp):
        a = self.a
        for sw in ('v_permlane32_swap_b32', 'v_permlane16_swap_b32'):
            for i, r in enumerate(regs):
                a('v_mov_b32 v%d, v%d' % (tmp + i, r))
            for i, r in enumerate(regs):
                a('%s v%d, v%d' % (sw, r, tmp + i))
            for i, r in enumerate(regs):
                a('v_add_f32 v%d, v%d, v%d' % (r, r, tmp + i))

    def entry(self):
        a = self.a
        a('s_load_dwordx16 s[8:23], s[0:1], 0')
        a('s_load_dwordx8 s[24:31], s[0:1], 64')
        a('s_load_dwordx4 s[32:35], s[0:1], 96')
        if self.o.hs:
            a('s_memrealtime s[100:101]')
        a('v_lshrrev_b32 v1, 6, v0')
        a('s_and_b32 s%d, s2, 7' % S_G)
        a('v_readfirstlane_b32 s%d, v1' % S_WAVE)
        a('s_lshr_b32 s%d, s2, 3' % S_SLOT)
        if self.o.xmap:
            a('s_lshr_b32 s%d, s2, 5' % S_G)
            a('s_and_b32 s%d, s2, 31' % S_SLOT)
        a('v_and_b32 v1, 63, v0')
        a('s_and_b32 s7, s%d, 3' % S_SLOT)
        a('s_lshl2_add_u32 s%d, s%d, s7' % (S_H, S_G))
        a('s_cmp_ge_u32 s%d, 32' % S_SLOT if not self.o.xmap else 's_cmp_ge_u32 s2, 256')
        a('s_cbranch_scc1 L_END0')
        if self.o.srot == 1:
            a('s_xor_b32 s%d, s%d, 16' % (S_SLOT, S_SLOT))
        if self.o.srot == 2:
            a('s_add_u32 s7, s%d, 8' % S_SLOT)
            a('s_cmp_ge_u32 s%d, 8' % S_SLOT)
            a('s_cselect_b32 s%d, s7, s%d' % (S_SLOT, S_SLOT))
            a('s_sub_u32 s7, s%d, 24' % S_SLOT)
            a('s_cmp_ge_u32 s%d, 32' % S_SLOT)
            a('s_cselect_b32 s%d, s7, s%d' % (S_SLOT, S_SLOT))
        LA = a.uniq('EA')
        a('s_cmp_ge_u32 s%d, 16' % S_SLOT)
        a('s_cbranch_scc1 %s' % LA)
        LC = a.uniq('EC')
        a('s_cmp_ge_u32 s%d, 8' % S_SLOT)
        a('s_cbranch_scc1 %s' % LC)
        if self.o.wrot:
            a('s_add_u32 s%d, s%d, 8' % (S_WAVE, S_WAVE))
            a('s_cmp_lt_u32 s%d, 12' % S_WAVE)
            a('s_cbranch_scc1 L_W2')
            a('s_sub_u32 s%d, s%d, 12' % (S_WAVE, S_WAVE))
        a('s_cmp_ge_u32 s%d, 8' % S_WAVE)
        a('s_cbranch_scc1 L_W2')
        a('s_cmp_ge_u32 s%d, 4' % S_WAVE)
        a('s_cbranch_scc1 L_W1')
        a('s_branch L_W')
        a.label(LC)
        a('s_cmp_ge_u32 s%d, 8' % S_WAVE)
        a('s_cbranch_scc1 L_CSVC')
        a('s_branch L_C')
        a.label(LA)
        a('s_cmp_eq_u32 s%d, 11' % S_WAVE)
        a('s_cbranch_scc1 L_ASVC')
        self.sec('AA', True)

    def post(self):
        self.a('s_mov_b32 s%d, 0x05040100' % S_LO)
        self.a('s_mov_b32 s%d, 0x07060302' % S_HI)
        mk_srd(self.a, SRD_WS, P_WS, WS_SIZE)
        mk_srd(self.a, SRD_DBG, P_DBG, 256)

    def common(self, zero=False, split=False):
        a = self.a
        if split:
            return
        if zero:
            L0 = a.uniq('Z')
            a('s_cmp_lg_u32 s%d, 11' % S_WAVE)
            a('s_cbranch_scc1 %s' % L0)
            a('v_lshlrev_b32 v2, 2, v1')
            a('v_add_u32 v2, 0x%x, v2' % MISC)
            a('v_mov_b32 v3, 0')
            a('ds_write_b32 v2, v3')
            a.label(L0)
        a('s_waitcnt lgkmcnt(0)')
        self.post()

    def a_att(self):
        a, o = self.a, self.o
        vm = VM(a)
        KR, VRING, SC, QV, ACC, TMP = 32, 128, 8, 2, 152, 160
        VK = 6
        sOffK, sOffV, sBias, sLast, sC = [S_T + i for i in range(5)]
        self.common(split=True)
        BU = o.bu
        NB = NQ // BU
        sPos = S_T + 5
        NV = NQ - o.hj

        sKey = S_T + 8

        def setup():
            if o.xr:
                self.xkey(sKey, S_SLOT)
            a('s_lshr_b32 s7, s%d, 2' % S_SLOT)
            a('s_sub_u32 s7, s7, 4')
            a('s_lshl_b32 s7, s7, 5')
            a('s_add_u32 s7, s7, s%d' % S_H)
            a('s_lshl_b32 s7, s7, 20')
            a('s_add_u32 s7, s7, 0xC0000')
            a('v_lshlrev_b32 v%d, 4, v1' % VK)
            a('v_add_u32 v%d, s7, v%d' % (VK, VK))
            if not o.bal:
                a('s_add_u32 s%d, s%d, 3' % (sLast, S_WAVE))
                a('s_cmp_ge_u32 s%d, %d' % (sLast, NS))
                a('s_cselect_b32 s7, %d, 0' % NS)
                a('s_sub_u32 s%d, s%d, s7' % (sBias, sLast))
                a('s_mov_b32 s%d, s%d' % (sPos, sBias))
                assert o.hj == 0 or (BU == 1 and not o.rot)
                a('s_mul_i32 s7, s2, %d' % o.rot)
                a('s_add_u32 s7, s7, s%d' % sBias)
                a('s_mul_i32 s7, s7, %d' % (1024 * BU))
                a('s_and_b32 s%d, s7, 0x3ffff' % sOffK)
                a('s_mov_b32 s%d, s%d' % (sOffV, sOffK))
                nlast = 256 // BU - NS * (NB - 1)
                a('s_add_u32 s%d, s%d, %d' % (sLast, sOffK, (NB - 1) * NS * 1024 * BU))
                a('s_and_b32 s%d, s%d, 0x3ffff' % (sLast, sLast))
                a('s_cmp_lt_u32 s%d, %d' % (sBias, nlast))
                a('s_cselect_b32 s%d, s%d, 0x40000000' % (sLast, sLast))
                a('s_cselect_b32 s%d, 0, 0xff800000' % sBias)
            a('s_mov_b32 s%d, 0x%x' % (sC, f32bits(SCALE_LOG2E)))

            if o.bx:
                s0, ns = (3, 5) if o.bx == 6 else (6, 2)
                if o.pax:
                    s0 = 0 if o.bx == 6 else 2
                a('s_lshl_b32 s%d, s%d, 12' % (sOffK, S_WAVE))
                a('s_mov_b32 s%d, s%d' % (sOffV, sOffK))
                a('s_cmp_ge_u32 s%d, %d' % (S_WAVE, s0 + ns))
                a('s_cselect_b32 s7, %d, 0' % ns)
                a('s_sub_u32 s7, s%d, s7' % S_WAVE)
                a('s_mul_i32 s7, s7, %d' % (o.bx * 1024))
                a('s_add_u32 s%d, s7, %d' % (sLast, 220 * 1024))
                a('s_add_u32 s%d, s%d, 4096' % (sPos, sLast))
                a('s_sub_u32 s7, s%d, %d' % (S_WAVE, s0))
                a('s_cmp_lt_u32 s7, %d' % ns)
                a('s_cselect_b32 s%d, 0xff800000, 0' % sBias)
            elif o.bal:
                assert BU == 1 and o.hj != 1 and not o.rot
                a('s_lshl_b32 s%d, s%d, 10' % (sOffK, S_WAVE))
                a('s_mov_b32 s%d, s%d' % (sOffV, sOffK))
                a('s_cmp_ge_u32 s%d, %d' % (S_WAVE, 4 if o.pax else 8))
                a('s_cselect_b32 s7, 4096, 0')
                a('s_sub_u32 s%d, s%d, s7' % (sLast, sOffK))
                a('s_add_u32 s%d, s%d, %d' % (sLast, sLast, 242 * 1024))
                a('s_add_u32 s%d, s%d, 7168' % (sPos, sLast))
                a('s_and_b32 s7, s%d, 12' % S_WAVE)
                a('s_cmp_eq_u32 s7, %d' % (0 if o.pax else 4))
                a('s_cselect_b32 s%d, 0xff800000, 0' % sBias)

        def step(s):
            a('s_add_u32 s%d, s%d, %d' % (s, s, NS * 1024 * BU))
            if o.rot:
                a('s_and_b32 s%d, s%d, 0x3ffff' % (s, s))

        def ldk(jb):
            if o.bal:
                so = (sLast, sPos)[jb] if jb < 2 else sOffK
                if o.xr:
                    a('s_xor_b32 s7, s%d, s%d' % (so, sKey))
                    so = 7
                vm.issue('buffer_load_dwordx4 %s, v%d, %s, s%d offen nt' % (vr(KR + 4 * jb, 4), VK, srd(SRD_A), so), ('K', jb))
                if 2 <= jb < NB - 1:
                    step(sOffK)
                if jb == 1:
                    a.label('L_AK2')
                return
            so = sLast if jb == NB - 1 else sOffK
            for j in range(jb * BU, jb * BU + BU):
                vm.issue('buffer_load_dwordx4 %s, v%d, %s, s%d offen offset:%d nt' % (
                    vr(KR + 4 * j, 4), VK, srd(SRD_A), so, (j % BU) * 1024), ('K', j))
            if jb < NB - 2:
                step(sOffK)

        RV = 4 if BU == 4 else 6

        def vreg(j):
            return VRING + 4 * j if j < RV else KR + 4 * (j - RV)

        nv = [0]

        def ldv():
            jb = nv[0] // BU
            vm.wait_n((o.kdl if jb >= NB - o.knl else o.kd) - BU)
            if o.bal:
                so = (sLast, sPos)[jb - (NB - 2)] if jb >= NB - 2 else sOffV
                if o.xr:
                    a('s_xor_b32 s7, s%d, s%d' % (so, sKey))
                    so = 7
                vm.issue('buffer_load_dwordx4 %s, v%d, %s, s%d offen nt' % (vr(vreg(jb), 4), VK, srd(SRD_B), so), ('V', jb))
                if jb < NB - 3:
                    step(sOffV)
                nv[0] += 1
                return
            so = sLast if jb == NB - 1 else sOffV
            for j in range(jb * BU, jb * BU + BU):
                vm.issue('buffer_load_dwordx4 %s, v%d, %s, s%d offen offset:%d nt' % (
                    vr(vreg(j), 4), VK, srd(SRD_B), so, (j % BU) * 1024), ('V', j))
            if jb < NB - 2:
                step(sOffV)
            nv[0] += BU

        LK, LJ = a.uniq('AK'), a.uniq('AJ')
        RAW, XR, OP, D = 128, 160, 96, 64
        sOff = S_T + 6
        def rest():
            self.post()
            mk_srd(a, SRD_A, P_K, 134217728)
            mk_srd(a, SRD_B, P_V, 134217728)
            setup()
        a('s_cmp_ge_u32 s%d, %d' % (S_WAVE, 4 if o.pax else 8))
        a('s_cbranch_scc1 %s' % LK)
        a('s_and_b32 s7, s%d, 12' % S_SLOT)
        a('s_and_b32 s%d, s%d, 3' % (sOff, S_WAVE))
        a('s_add_u32 s7, s7, s%d' % sOff)
        a('v_lshrrev_b32 v2, 4, v1')
        a('v_lshlrev_b32 v3, 16, v2')
        a('v_and_b32 v4, 15, v1')
        a('v_lshl_add_u32 v3, v4, 4, v3')
        a('s_lshl_b32 s%d, s7, 18' % sOff)
        a('s_lshl_b32 s%d, s%d, 8' % (sOff + 1, S_H))
        a('s_add_u32 s%d, s%d, s%d' % (sOff, sOff, sOff + 1))
        LP = a.uniq('AP')
        a('s_cmp_lt_u32 s%d, 4' % S_WAVE)
        a('s_cbranch_scc1 %s' % LP)
        if o.hx:
            a('s_xor_b32 s%d, s%d, %d' % (sOff, sOff, o.hx << 8))
        a('s_barrier')
        if o.ev:
            self.lds_wait(C_CLR, 1, 8, 9, sleep=1)
        else:
            a('s_sleep %d' % o.psl)
        a.label(LP)
        a('s_cmp_lt_u32 s%d, 4' % S_WAVE)
        a('s_waitcnt lgkmcnt(0)')
        a('s_cselect_b32 s%d, s%d, s%d' % (S_T + 12, P_BWQ, P_WQ))
        a('s_cselect_b32 s%d, s%d, s%d' % (S_T + 13, P_BWQ + 1, P_WQ + 1))
        a('s_cselect_b32 s%d, s%d, s%d' % (S_T + 10, P_BX, P_AX))
        a('s_cselect_b32 s%d, s%d, s%d' % (S_T + 11, P_BX + 1, P_AX + 1))
        mk_srd(a, SRD_D, S_T + 12, 4194304)
        for i in range(8):
            vm.issue('buffer_load_dwordx4 %s, v3, %s, s%d offen nt' % (vr(RAW + 4 * i, 4), srd(SRD_D), sOff), 'p')
            a('s_addk_i32 s%d, 8192' % sOff)
        self.sec('AB', True)
        a('v_bfe_u32 v4, v1, 2, 2')
        a('v_lshlrev_b32 v4, 10, v4')
        a('v_lshl_add_u32 v4, v2, 4, v4')
        a('s_lshl_b32 s%d, s7, 6' % (sOff + 1))
        mk_srd(a, SRD_C, S_T + 10, 4096)
        vm.issue('buffer_load_dwordx4 %s, v4, %s, s%d offen' % (vr(XR, 4), srd(SRD_C), sOff + 1), 'p')
        rest()
        LP = a.uniq('AP')
        a('s_cmp_ge_u32 s%d, 4' % S_WAVE)
        a('s_cbranch_scc1 %s' % LP)
        a('s_barrier')
        a.label(LP)
        a('s_lshl_b32 s7, s%d, 11' % S_WAVE)
        a('s_add_u32 s7, s7, 0x%x' % PPART)
        a('v_lshl_add_u32 v2, v1, 5, s7')
        a('s_cmp_lt_u32 s%d, 4' % S_WAVE)
        a('s_cselect_b32 s7, 0x%x, 0x%x' % (C_PB - MISC, C_PA - MISC))
        a('s_add_u32 s7, s7, 0x%x' % MISC)
        a('v_mov_b32 v3, s7')
        a('v_mov_b32 v4, 1')
        vm.wait_all()
        self.perm_block(OP, RAW)
        for c in range(8):
            a('v_mfma_f32_16x16x32_bf16 %s, %s, %s, 0' % (vr(D + 4 * c, 4), vr(XR, 4), vr(OP + 4 * c, 4)))
        for c in range(8):
            a('v_mov_b32 v%d, v%d' % (RAW + c, D + 4 * c))
        a('ds_write_b128 v2, %s' % vr(RAW, 4))
        a('ds_write_b128 v2, %s offset:16' % vr(RAW + 4, 4))
        a('s_waitcnt lgkmcnt(0)')
        a('s_mov_b64 exec, 1')
        a('ds_add_u32 v3, v4')
        a('s_mov_b64 exec, -1')
        a('s_branch %s' % LJ)
        a.label(LK)
        a('s_waitcnt lgkmcnt(0)')
        rest()
        a('s_barrier')
        self.touch(8, 'AR')
        self.touch(9, 'AR2')
        if o.ev:
            self.lds_wait(C_PB, 1, 8, 9, sleep=2)
        else:
            a('s_sleep %d' % o.psl8)
        a.label(LJ)
        self.sec('AR', True)
        self.stamp(vm, 0, TMP)
        if o.kh:
            self.lds_wait(C_OK, o.kh, TMP, TMP + 1, sleep=1)
        if o.bx:
            self.a_stream2(vm)
            return
        nk = [0]

        def nxt():
            if nk[0] < NB:
                vm.wait_n((o.kd1 if nk[0] < o.kn1 else o.kd) - BU)
                ldk(nk[0])
                nk[0] += 1
            else:
                ldv()

        def qk(js):
            vm.wait(('K', js[-1]))
            for k in range(4):
                for j in js:
                    a('v_dot2_f32_bf16 v%d, v%d, v%d, %s' % (SC + j, KR + 4 * j + k, QV + k,
                                                            '0' if k == 0 else 'v%d' % (SC + j)))
            for sh in (8, 4, 2, 1):
                for j in js:
                    a('v_add_f32_dpp v%d, v%d, v%d row_ror:%d row_mask:0xf bank_mask:0xf' % (
                        SC + j, SC + j, SC + j, sh))

        if o.bal:
            for k in range(8):
                a('v_mov_b32 v%d, 0' % (KR + k))
            a('s_cmp_lg_u32 s%d, 0' % sBias)
            a('s_cbranch_scc1 L_AK2')
        while nk[0] * BU + nv[0] < o.q0:
            nxt()
        self.stamp(vm, 1, TMP)
        self.lds_wait(C_Q, 1, TMP, TMP + 1)
        a('v_and_b32 v%d, 15, v1' % TMP)
        a('v_lshlrev_b32 v%d, 4, v%d' % (TMP, TMP))
        a('v_add_u32 v%d, 0x%x, v%d' % (TMP, QBUF, TMP))
        a('ds_read_b128 %s, v%d' % (vr(QV, 4), TMP))
        a('s_waitcnt lgkmcnt(0)')
        self.stamp(vm, 2, TMP)
        done = 0
        while done < NQ:
            landed = (nk[0] * BU + nv[0]) - o.kd
            if done + 4 <= landed or nv[0] >= RV + done:
                qk(list(range(done, done + 4)))
                done += 4
                for _ in range(max(1, o.qr // BU) if BU < 4 else (done // 4) & 1):
                    if nv[0] + BU <= RV + done and nv[0] < NV:
                        nxt()
            else:
                nxt()
        for j in ((0, 1) if o.bal else range(NQ - BU, NQ)):
            a('v_add_f32 v%d, s%d, v%d' % (SC + j, sBias, SC + j))
        M, M2 = TMP, TMP + 1
        a('v_max3_f32 v%d, v%d, v%d, v%d' % (M, SC, SC + 1, SC + 2))
        j = 3
        while j + 1 < NQ:
            a('v_max3_f32 v%d, v%d, v%d, v%d' % (M, M, SC + j, SC + j + 1))
            j += 2
        if j < NQ:
            a('v_max_f32 v%d, v%d, v%d' % (M, M, SC + j))
        for sw in ('v_permlane32_swap_b32', 'v_permlane16_swap_b32'):
            a('v_mov_b32 v%d, v%d' % (M2, M))
            a('%s v%d, v%d' % (sw, M, M2))
            a('v_max_f32 v%d, v%d, v%d' % (M, M, M2))
        a('v_mul_f32 v%d, s%d, v%d' % (M, sC, M))
        for j in range(NQ):
            a('v_fma_f32 v%d, v%d, s%d, -v%d' % (SC + j, SC + j, sC, M))
        for j in range(NQ):
            a('v_exp_f32 v%d, v%d' % (SC + j, SC + j))
        if BU < 4:
            ldv()
        L, L2 = TMP + 2, TMP + 3
        a('v_add_f32 v%d, v%d, v%d' % (L, SC, SC + 1))
        a('v_add_f32 v%d, v%d, v%d' % (L2, SC + 2, SC + 3))
        for j in range(4, NQ, 2):
            a('v_add_f32 v%d, v%d, v%d' % (L, L, SC + j))
            a('v_add_f32 v%d, v%d, v%d' % (L2, L2, SC + j + 1))
        a('v_add_f32 v%d, v%d, v%d' % (L, L, L2))
        a('v_mov_b32 v%d, v%d' % (L2, L))
        a('v_permlane32_swap_b32 v%d, v%d' % (L, L2))
        a('v_add_f32 v%d, v%d, v%d' % (L, L, L2))
        a('v_mov_b32 v%d, v%d' % (L2, L))
        a('v_permlane16_swap_b32 v%d, v%d' % (L, L2))
        a('v_add_f32 v%d, v%d, v%d' % (M + 1, L, L2))
        a('s_lshl_b32 s7, s%d, 3' % S_WAVE)
        a('s_add_u32 s7, s7, 0x%x' % MLBUF)
        a('v_mov_b32 v%d, s7' % (TMP + 4))
        a('ds_write_b64 v%d, v[%d:%d]' % (TMP + 4, M, M + 1))
        if o.hj and o.bal:
            a('s_lshl_b32 s7, s%d, 4' % S_WAVE)
            a('s_add_u32 s7, s7, 0x%x' % PT)
            a('v_lshrrev_b32 v%d, 4, v1' % (TMP + 6))
            a('v_lshl_add_u32 v%d, v%d, 2, s7' % (TMP + 5, TMP + 6))
            for r in range(o.hj - 2):
                a('ds_write_b32 v%d, v%d offset:%d' % (TMP + 5, SC + NQ - (o.hj - 2) + r, NS * 16 * r))
            a('s_lshr_b32 s7, s%d, 6' % sLast)
            a('s_add_u32 s7, s7, 0x%x' % (PT + 16 * (NS * (o.hj - 2) - 242)))
            a('s_cmp_lg_u32 s%d, 0' % sBias)
            a('s_cselect_b32 s7, 0x%x, s7' % (PT + 16 * 56))
            a('v_lshl_add_u32 v%d, v%d, 2, s7' % (TMP + 5, TMP + 6))
            for j in range(2):
                a('ds_write_b32 v%d, v%d offset:%d' % (TMP + 5, SC + j, 7 * 16 * j))
        elif o.hj:
            a('s_lshl_b32 s7, s%d, 4' % sPos)
            a('s_add_u32 s7, s7, 0x%x' % PT)
            a('v_lshrrev_b32 v%d, 4, v1' % (TMP + 5))
            a('v_lshl_add_u32 v%d, v%d, 2, s7' % (TMP + 5, TMP + 5))
            for jj in range(o.hj):
                a('ds_write_b32 v%d, v%d offset:%d' % (TMP + 5, SC + NV + jj, NS * 16 * jj))
        self.lds_signal(C_ML, TMP + 4, TMP + 5)
        VO = QV
        a('v_and_b32 v%d, 15, v1' % VO)
        a('v_lshlrev_b32 v%d, 5, v%d' % (VO, VO))
        a('v_bfe_u32 v%d, v1, 5, 1' % (VO + 1))
        a('v_lshl_add_u32 v%d, v%d, 4, v%d' % (VO, VO + 1, VO))
        a('v_bfe_u32 v%d, v1, 4, 1' % (VO + 1))
        a('v_lshl_add_u32 v%d, v%d, 3, v%d' % (VO, VO + 1, VO))
        a('s_lshl_b32 s7, s%d, 9' % S_WAVE)
        a('s_add_u32 s7, s7, 0x%x' % OPART)
        a('v_add_u32 v%d, s7, v%d' % (VO, VO))
        self.stamp(vm, 3, TMP)
        def pv(j):
            vm.wait(('V', j))
            self.unpack8(TMP, vreg(j))
            for k in range(4):
                self.pkfma_bcast(ACC + 2 * k, TMP + 2 * k, SC + ((j + 2) % NQ if o.bal else j), first=(j == 0))
        j = 0
        while j < NV:
            if o.bal and not o.hj and nv[0] == NV - 2:
                LL = a.uniq('AL')
                a('s_cmp_eq_u32 s%d, 0' % sBias)
                a('s_cbranch_scc1 %s' % LL)
                keep = list(vm.q)
                for jj in range(j, NV - 2):
                    pv(jj)
                a('s_branch L_AFIN')
                vm.q = keep
                a.label(LL)
            if nv[0] < NV:
                ldv()
                n = min(2 * BU, nv[0] - len([t for t in vm.q if t != 'ts']) - j)
            else:
                n = NV - j
            for _ in range(max(n, 0)):
                pv(j)
                j += 1
        a.label('L_AFIN')
        a('s_nop 1')
        self.stamp(vm, 4, TMP)
        for k in range(4):
            a('v_permlane32_swap_b32 v%d, v%d' % (ACC + k, ACC + k + 4))
        for k in range(4):
            a('v_add_f32 v%d, v%d, v%d' % (ACC + k, ACC + k, ACC + k + 4))
        for k in range(2):
            a('v_permlane16_swap_b32 v%d, v%d' % (ACC + k, ACC + k + 2))
        for k in range(2):
            a('v_add_f32 v%d, v%d, v%d' % (ACC + k, ACC + k, ACC + k + 2))
        a('ds_write_b64 v%d, v[%d:%d]' % (VO, ACC, ACC + 1))
        a('s_waitcnt lgkmcnt(0)')
        if o.hs:
            a('s_memrealtime s[98:99]')
        a('s_barrier')
        self.stamp(vm, 5, TMP)
        self.end(have=True)

    def a_stream2(self, vm):
        a, o = self.a, self.o
        X = o.bx
        N = 20 + X
        SC, QV, ACC, TMP, VK = 8, 2, 152, 160, 6
        KR = SC + N
        assert KR % 2 == 0 and KR + 4 * N <= ACC
        sOffK, sOffV, sBias, sLast, sC, sPos = [S_T + i for i in range(6)]
        kb = [list(range(X))] + [list(range(X + 4 * r, X + 4 * r + 4)) for r in range(5)]
        vb = kb[1:] + kb[:1]
        vorder = [j for b in vb for j in b]
        st = {'k': 0, 'v': 0, 'nv': 0}

        NL = 4 * o.nl

        def vreg(n):
            return KR + 4 * (n - NL) if n >= NL else KR + 4 * (N - NL + n)

        def burst(slots, regs, sr, soff, tag, last):
            vm.wait_n(o.kwl if last else o.kw)
            for i, j in enumerate(slots):
                so = soff if j >= X else (sLast if i < 4 else sPos)
                vm.issue('buffer_load_dwordx4 %s, v%d, %s, s%d offen offset:%d nt' % (
                    vr(regs[i], 4), VK, srd(sr), so, (i & 3) * 1024), (tag, j))
            if slots[0] >= X:
                a('s_add_u32 s%d, s%d, %d' % (soff, soff, NS * 4096))

        def ldk():
            b = kb[st['k']]
            burst(b, [KR + 4 * j for j in b], SRD_A, sOffK, 'K', False)
            st['k'] += 1
            if st['k'] == 1:
                a.label('L_AK2')

        sM0 = S_T + 9

        def ldv():
            b = vb[st['v']]
            if st['v'] < o.nl:
                if st['v'] == 0:
                    a('s_mul_i32 s%d, s%d, %d' % (sM0, S_WAVE, 4096 * o.nl))
                    a('s_add_u32 s%d, s%d, %d' % (sM0, sM0, VST))
                else:
                    a('s_addk_i32 s%d, 4096' % sM0)
                a('s_mov_b32 m0, s%d' % sM0)
                vm.wait_n(o.kw)
                for i, j in enumerate(b):
                    vm.issue('buffer_load_dwordx4 v%d, %s, s%d offen offset:%d nt lds' % (VK, srd(SRD_B), sOffV, i * 1024), ('V', j))
                a('s_add_u32 s%d, s%d, %d' % (sOffV, sOffV, NS * 4096))
                st['v'] += 1
                st['nv'] += len(b)
                return
            burst(b, [vreg(st['nv'] + i) for i in range(len(b))], SRD_B, sOffV, 'V', st['v'] >= len(vb) - o.knb)
            st['v'] += 1
            st['nv'] += len(b)

        def qk(js):
            vm.wait(('K', js[-1]))
            for k in range(4):
                for j in js:
                    a('v_dot2_f32_bf16 v%d, v%d, v%d, %s' % (SC + j, KR + 4 * j + k, QV + k,
                                                            '0' if k == 0 else 'v%d' % (SC + j)))
            for sh in (8, 4, 2, 1):
                for j in js:
                    a('v_add_f32_dpp v%d, v%d, v%d row_ror:%d row_mask:0xf bank_mask:0xf' % (SC + j, SC + j, SC + j, sh))
        for k in range(4 * X):
            a('v_mov_b32 v%d, 0' % (KR + k))
        a('s_cmp_lg_u32 s%d, 0' % sBias)
        a('s_cbranch_scc1 L_AK2')
        while st['k'] < o.qb:
            ldk()
        if o.nl:
            assert o.qb == len(kb)
            while st['v'] < o.nl:
                ldv()
        self.stamp(vm, 1, TMP)
        self.lds_wait(C_Q, 1, TMP, TMP + 1)
        a('v_and_b32 v%d, 15, v1' % TMP)
        a('v_lshlrev_b32 v%d, 4, v%d' % (TMP, TMP))
        a('v_add_u32 v%d, 0x%x, v%d' % (TMP, QBUF, TMP))
        a('ds_read_b128 %s, v%d' % (vr(QV, 4), TMP))
        a('s_waitcnt lgkmcnt(0)')
        self.stamp(vm, 2, TMP)
        g = 0
        while g < len(kb):
            n = 0
            while g < st['k'] and n < (1 if o.nl and g == n else o.qg) and ('K', kb[g][-1]) not in vm.q:
                qk(kb[g])
                g += 1
                n += 1
            done = sum(len(b) for b in kb[:g])
            if st['k'] < len(kb):
                ldk()
            elif st['nv'] - NL + len(vb[st['v']]) <= done and st['v'] < len(vb) - 1:
                ldv()
            elif g < len(kb):
                qk(kb[g])
                g += 1
        if o.nl:
            vm.wait(('V', vorder[NL - 1]))
            a('s_sub_u32 s7, s%d, %d' % (sM0, 4096 * (o.nl - 1)))
            a('v_lshl_add_u32 v%d, v1, 4, s7' % TMP)
            for n in range(NL):
                a('ds_read_b128 %s, v%d offset:%d' % (vr(vreg(n), 4), TMP, 1024 * n))
        for j in range(X):
            a('v_add_f32 v%d, s%d, v%d' % (SC + j, sBias, SC + j))
        M, M2 = TMP, TMP + 1
        a('v_max3_f32 v%d, v%d, v%d, v%d' % (M, SC, SC + 1, SC + 2))
        j = 3
        while j + 1 < N:
            a('v_max3_f32 v%d, v%d, v%d, v%d' % (M, M, SC + j, SC + j + 1))
            j += 2
        if j < N:
            a('v_max_f32 v%d, v%d, v%d' % (M, M, SC + j))
        for sw in ('v_permlane32_swap_b32', 'v_permlane16_swap_b32'):
            a('v_mov_b32 v%d, v%d' % (M2, M))
            a('%s v%d, v%d' % (sw, M, M2))
            a('v_max_f32 v%d, v%d, v%d' % (M, M, M2))
        a('v_mul_f32 v%d, s%d, v%d' % (M, sC, M))
        for j in range(N):
            a('v_fma_f32 v%d, v%d, s%d, -v%d' % (SC + j, SC + j, sC, M))
        for j in range(N):
            a('v_exp_f32 v%d, v%d' % (SC + j, SC + j))
        L, L2 = TMP + 2, TMP + 3
        a('v_add_f32 v%d, v%d, v%d' % (L, SC, SC + 1))
        a('v_add_f32 v%d, v%d, v%d' % (L2, SC + 2, SC + 3))
        for j in range(4, N, 2):
            a('v_add_f32 v%d, v%d, v%d' % (L, L, SC + j))
            a('v_add_f32 v%d, v%d, v%d' % (L2, L2, SC + j + 1))
        a('v_add_f32 v%d, v%d, v%d' % (L, L, L2))
        a('v_mov_b32 v%d, v%d' % (L2, L))
        a('v_permlane32_swap_b32 v%d, v%d' % (L, L2))
        a('v_add_f32 v%d, v%d, v%d' % (L, L, L2))
        a('v_mov_b32 v%d, v%d' % (L2, L))
        a('v_permlane16_swap_b32 v%d, v%d' % (L, L2))
        a('v_add_f32 v%d, v%d, v%d' % (M + 1, L, L2))
        a('s_lshl_b32 s7, s%d, 3' % S_WAVE)
        a('s_add_u32 s7, s7, 0x%x' % MLBUF)
        a('v_mov_b32 v%d, s7' % (TMP + 4))
        a('ds_write_b64 v%d, v[%d:%d]' % (TMP + 4, M, M + 1))
        if o.bea:
            a('s_memrealtime s[%d:%d]' % (S_TS, S_TS + 1))
            a('v_mov_b32 v%d, 0x%x' % (TMP + 4, C_TS))
            a('s_waitcnt lgkmcnt(0)')
            a('v_mov_b32 v%d, s%d' % (TMP + 5, S_TS))
            a('s_mov_b64 exec, 1')
            a('ds_add_u32 v%d, v%d' % (TMP + 4, TMP + 5))
            a('s_mov_b64 exec, -1')
        self.lds_signal(C_ML, TMP + 4, TMP + 5)
        VO = QV
        a('v_and_b32 v%d, 15, v1' % VO)
        a('v_lshlrev_b32 v%d, 5, v%d' % (VO, VO))
        a('v_bfe_u32 v%d, v1, 5, 1' % (VO + 1))
        a('v_lshl_add_u32 v%d, v%d, 4, v%d' % (VO, VO + 1, VO))
        a('v_bfe_u32 v%d, v1, 4, 1' % (VO + 1))
        a('v_lshl_add_u32 v%d, v%d, 3, v%d' % (VO, VO + 1, VO))
        a('s_lshl_b32 s7, s%d, 9' % S_WAVE)
        a('s_add_u32 s7, s7, 0x%x' % OPA)
        a('v_add_u32 v%d, s7, v%d' % (VO, VO))
        self.stamp(vm, 3, TMP)

        def pv(n):
            vm.wait(('V', vorder[n]))
            self.unpack8(TMP, vreg(n))
            for k in range(4):
                self.pkfma_bcast(ACC + 2 * k, TMP + 2 * k, SC + vorder[n], first=(n == 0))
        n = 0
        while n < N:
            if st['v'] == len(vb) - 1:
                LL = a.uniq('AL')
                a('s_cmp_eq_u32 s%d, 0' % sBias)
                a('s_cbranch_scc1 %s' % LL)
                keep = list(vm.q)
                for m in range(n, 20):
                    pv(m)
                a('s_branch L_AFIN')
                vm.q = keep
                a.label(LL)
            if st['v'] < len(vb):
                ldv()
                while n < st['nv'] and ('V', vorder[n]) not in vm.q:
                    pv(n)
                    n += 1
            else:
                pv(n)
                n += 1
        a.label('L_AFIN')
        a('s_nop 1')
        self.stamp(vm, 4, TMP)
        for k in range(4):
            a('v_permlane32_swap_b32 v%d, v%d' % (ACC + k, ACC + k + 4))
        for k in range(4):
            a('v_add_f32 v%d, v%d, v%d' % (ACC + k, ACC + k, ACC + k + 4))
        for k in range(2):
            a('v_permlane16_swap_b32 v%d, v%d' % (ACC + k, ACC + k + 2))
        for k in range(2):
            a('v_add_f32 v%d, v%d, v%d' % (ACC + k, ACC + k, ACC + k + 2))
        a('ds_write_b64 v%d, v[%d:%d]' % (VO, ACC, ACC + 1))
        a('s_waitcnt lgkmcnt(0)')
        if o.hs:
            a('s_memrealtime s[98:99]')
        a('s_barrier')
        self.stamp(vm, 5, TMP)
        self.end(have=True)

    def a_svc(self):
        a, o = self.a, self.o
        vm = VM(a)
        self.sec('ASVC')
        a.label('L_ASVC')
        self.common(True)
        T = 100
        sB = S_T
        a('s_setprio 3')
        a('s_lshr_b32 s%d, s%d, 2' % (sB, S_SLOT))
        a('s_sub_u32 s%d, s%d, 4' % (sB, sB))
        a('s_barrier')
        if o.cut & 4:
            a('s_branch L_ACUT')
        a('s_lshl_b32 s7, s%d, 2' % S_H)
        a('s_add_u32 s7, s7, s%d' % sB)
        a('s_lshl_b32 s7, s7, 11')
        a('v_lshl_add_u32 v3, v1, 4, s7')
        a('v_add_u32 v5, 0x%x, v3' % WS_QBP)
        a('v_add_u32 v3, 0x%x, v3' % (WS_QAW if o.pax == 2 else WS_QAP))
        if o.pax == 2:
            a('v_add_u32 v3, s7, v3')
        a('s_xor_b32 s7, s%d, %d' % (S_H, o.hx))
        a('s_lshl_b32 s7, s7, 5')
        a('s_add_u32 s7, s7, s%d' % sB)
        a('s_lshl_b32 s7, s7, 8')
        a('s_add_u32 s7, s7, 0x%x' % WS_QAP)
        a('v_lshrrev_b32 v6, 4, v1')
        a('v_lshlrev_b32 v6, 11, v6')
        a('v_and_b32 v%d, 15, v1' % T)
        a('v_lshl_add_u32 v6, v%d, 4, v6' % T)
        a('v_add_u32 v6, s7, v6')
        if o.pw:
            for k in range(4):
                a('v_mov_b32 v%d, 0' % (112 + k))
            for V in (5, 6):
                for e in range(2):
                    a('buffer_store_dwordx4 v[112:115], v%d, %s, 0 offen offset:%d' % (V, srd(SRD_WS), 1024 * e))
        if o.nsl:
            a('s_sleep %d' % o.nsl)
        self.nonce_get(vm, 90, dbl=o.ndb, sig=C_CLR if o.ev else None)
        self.stamp(vm, 4, T)
        if o.cut & 64:
            a('s_branch L_ACUT')
        a('v_lshlrev_b32 v7, 5, v1')
        for r in (112, 116, 120, 124):
            self.set_tag(r)
        for cnt, base, V in ((C_PB, PPART, 5), (C_PA, PPART + 8192, 6))[:1 if o.pax else 2]:
            self.lds_wait(cnt, 4, T, T + 1, sleep=0)
            for w in range(4):
                a('ds_read_b128 %s, v7 offset:%d' % (vr(16 + 8 * w, 4), base + 2048 * w))
                a('ds_read_b128 %s, v7 offset:%d' % (vr(20 + 8 * w, 4), base + 2048 * w + 16))
            a('s_waitcnt lgkmcnt(0)')
            for st in (16, 8):
                for k in range(0, st, 2):
                    self.add2(16 + k, 16 + k, 16 + k + st)
            r = 112 if V == 5 else 120
            for k in range(4):
                a('v_cvt_pk_bf16_f32 v%d, v%d, v%d' % (r + 4 * (k >> 1) + (k & 1), 16 + 2 * k, 17 + 2 * k))
            for e in range(0 if (o.cut & 128 and V == 5) or (o.cut & 256 and V == 6) else 2):
                a('buffer_store_dwordx4 %s, v%d, %s, 0 offen offset:%d%s' % (
                    vr(r + 4 * e, 4), V, srd(SRD_WS), 1024 * e, '' if o.l2 else ' sc1'))
            self.lds_signal(C_OK, T, T + 1)
            self.stamp(vm, V, T)
        a('v_mov_b32 v110, v5')
        a('v_mov_b32 v111, v6')
        if o.l2:
            self.check_in(T)

        def through():
            for r, V in ((112, 110), (120, 111))[:1 if o.pax else 2]:
                for e in range(2):
                    a('buffer_store_dwordx4 %s, v%d, %s, 0 offen offset:%d sc1' % (vr(r + 4 * e, 4), V, srd(SRD_WS), 1024 * e))

        def verify():
            if o.l2:
                self.far_check(T, 32)
                LN = a.uniq('AF')
                a('s_cbranch_scc0 %s' % LN)
                through()
                a.label(LN)
        if o.cut & 32:
            a('s_branch L_ACUT')
        if o.pax in (1, 2):
            a('s_sleep %d' % o.vsl)
            verify()
            if o.cut & 512:
                a('s_sleep %d' % o.cutsl)
                a('s_branch L_ACUT')
        a('s_sleep %d' % o.asl)
        ng = 4 if o.pax == 2 else 2
        self.poll_sel(vm, ['buffer_load_dwordx4 %s, v3, %s, 0 offen offset:%d sc1' % (vr(32 + 4 * e, 4), srd(SRD_WS), 1024 * e)
                           for e in range(ng)], [32 + 4 * e for e in range(ng)], T, sleep=o.qsl, late=through if o.l2 else None)
        if ng == 4:
            for e in range(4):
                self.unpack4(16 + 4 * (e >> 1) + 8 * (e & 1), 32 + 4 * e)
            for k in range(8):
                a('v_add_f32 v%d, v%d, v%d' % (16 + k, 16 + k, 24 + k))
        else:
            self.unpack4(16, 32)
            self.unpack4(20, 36)
        self.row_sum(list(range(16, 24)), 24)
        for k in range(4):
            a('v_cvt_pk_bf16_f32 v%d, v%d, v%d' % (8 + k, 16 + 2 * k, 17 + 2 * k))
        a('v_and_b32 v%d, 15, v1' % T)
        a('v_lshlrev_b32 v%d, 4, v%d' % (T, T))
        a('v_add_u32 v%d, 0x%x, v%d' % (T, QBUF, T))
        a('ds_write_b128 v%d, v[8:11]' % T)
        a.label('L_ACUT')
        if o.cut:
            self.lds_signal(C_OK, T, T + 1)
            self.lds_signal(C_OK, T, T + 1)
        self.lds_signal(C_Q, T, T + 1)
        self.stamp(vm, 1, T)
        if o.tlb & 1:
            mk_srd(a, SRD_B, P_V, 134217728)
            a('s_lshl_b32 s7, s%d, 5' % sB)
            a('s_add_u32 s7, s7, s%d' % S_H)
            a('s_lshl_b32 s7, s7, 20')
            a('s_add_u32 s7, s7, 0xC0000')
            a('v_lshlrev_b32 v96, %d, v1' % o.tls)
            a('s_mov_b64 exec, 0x%x' % ((1 << min(0x40000 >> o.tls, 32)) - 1))
            a('buffer_load_dword v97, v96, %s, s7 offen nt' % srd(SRD_B))
            a('s_mov_b64 exec, -1')
        if o.pax in (0, 3):
            self.lds_wait(C_ML, 1, T, T + 1, sleep=8)
            verify()
        self.lds_wait(C_ML, NS, T, T + 1, sleep=2)
        if o.bea:
            a('v_mov_b32 v%d, 0x%x' % (T, C_TS))
            a('ds_read_b32 v84, v%d' % T)
            a('v_mov_b32 v85, 0')
            self.set_tag(84)
            a('s_lshl4_add_u32 s7, s%d, s%d' % (S_G, S_SLOT))
            a('s_lshl_b32 s7, s7, 4')
            a('s_add_u32 s7, s7, 0x%x' % (WS_BEA - 256))
            a('v_mov_b32 v%d, s7' % T)
            a('s_waitcnt lgkmcnt(0)')
            a('s_mov_b64 exec, 1')
            a('buffer_store_dwordx4 v[84:87], v%d, %s, 0 offen' % (T, srd(SRD_WS)))
            a('s_mov_b64 exec, -1')
        ML = 8
        a('v_mov_b32 v%d, 0x%x' % (T, MLBUF))
        for k in range(6):
            a('ds_read_b128 %s, v%d offset:%d' % (vr(ML + 4 * k, 4), T, 16 * k))
        a('s_waitcnt lgkmcnt(0)')
        Mx, Ls = T, T + 1
        a('v_max3_f32 v%d, v%d, v%d, v%d' % (Mx, ML, ML + 2, ML + 4))
        for k in range(3, NS, 2):
            a('v_max3_f32 v%d, v%d, v%d, v%d' % (Mx, Mx, ML + 2 * k, ML + 2 * k + 2))
        for k in range(NS):
            a('v_sub_f32 v%d, v%d, v%d' % (ML + 2 * k, ML + 2 * k, Mx))
        for k in range(NS):
            a('v_exp_f32 v%d, v%d' % (ML + 2 * k, ML + 2 * k))
        a('v_mul_f32 v%d, v%d, v%d' % (Ls, ML, ML + 1))
        for k in range(1, NS):
            a('v_fmac_f32 v%d, v%d, v%d' % (Ls, ML + 2 * k, ML + 2 * k + 1))
        a('v_rcp_f32 v%d, v%d' % (Ls, Ls))
        for k in range(NS):
            a('v_mul_f32 v%d, v%d, v%d' % (ML + 2 * k, ML + 2 * k, Ls))
        if o.hj:
            a('v_lshlrev_b32 v2, 4, v1')
            a('v_add_u32 v3, 0x%x, v2' % PT)
            a('ds_read_b128 v[32:35], v3')
            a('v_mul_u32_u24 v4, 47, v1')
            a('v_lshrrev_b32 v4, 9, v4')
            a('v_mul_u32_u24 v4, %d, v4' % NS)
            a('v_sub_u32 v4, v1, v4')
            if o.bal:
                n0 = NS * (o.hj - 2)
                a('v_subrev_u32 v5, %d, v1' % n0)
                a('v_subrev_u32 v6, 7, v5')
                a('v_min_u32 v5, v5, v6')
                a('v_and_b32 v6, 4, v5')
                a('v_add_u32 v5, v5, v6')
                a('v_cmp_le_u32 vcc, %d, v1' % n0)
                a('v_cndmask_b32 v4, v4, v5, vcc')
            a('v_mov_b32 v5, v%d' % ML)
            for k in range(1, NS):
                a('v_cmp_eq_u32 vcc, %d, v4' % (k if o.bal else (k + 3) % NS))
                a('v_cndmask_b32 v5, v5, v%d, vcc' % (ML + 2 * k))
            a('s_lshl_b32 s7, s%d, 2' % S_H)
            a('s_add_u32 s7, s7, s%d' % sB)
            a('s_lshl_b32 s7, s7, 10')
            a('s_add_u32 s7, s7, 0x%x' % WS_PH)
            self.set_tag(36)
            a('s_waitcnt lgkmcnt(0)')
            for k in range(4):
                a('v_mul_f32 v%d, v%d, v5' % (32 + k, 32 + k))
            a('v_cvt_pk_bf16_f32 v36, v32, v33')
            a('v_cvt_pk_bf16_f32 v37, v34, v35')
            a('v_cmp_gt_u32 vcc, %d, v1' % (256 - NS * (NQ - o.hj)))
            a('v_cndmask_b32 v36, 0, v36, vcc')
            a('v_cndmask_b32 v37, 0, v37, vcc')
            if o.l2:
                LN = a.uniq('AF')
                a('buffer_store_dwordx4 v[36:39], v2, %s, s7 offen' % srd(SRD_WS))
                a('s_cmp_eq_u32 s%d, 0' % S_FAR)
                a('s_cbranch_scc1 %s' % LN)
            a('buffer_store_dwordx4 v[36:39], v2, %s, s7 offen sc1' % srd(SRD_WS))
            if o.l2:
                a.label(LN)
        a('v_and_b32 v%d, 15, v1' % T)
        a('v_bfe_u32 v%d, v1, 4, 1' % (T + 1))
        a('v_lshlrev_b32 v3, 5, v%d' % T)
        a('v_lshl_add_u32 v3, v%d, 4, v3' % (T + 1))
        a('v_add_u32 v3, 0x%x, v3' % (OPA if o.bx else OPART))
        a('s_lshl_b32 s7, s%d, 3' % S_H)
        a('s_add_u32 s7, s7, s%d' % sB)
        a('s_lshl_b32 s7, s7, 8')
        a('s_add_u32 s7, s7, 0x%x' % WS_OA)
        a('v_lshlrev_b32 v2, 4, v%d' % T)
        a('v_lshl_add_u32 v2, v%d, 10, v2' % (T + 1))
        a('v_add_u32 v2, s7, v2')
        if o.pw:
            for k in range(4):
                a('v_mov_b32 v%d, 0' % (4 + k))
            a('s_mov_b64 exec, 0xffffffff')
            a('buffer_store_dwordx4 v[4:7], v2, %s, 0 offen' % srd(SRD_WS))
            a('s_mov_b64 exec, -1')
        self.set_tag(4)
        self.stamp(vm, 2, T)
        a('s_barrier')
        X, AC = 40, 32
        for k in range(NS):
            a('ds_read_b128 %s, v3 offset:%d' % (vr(X + 4 * k, 4), 512 * k))
        for k in range(NS):
            a('s_waitcnt lgkmcnt(%d)' % (NS - 1 - k))
            for p in range(2):
                self.pkfma_bcast(AC + 4 * (k & 1) + 2 * p, X + 4 * k + 2 * p, ML + 2 * k, first=(k < 2))
        for p in range(2):
            a('v_pk_add_f32 v[%d:%d], v[%d:%d], v[%d:%d]' % (AC + 2 * p, AC + 2 * p + 1, AC + 2 * p, AC + 2 * p + 1,
                                                          AC + 4 + 2 * p, AC + 5 + 2 * p))
        a('v_cvt_pk_bf16_f32 v4, v%d, v%d' % (AC, AC + 1))
        a('v_cvt_pk_bf16_f32 v5, v%d, v%d' % (AC + 2, AC + 3))
        a('s_mov_b64 exec, 0xffffffff')
        if o.l2:
            LN = a.uniq('AF')
            a('buffer_store_dwordx4 v[4:7], v2, %s, 0 offen' % srd(SRD_WS))
            a('s_cmp_eq_u32 s%d, 0' % S_FAR)
            a('s_cbranch_scc1 %s' % LN)
        a('buffer_store_dwordx4 v[4:7], v2, %s, 0 offen sc1' % srd(SRD_WS))
        if o.l2:
            a.label(LN)
        a('s_mov_b64 exec, -1')
        self.stamp(vm, 3, T)
        self.end()

    def w_role(self):
        a, o = self.a, self.o
        self.sec('W0')
        a.label('L_W')
        if o.pax == 3:
            a('s_cmp_ge_u32 s%d, 4' % S_SLOT)
            a('s_cbranch_scc1 L_PA')
        self.common()
        if o.cpf:
            a('s_getpc_b64 s[98:99]')
            a.label('L_PC')
            a('s_sub_u32 s98, s98, L_PC-%s_kernel' % NAME)
            a('s_subb_u32 s99, s99, 0')
            a('s_lshl_b32 s7, s%d, 2' % S_SLOT)
            a('s_add_u32 s7, s7, s%d' % S_WAVE)
            a('s_lshl_b32 s7, s7, 11')
            a('v_lshl_add_u32 v4, v1, 4, s7')
            a('s_mov_b32 s7, L_CODE_END-%s_kernel-16' % NAME)
            for k in range(2):
                a('v_add_u32 v5, %d, v4' % (k * 1024))
                a('v_min_u32 v5, s7, v5')
                a('v_mov_b32 v7, s99')
                a('v_add_co_u32 v6, vcc, s98, v5')
                a('v_addc_co_u32 v7, vcc, 0, v7, vcc')
                a('global_load_dwordx4 v[8:11], v[6:7], off')
        T = 160
        a('s_barrier')
        self.touch(0, 'U1')
        self.touch(1, 'W2R')
        if o.pax == 2:
            a('s_branch L_PA')
        a('s_cmp_ge_u32 s%d, 4' % S_SLOT)
        a('s_cbranch_scc1 %s' % ('L_PA' if o.pax else 'L_PF' if o.pf else 'L_VH' if o.hj else 'L_END'))
        self.lds_wait(C_QA if o.hold else C_UK, 4, T, T + 1, sleep=4)
        a('s_branch L_U1')
        if o.pf:
            a.label('L_PF')
            mk_srd(a, SRD_A, P_CKV, 16777216)
            a('s_lshl_b32 s7, s%d, 2' % S_G)
            a('s_add_u32 s7, s7, s%d' % S_SLOT)
            a('s_sub_u32 s7, s7, 4')
            a('s_lshl_b32 s7, s7, 19')
            a('s_and_b32 s%d, s%d, 3' % (S_T, S_WAVE))
            a('s_lshl_b32 s%d, s%d, 10' % (S_T, S_T))
            a('s_add_u32 s%d, s%d, s7' % (S_T, S_T))
            a('s_add_u32 s%d, s%d, %d' % (S_T, S_T, (256 - o.pf) * 1024))
            a('s_add_u32 s%d, s%d, 0x40000' % (S_T + 1, S_T))
            a('v_lshlrev_b32 v2, 4, v1')
            self.lds_wait(C_PA if o.pax == 3 else C_UK if o.pfe else C_QA, 4, T, T + 1, sleep=4)
            a('s_mov_b32 s%d, %d' % (S_T + 2, o.pf // 4))
            Lp = a.uniq('PF')
            a.label(Lp)
            for k in range(2):
                a('s_waitcnt vmcnt(%d)' % (o.pfd - 1))
                a('buffer_load_dwordx4 v[4:7], v2, %s, s%d offen%s' % (srd(SRD_A), S_T + k, PFL[o.pfl]))
                a('s_add_u32 s%d, s%d, 4096' % (S_T + k, S_T + k))
            a('s_sub_u32 s%d, s%d, 1' % (S_T + 2, S_T + 2))
            a('s_cmp_lg_u32 s%d, 0' % (S_T + 2))
            a('s_cbranch_scc1 %s' % Lp)
            self.lds_signal(C_PF, T, T + 1)
            if o.hj:
                a('s_branch L_VH')
                self.v_help()
            else:
                a('s_waitcnt vmcnt(0)')
                a('s_branch L_END')

        if o.hj and not o.pf:
            self.v_help()
        if o.pax:
            self.x_proj()
        a.label('L_W1')
        self.common()
        vm = VM(a)
        sHH, sW = S_T + 1, S_T + 2
        VA, VG = 2, 3
        FR, GQ, U, QB, D = 8, 72, 104, 136, 104
        a('s_setprio 3')
        a('s_barrier')
        if o.cut & 8:
            self.lds_wait(C_UK, 4, T, T + 1, sleep=4)
            a('s_sleep %d' % o.cutsl)
            self.lds_signal(C_QA, T, T + 1)
            a('s_cmp_ge_u32 s%d, 4' % S_SLOT)
            a('s_cbranch_scc1 L_END')
            a('s_branch L_U1')
        LN = a.uniq('W4')
        a('s_cmp_lg_u32 s%d, 4' % S_WAVE)
        a('s_cbranch_scc1 %s' % LN)
        a('s_sleep %d' % o.nsl)
        self.nonce_get(vm, 152, dbl=o.ndb)
        self.nonce_share(T)
        if o.l2:
            self.check_in(T)
        self.stamp(vm, 8, T)
        a.label(LN)
        if o.pax == 3:
            LN = a.uniq('W4')
            a('s_cmp_lt_u32 s%d, 4' % S_SLOT)
            a('s_cbranch_scc1 %s' % LN)
            a('s_setprio 0')
            a('s_waitcnt vmcnt(0)')
            a('s_branch %s' % ('L_PF' if o.pf else 'L_END'))
            a.label(LN)
        a('s_sub_u32 s%d, s%d, 4' % (sW, S_WAVE))
        a('s_lshl_b32 s%d, s%d, 2' % (sHH, S_G))
        a('s_add_u32 s%d, s%d, s%d' % (sHH, sHH, sW))
        a('v_lshrrev_b32 v%d, 4, v1' % (T + 2))
        a('v_and_b32 v%d, 15, v1' % (T + 1))
        a('v_lshlrev_b32 v%d, 16, v%d' % (VA, T + 2))
        a('v_lshl_add_u32 v%d, v%d, 4, v%d' % (VA, T + 1, VA))
        a('s_lshl_b32 s7, s%d, 3' % sHH)
        a('s_add_u32 s7, s7, s%d' % S_SLOT)
        a('s_lshl_b32 s7, s7, 8')
        a('s_add_u32 s7, s7, 0x%x' % WS_QABS)
        a('v_add_u32 v%d, s7, v%d' % (VA, VA))
        a('v_lshlrev_b32 v%d, 6, v%d' % (VG, T + 1))
        a('v_lshl_add_u32 v%d, v%d, 4, v%d' % (VG, T + 2, VG))
        a('s_lshl_b32 s7, s%d, 13' % sHH)
        a('s_add_u32 s7, s7, 0x%x' % WS_QBP)
        a('v_add_u32 v%d, s7, v%d' % (VG, VG))
        a('v_xor_b32 v5, v%d, v%d' % (T + 2, T + 1))
        a('v_lshlrev_b32 v5, 4, v5')
        a('v_lshl_add_u32 v4, v%d, 12, v5' % (T + 1))
        a('s_lshl_b32 s7, s%d, 8' % sW)
        a('v_add_u32 v4, s7, v4')
        self.nonce_lds(T)
        a('s_sleep %d' % o.wsl)
        self.stamp(vm, 0, T)
        a('s_mov_b32 s%d, 4096' % (S_T + 3))
        loads = ['buffer_load_dwordx4 %s, v%d, %s, %s offen offset:%d sc1' % (
            vr(GQ + 4 * r, 4), VG, srd(SRD_WS), '0' if r < 4 else 's%d' % (S_T + 3), (r & 3) * 1024) for r in range(8)]

        def frags():
            self.lds_wait(C_UK, 4, T, T + 1, sleep=1)
            for ks in range(4):
                a('v_xor_b32 v%d, 0x%x, v4' % (T + ks, ks << 6))
            for t in range(4):
                for ks in range(4):
                    a('ds_read_b128 %s, v%d offset:%d' % (vr(FR + 16 * t + 4 * ks, 4), T + ks, t * 1024))
            if o.dev:
                self.stamp(vm, 9, T + 4)
                a('s_waitcnt vmcnt(1)')
                self.stamp(vm, 10, T + 4)
        self.poll_sel(vm, loads, [GQ + 4 * r for r in range(8)], T + 4, first=frags)
        self.stamp(vm, 1, T)
        for r in range(4):
            u = U + 8 + 8 * (r & 1) if r else U
            self.unpack4(u, GQ + 8 * r)
            self.unpack4(u + 4, GQ + 8 * r + 4)
            if r:
                for k in range(4):
                    self.add2(U + 2 * k, U + 2 * k, u + 2 * k)
        for k in range(4):
            a('v_cvt_pk_bf16_f32 v%d, v%d, v%d' % (QB + k, U + 2 * k, U + 2 * k + 1))
        for r in range(1, 4):
            for k in range(4):
                a('v_mov_b32_dpp v%d, v%d quad_perm:[%d,%d,%d,%d] row_mask:0xf bank_mask:0xf' % (
                    QB + 4 * r + k, QB + k, r & 3, (r + 1) & 3, (r + 2) & 3, (r + 3) & 3))
        self.set_tag(GQ)
        a('s_waitcnt lgkmcnt(0)')
        for r in range(4):
            for t in range(4):
                a('v_mfma_f32_16x16x32_bf16 %s, %s, %s, %s' % (
                    vr(D + 4 * t, 4), vr(QB + 4 * r, 4), vr(FR + 16 * t + 4 * ((t + r) & 3), 4),
                    '0' if r == 0 else vr(D + 4 * t, 4)))
        a('v_cvt_pk_bf16_f32 v%d, v%d, v%d' % (GQ, D, D + 5))
        a('v_cvt_pk_bf16_f32 v%d, v%d, v%d' % (GQ + 1, D + 10, D + 15))
        vm.issue('buffer_store_dwordx4 %s, v%d, %s, 0 offen sc1' % (vr(GQ, 4), VA, srd(SRD_WS)), 'qa')
        if o.pax == 3:
            self.lds_wait(C_UK, 8, T + 4, T + 5, sleep=0)
            a('v_add_u32 v4, 0x10000, v4')
            for ks in range(4):
                a('v_xor_b32 v%d, 0x%x, v4' % (T + ks, ks << 6))
            for r in range(4):
                for t in range(4):
                    ks = (t + r) & 3
                    a('ds_read_b128 %s, v%d offset:%d' % (vr(FR + 16 * t + 4 * ks, 4), T + ks, t * 1024))
            self.set_tag(GQ + 4)
            for r in range(4):
                a('s_waitcnt lgkmcnt(%d)' % (12 - 4 * r))
                for t in range(4):
                    a('v_mfma_f32_16x16x32_bf16 %s, %s, %s, %s' % (
                        vr(D + 4 * t, 4), vr(QB + 4 * r, 4), vr(FR + 16 * t + 4 * ((t + r) & 3), 4),
                        '0' if r == 0 else vr(D + 4 * t, 4)))
            a('v_cvt_pk_bf16_f32 v%d, v%d, v%d' % (GQ + 4, D, D + 5))
            a('v_cvt_pk_bf16_f32 v%d, v%d, v%d' % (GQ + 5, D + 10, D + 15))
            vm.issue('buffer_store_dwordx4 %s, v%d, %s, 0 offen offset:1024 sc1' % (vr(GQ + 4, 4), VA, srd(SRD_WS)), 'qa')
        self.lds_signal(C_QA, T, T + 1)
        self.stamp(vm, 2, T)
        a('s_setprio 0')
        a('s_cmp_ge_u32 s%d, 4' % S_SLOT)
        a('s_cbranch_scc1 %s' % ('L_VH' if o.hj else 'L_END'))
        self.u_stage1()
        self.w_stage2()

    def x_proj(self):
        a, o = self.a, self.o
        vm = VM(a)
        self.sec('VH')
        a.label('L_PA')
        XR, RAW, OP, D, T = 8, 24, 88, 120, 160
        sOff, sHH, sRb = S_T, S_T + 1, S_T + 2
        if o.pax == 3:
            self.common()
        mk_srd(a, SRD_A, P_AX, 4096)
        mk_srd(a, SRD_B, P_WQ, 4194304)
        a('s_lshl2_add_u32 s%d, s%d, s%d' % (sHH, S_G, S_WAVE))
        W2 = o.pax == 2
        nb = 2 if W2 else 4
        a('s_sub_u32 s%d, s%d, %d' % (sRb, S_SLOT, 0 if W2 else 4))
        a('v_lshrrev_b32 v4, 4, v1')
        a('v_and_b32 v5, 15, v1')
        a('v_lshlrev_b32 v2, 16, v4')
        a('v_lshl_add_u32 v2, v5, 4, v2')
        a('v_lshlrev_b32 v3, %d, v4' % (12 if W2 else 11))
        a('v_lshl_add_u32 v3, v5, 4, v3')
        a('s_lshl_b32 s7, s%d, %d' % (sHH, 6 if W2 else 5))
        a('s_add_u32 s7, s7, s%d' % sRb)
        a('s_lshl_b32 s7, s7, 8')
        a('s_add_u32 s7, s7, 0x%x' % (WS_QAW if W2 else WS_QAP))
        a('v_add_u32 v3, s7, v3')
        a('v_bfe_u32 v5, v1, 2, 2')
        a('v_lshlrev_b32 v5, 10, v5')
        a('v_lshl_add_u32 v5, v4, 4, v5')
        a('s_getreg_b32 s%d, hwreg(HW_REG_XCC_ID, 0, 4)' % S_XCC)
        if W2:
            self.lds_wait(C_UI, 4, T, T + 1, sleep=2)
        elif o.pax != 3:
            self.nonce_lds(T)
            self.lds_wait(C_QA if o.pah else C_UK, 4, T, T + 1, sleep=4)
        a('s_lshl_b32 s7, s%d, %d' % (sRb, 7 if W2 else 8))
        for kb in range(nb):
            vm.issue('buffer_load_dwordx4 %s, v5, %s, s7 offen offset:%d' % (vr(XR + 4 * kb, 4), srd(SRD_A), 64 * kb), 'x')
        a('s_lshl_b32 s%d, s%d, %d' % (sOff, sRb, 19 if W2 else 20))
        a('s_lshl_b32 s7, s%d, 8' % sHH)
        a('s_add_u32 s%d, s%d, s7' % (sOff, sOff))

        def ld(kb):
            for i in range(8):
                if o.pax == 3 and kb == 0 and i == 4:
                    a('s_barrier')
                if not W2:
                    vm.wait_n(o.pad - 1)
                vm.issue('buffer_load_dwordx4 %s, v2, %s, s%d offen nt' % (
                    vr(RAW + 32 * (kb & 1) + 4 * i, 4), srd(SRD_B), sOff), ('w', kb))
                a('s_add_u32 s%d, s%d, %d' % (sOff, sOff, 8192 if i < 7 else 25 * 8192))
        ld(0)
        if W2:
            self.nonce_lds(T)
            self.lds_wait(C_QA, 4, T, T + 1, sleep=2)
        ld(1)
        for kb in range(nb):
            if kb == nb - 1 and o.pax == 3:
                self.nonce_lds(T)
            if kb == nb - 1 and o.l2:
                self.far_check(T, 152)
                vm.q = []
            vm.wait(('w', kb))
            self.perm_block(OP, RAW + 32 * (kb & 1))
            if kb + 2 < nb:
                ld(kb + 2)
            for c in range(8):
                a('v_mfma_f32_16x16x32_bf16 %s, %s, %s, %s' % (
                    vr(D + 4 * c, 4), vr(XR + 4 * kb, 4), vr(OP + 4 * c, 4), '0' if kb == 0 else vr(D + 4 * c, 4)))
        self.set_tag(RAW)
        self.set_tag(RAW + 4)
        for k in range(4):
            a('v_cvt_pk_bf16_f32 v%d, v%d, v%d' % (RAW + 4 * (k >> 1) + (k & 1), D + 8 * k, D + 8 * k + 4))
        LN = a.uniq('XF')
        if o.l2:
            for e in range(2):
                a('buffer_store_dwordx4 %s, v3, %s, 0 offen offset:%d' % (vr(RAW + 4 * e, 4), srd(SRD_WS), (2048 if W2 else 1024) * e))
            a('s_cmp_eq_u32 s%d, 0' % S_FAR)
            a('s_cbranch_scc1 %s' % LN)
        for e in range(2):
            a('buffer_store_dwordx4 %s, v3, %s, 0 offen offset:%d sc1' % (vr(RAW + 4 * e, 4), srd(SRD_WS), (2048 if W2 else 1024) * e))
        a.label(LN)
        self.lds_signal(C_PA if o.pax == 3 else C_PF, T, T + 1)
        self.stamp(vm, 7, T)
        if W2:
            a('s_cmp_lt_u32 s%d, 4' % S_SLOT)
            a('s_cbranch_scc1 L_U1')
        self.end()
        self.sec('W0')

    def v_help(self):
        a, o = self.a, self.o
        vm = VM(a)
        vm.q = ['old'] * 8
        self.sec('VH')
        a.label('L_VH')
        q0 = NS * (NQ - o.hj)
        n = (256 - q0 + 1) // 2
        VR, P, ACC, G, T = 40, 8, 152, 148, 160
        assert VR + 4 * n <= 148 and P + n <= VR
        sOff = S_T
        mk_srd(a, SRD_B, P_V, 134217728)
        a('s_lshr_b32 s7, s%d, 1' % S_WAVE)
        a('s_lshl_b32 s%d, s7, 5' % sOff)
        a('s_add_u32 s%d, s%d, s%d' % (sOff, sOff, S_H))
        a('s_lshl_b32 s%d, s%d, 20' % (sOff, sOff))
        a('s_and_b32 s%d, s%d, 1' % (sOff + 1, S_WAVE))
        a('s_lshl_b32 s%d, s%d, 10' % (sOff + 2, sOff + 1))
        a('s_add_u32 s%d, s%d, s%d' % (sOff, sOff, sOff + 2))
        a('s_add_u32 s%d, s%d, 0x%x' % (sOff, sOff, 0xC0000 + q0 * 1024))
        a('v_lshlrev_b32 v2, 4, v1')
        a('s_lshl_b32 s%d, s%d, 2' % (sOff + 2, S_H))
        a('s_add_u32 s7, s7, s%d' % (sOff + 2))
        a('s_lshl_b32 s7, s7, 10')
        a('s_add_u32 s7, s7, 0x%x' % WS_PH)
        a('v_add_u32 v3, s7, v2')
        self.lds_wait(C_PF if o.pf else C_QA, 4, T, T + 1, sleep=8)
        for _ in range(o.vdl):
            a('s_sleep 36')
        odd = (256 - q0) & 1
        for i in range(n):
            vm.wait_n(o.vhd - 1)
            if odd and i == n - 1:
                a('s_cmp_eq_u32 s%d, 0' % (sOff + 1))
                a('s_cselect_b32 s%d, s%d, 0x40000000' % (sOff, sOff))
            vm.issue('buffer_load_dwordx4 %s, v2, %s, s%d offen nt' % (vr(VR + 4 * i, 4), srd(SRD_B), sOff), 'v')
            a('s_add_u32 s%d, s%d, 2048' % (sOff, sOff))
        self.nonce_lds(T)
        a('s_lshl_b32 s7, s%d, 9' % S_WAVE)
        a('s_add_u32 s7, s7, 0x%x' % PHL)
        a('v_lshl_add_u32 v4, v1, 3, s7')
        a('s_lshl_b32 s%d, s%d, 3' % (sOff + 1, sOff + 1))
        a('s_add_u32 s7, s7, s%d' % (sOff + 1))
        a('v_lshrrev_b32 v5, 4, v1')
        a('v_lshl_add_u32 v5, v5, 1, s7')
        for i in range(n):
            a('v_mov_b32 v%d, 0' % (P + i))
        a('v_and_b32 v6, 15, v1')
        a('v_lshlrev_b32 v6, 4, v6')
        a('v_bfe_u32 v7, v1, 5, 1')
        a('v_lshl_add_u32 v6, v7, 3, v6')
        a('v_bfe_u32 v7, v1, 4, 1')
        a('v_lshl_add_u32 v6, v7, 2, v6')
        a('s_lshl_b32 s7, s%d, 8' % S_WAVE)
        a('s_add_u32 s7, s7, 0x%x' % OHB)
        a('v_add_u32 v6, s7, v6')
        self.stamp(vm, 3, T)
        self.poll(vm, ['buffer_load_dwordx4 %s, v3, %s, 0 offen sc1' % (vr(G, 4), srd(SRD_WS))], G, T, sleep=8)
        a('ds_write_b64 v4, v[%d:%d]' % (G, G + 1))
        for i in range(n):
            if i == 12:
                a('s_waitcnt lgkmcnt(0)')
            a('ds_read_u16_d16_hi v%d, v5 offset:%d' % (P + i, 16 * i))
        a('s_waitcnt lgkmcnt(0)')
        for i in range(n):
            self.unpack8(T, VR + 4 * i)
            for k in range(4):
                self.pkfma_bcast(ACC + 2 * k, T + 2 * k, P + i, first=(i == 0))
        for k in range(4):
            a('v_permlane32_swap_b32 v%d, v%d' % (ACC + k, ACC + k + 4))
        for k in range(4):
            a('v_add_f32 v%d, v%d, v%d' % (ACC + k, ACC + k, ACC + k + 4))
        for k in range(2):
            a('v_permlane16_swap_b32 v%d, v%d' % (ACC + k, ACC + k + 2))
        for k in range(2):
            a('v_add_f32 v%d, v%d, v%d' % (ACC + k, ACC + k, ACC + k + 2))
        a('v_cvt_pk_bf16_f32 v%d, v%d, v%d' % (ACC, ACC, ACC + 1))
        a('ds_write_b32 v6, v%d' % ACC)
        self.lds_signal(C_VH, T, T + 1)
        self.stamp(vm, 4, T)
        self.end()
        self.sec('W0')

    def y_addr(self, V, Vt, sCg):
        a = self.a
        a('v_lshrrev_b32 v%d, 4, v1' % V)
        a('v_lshlrev_b32 v%d, 16, v%d' % (V, V))
        a('v_bfe_u32 v%d, v1, 3, 1' % Vt)
        a('v_lshl_add_u32 v%d, v%d, 13, v%d' % (V, Vt, V))
        a('v_and_b32 v%d, 7, v1' % Vt)
        a('v_lshl_add_u32 v%d, v%d, 4, v%d' % (V, Vt, V))
        a('s_cmp_lt_u32 s%d, 4' % S_SLOT)
        a('s_cselect_b32 s7, 0x%x, 0x%x' % (0x40000 >> 7, 0))
        a('s_add_u32 s7, s7, s%d' % S_H)
        a('s_lshl_b32 s7, s7, 7')
        a('s_add_u32 s7, s7, 0x%x' % WS_Y)
        a('v_add_u32 v%d, s7, v%d' % (V, V))
        a('s_lshl_b32 s7, s%d, 14' % sCg)
        a('v_add_u32 v%d, s7, v%d' % (V, V))

    def u_stage1(self):
        a, o = self.a, self.o
        vm = VM(a)
        vm.q = ['old', 'old', 'old']
        self.sec('U1', True)
        T = 160
        VW, VM_, VC, VP = 2, 3, 4, 5
        RAW, FW, X, U, AC, WJ, D = 8, 40, 8, 104, 120, 136, 104
        sOff = S_T + 10
        mk_srd(a, SRD_B, P_WUV, 4194304)
        a('v_lshrrev_b32 v%d, 4, v1' % (T + 2))
        a('v_lshlrev_b32 v%d, 16, v%d' % (VW, T + 2))
        a('v_and_b32 v%d, 15, v1' % T)
        a('v_lshl_add_u32 v%d, v%d, 4, v%d' % (VW, T, VW))
        a('s_lshl_b32 s7, s%d, 8' % S_H)
        a('v_add_u32 v%d, s7, v%d' % (VW, VW))
        a('s_lshl_b32 s%d, s%d, 19' % (sOff, S_WAVE))
        if o.pax == 2:
            self.lds_wait(C_PF, 4, T + 4, T + 5, sleep=2)
        for kb in range(2):
            for i in range(8):
                vm.wait_n(o.ud - 1)
                vm.issue('buffer_load_dwordx4 %s, v%d, %s, s%d offen nt' % (
                    vr((RAW, 104)[kb] + 4 * i, 4), VW, srd(SRD_B), sOff), ('w', kb))
                a('s_add_u32 s%d, s%d, %d' % (sOff, sOff, 8192 if i < 7 else 25 * 8192))
        a('v_lshlrev_b32 v%d, 4, v1' % VM_)
        a('v_add_u32 v%d, 0x%x, v%d' % (VM_, MLS, VM_))
        a('v_lshrrev_b32 v%d, 1, v%d' % (VC, T))
        a('v_lshlrev_b32 v%d, 18, v%d' % (VC, VC))
        a('v_lshl_add_u32 v%d, v%d, 4, v%d' % (VC, T + 2, VC))
        a('v_and_b32 v%d, 1, v1' % (T + 3))
        a('v_lshl_add_u32 v%d, v%d, 6, v%d' % (VC, T + 3, VC))
        a('v_cmp_eq_u32 s[%d:%d], 1, v%d' % (S_MK, S_MK + 1, T + 3))
        a('s_lshl_b32 s7, s%d, 5' % S_WAVE)
        a('s_add_u32 s7, s7, s%d' % S_H)
        a('s_lshl_b32 s7, s7, 7')
        a('s_add_u32 s7, s7, 0x%x' % WS_CTX)
        a('v_add_u32 v%d, s7, v%d' % (VC, VC))
        a('s_lshl_b32 s7, s%d, 11' % S_WAVE)
        a('s_add_u32 s7, s7, 0x%x' % OPART)
        a('v_lshl_add_u32 v%d, v1, 5, s7' % VP)
        vm.wait(('w', 0))
        self.perm_block(FW, RAW)
        vm.wait(('w', 1))
        self.perm_block(FW + 32, 104)
        self.stamp(vm, 3, T)
        if o.cut & 1:
            a('s_branch L_END')
        self.nonce_lds(T)
        self.lds_wait(C_OK2, 1, T, T + 1, sleep=4)
        a('s_setprio 3')
        loads = ['s_mov_b32 s%d, %d\nbuffer_load_dwordx4 %s, v%d, %s, s%d offen sc1%s' % (
            sOff, 32768 * n, vr(X + 4 * n, 4), VC, srd(SRD_WS), sOff, ' nt' if o.cnt & 2 else '') for n in range(8)]
        WN = 148
        Lp, Lpd = a.uniq('UM'), a.uniq('UMD')
        a('s_mov_b64 s[%d:%d], 0' % (S_MK2, S_MK2 + 1))
        a('s_mov_b32 s%d, %d' % (S_SPIN, o.spin * 8))
        a.label(Lp)
        a('ds_read_b128 %s, v%d' % (vr(WJ, 4), VM_))
        a('s_waitcnt lgkmcnt(0)')
        self.bad(WJ, T)
        a('s_or_b64 s[%d:%d], vcc, s[%d:%d]' % (S_MK3, S_MK3 + 1, S_MK2, S_MK2 + 1))
        for n in range(8):
            Ls = a.uniq('UMS')
            m = (0xAAAA if n >> 2 else 0x5555) << (16 * (n & 1))
            hi = (n >> 1) & 1
            a('s_and_b32 s7, s%d, 0x%x' % (S_MK3 + hi, m))
            a('s_cbranch_scc1 %s' % Ls)
            a(loads[n])
            a('s_or_b32 s%d, s%d, 0x%x' % (S_MK2 + hi, S_MK2 + hi, m))
            a.label(Ls)
        a('s_cbranch_vccz %s' % Lpd)
        a('s_sleep 1')
        a('s_sub_u32 s%d, s%d, 1' % (S_SPIN, S_SPIN))
        a('s_cmp_lg_u32 s%d, 0' % S_SPIN)
        a('s_cbranch_scc1 %s' % Lp)
        a.label(Lpd)
        self.stamp(vm, 4, T)

        def weights():
            M, Lx = WJ, WJ + 1
            mx = WJ + 2
            a('v_max_f32_dpp v%d, v%d, v%d quad_perm:[1,0,3,2] row_mask:0xf bank_mask:0xf' % (mx, M, M))
            a('v_max_f32_dpp v%d, v%d, v%d quad_perm:[2,3,0,1] row_mask:0xf bank_mask:0xf' % (mx, mx, mx))
            for sw in ('v_permlane32_swap_b32', 'v_permlane16_swap_b32'):
                a('v_mov_b32 v%d, v%d' % (mx + 1, mx))
                a('%s v%d, v%d' % (sw, mx, mx + 1))
                a('v_max_f32 v%d, v%d, v%d' % (mx, mx, mx + 1))
            a('v_sub_f32 v%d, v%d, v%d' % (M, M, mx))
            a('v_exp_f32 v%d, v%d' % (M, M))
            a('v_mul_f32 v%d, v%d, v%d' % (Lx, Lx, M))
            a('v_add_f32_dpp v%d, v%d, v%d quad_perm:[1,0,3,2] row_mask:0xf bank_mask:0xf' % (Lx, Lx, Lx))
            a('v_add_f32_dpp v%d, v%d, v%d quad_perm:[2,3,0,1] row_mask:0xf bank_mask:0xf' % (Lx, Lx, Lx))
            self.row_sum([Lx], mx)
            a('v_rcp_f32 v%d, v%d' % (Lx, Lx))
            a('v_mul_f32 v%d, v%d, v%d' % (WJ, M, Lx))
            a('v_mov_b32 v%d, v%d' % (WJ + 1, WJ))
            a('v_permlane16_swap_b32 v%d, v%d' % (WJ, WJ + 1))
            a('v_mov_b32 v%d, v%d' % (WJ + 2, WJ))
            a('v_mov_b32 v%d, v%d' % (WJ + 3, WJ + 1))
            a('v_permlane32_swap_b32 v%d, v%d' % (WJ, WJ + 2))
            a('v_permlane32_swap_b32 v%d, v%d' % (WJ + 1, WJ + 3))
            for e in range(2):
                for jj in range(4):
                    a('v_mov_b32_dpp v%d, v%d quad_perm:[%d,%d,%d,%d] row_mask:0xf bank_mask:0xf' % (
                        WN + 4 * e + jj, WJ + jj, e, e, 2 + e, 2 + e))
        weights()
        a('s_waitcnt vmcnt(0)')
        self.stamp(vm, 5, T)
        OPN = 140
        for n in range(8):
            u = U + 8 * (n & 1)
            self.unpack8(u, X + 4 * n)
            for e in range(8):
                a('%s v%d, v%d, v%d' % ('v_fmac_f32' if n else 'v_mul_f32', AC + e, u + e, WN + n))
        for k in range(4):
            a('v_cvt_pk_bf16_f32 v%d, v%d, v%d' % (AC + 8 + k, AC + 2 * k, AC + 2 * k + 1))
        for k in range(4):
            a('v_cndmask_b32 v%d, v%d, 0, s[%d:%d]' % (OPN + k, AC + 8 + k, S_MK, S_MK + 1))
            a('v_cndmask_b32 v%d, 0, v%d, s[%d:%d]' % (OPN + 4 + k, AC + 8 + k, S_MK, S_MK + 1))
        if o.dump & 2:
            a('s_lshl_b32 s7, s%d, 3' % S_H)
            a('s_add_u32 s7, s7, s%d' % S_WAVE)
            a('s_lshl_b32 s7, s7, 15')
            a('s_add_u32 s7, s7, 0x800000')
            a('v_lshl_add_u32 v%d, v1, 4, s7' % T)
            for k in range(8):
                a('s_mov_b32 s7, %d' % (1024 * (21 + k)))
                a('buffer_store_dwordx4 %s, v%d, %s, s7 offen' % (vr(X + 4 * k, 4), T, srd(SRD_WS)))
            a('s_waitcnt vmcnt(0)')
        D = 8
        for kb in range(2):
            for c in range(8):
                a('v_mfma_f32_16x16x32_bf16 %s, %s, %s, %s' % (
                    vr(D + 4 * c, 4), vr(OPN + 4 * kb, 4), vr(FW + 32 * kb + 4 * c, 4),
                    '0' if kb == 0 else vr(D + 4 * c, 4)))
        R = 104
        for c in range(8):
            self.add2(D + 4 * c, D + 4 * c, D + 4 * c + 2)
        for c in range(8):
            a('v_add_f32 v%d, v%d, v%d' % (R + c, D + 4 * c, D + 4 * c + 1))
        a('ds_write_b128 v%d, %s' % (VP, vr(R, 4)))
        a('ds_write_b128 v%d, %s offset:16' % (VP, vr(R + 4, 4)))
        if o.dump:
            a('s_lshl_b32 s7, s%d, 3' % S_H)
            a('s_add_u32 s7, s7, s%d' % S_WAVE)
            a('s_lshl_b32 s7, s7, 15')
            a('s_add_u32 s7, s7, 0x800000')
            a('v_lshl_add_u32 v%d, v1, 4, s7' % T)
            regs = [R, R + 4, AC + 8, WN, WN + 4] + [AC, AC + 4, AC + 12, OPN, OPN + 4] + [FW + 4 * k for k in range(11)]
            for k, r in enumerate(regs):
                a('s_mov_b32 s7, %d' % (1024 * k))
                a('buffer_store_dwordx4 %s, v%d, %s, s7 offen' % (vr(r, 4), T, srd(SRD_WS)))
        a('v_and_b32 v%d, 31, v1' % T)
        a('s_lshl_b32 s7, s%d, 8' % S_WAVE)
        a('s_add_u32 s7, s7, 0x%x' % OPART)
        a('v_lshl_add_u32 v%d, v%d, 3, s7' % (VP, T))
        a('s_lshl_b32 s7, s%d, 7' % S_WAVE)
        a('s_add_u32 s7, s7, 0x%x' % OBUF)
        a('v_lshl_add_u32 v%d, v%d, 2, s7' % (VC, T))
        a('s_waitcnt lgkmcnt(0)')
        a('s_barrier')
        for k in range(8):
            a('ds_read_b64 v[%d:%d], v%d offset:%d' % (D + 2 * k, D + 2 * k + 1, VP, 2048 * k))
        a('s_waitcnt lgkmcnt(0)')
        for st in (8, 4, 2):
            for k in range(0, st, 2):
                self.add2(D + k, D + k, D + k + st)
        a('v_cvt_pk_bf16_f32 v%d, v%d, v%d' % (D, D, D + 1))
        a('ds_write_b32 v%d, v%d' % (VC, D))
        a('s_waitcnt lgkmcnt(0)')
        a('s_barrier')
        self.stamp(vm, 6, T)
        if o.wb:
            LN = a.uniq('WB')
            a('s_lshl4_add_u32 s7, s%d, s%d' % (S_SLOT, S_WAVE))
            a('s_cmp_lg_u32 s7, 0')
            a('s_cbranch_scc1 %s' % LN)
            a('s_sleep %d' % o.wb)
            a('buffer_wbl2 sc1')
            if o.hs:
                a('s_waitcnt vmcnt(0)')
            a.label(LN)
        self.end()

    def w_stage2(self):
        a, o = self.a, self.o
        vm = VM(a)
        self.sec('W2A')
        a.label('L_W2')
        self.common(True, split=True)
        sW, sOff, sM0 = S_T + 2, S_T + 10, S_T + 11
        VW, VY, VO, T = 2, 3, 4, 4
        a('s_sub_u32 s%d, s%d, 8' % (sW, S_WAVE))
        if o.pax == 3:
            a('s_cmp_ge_u32 s%d, 4' % S_SLOT)
            a('s_cbranch_scc1 L_W2X')
        a('s_lshl_b32 s7, s%d, 2' % S_SLOT)
        a('s_add_u32 s7, s7, s%d' % sW)
        a('s_lshl_b32 s7, s7, 17')
        a('s_lshl_b32 s%d, s%d, 10' % (sOff, S_G))
        a('s_add_u32 s%d, s%d, s7' % (sOff, sOff))
        a('s_lshl_b32 s%d, s%d, 14' % (sM0, sW))
        a('v_lshlrev_b32 v%d, 4, v1' % VW)
        a('s_lshl_b32 s7, s%d, 6' % sW)
        a('v_xor_b32 v%d, s7, v%d' % (T, VW))
        for k in range(1, 4):
            a('v_xor_b32 v%d, %d, v%d' % (T + k, k << 4, T))
        a('s_waitcnt lgkmcnt(0)')
        self.nonce_make(8)
        vm.q.append('nonce')
        mk_srd(a, SRD_C, P_WUK, 4194304)
        for i in range(32 if o.pax == 3 else 16):
            vt = T + ((i >> 2) & 3)
            if i == 16:
                a('s_add_u32 s%d, s%d, %d' % (sOff, sOff, (256 - 16) * 8192))
                a('s_add_u32 s%d, s%d, %d' % (sM0, sM0, 65536 - 16384))
            if i == 16 + o.ukd:
                self.lds_signal(C_UK, 8, 9)
            if i == o.ukd:
                self.sec('W2B', True)
                self.common(True)
                a('s_barrier')
            a('s_mov_b32 m0, s%d' % sM0)
            if i >= o.ukd:
                vm.wait_n(o.ukd - 1)
            vm.issue('buffer_load_dwordx4 v%d, %s, s%d offen nt lds' % (vt, srd(SRD_C), sOff), 'uk')
            a('s_addk_i32 s%d, 8192' % sOff)
            a('s_addk_i32 s%d, 1024' % sM0)
        if o.pax == 2:
            self.lds_signal(C_UI, 8, 9)
        if o.pax == 3:
            a('s_branch L_W2R')
            a.label('L_W2X')
            self.common(True)
            a('s_barrier')
        self.sec('W2R', True)
        a('s_cmp_lt_u32 s%d, 4' % S_SLOT)
        a('s_cselect_b32 s%d, s%d, s%d' % (S_T + 12, P_BWO, P_WO))
        a('s_cselect_b32 s%d, s%d, s%d' % (S_T + 13, P_BWO + 1, P_WO + 1))
        mk_srd(a, SRD_D, S_T + 12, 4194304)
        a('v_lshrrev_b32 v%d, 4, v1' % T)
        a('v_lshlrev_b32 v%d, 13, v%d' % (VW, T))
        a('v_and_b32 v%d, 15, v1' % T)
        a('v_lshl_add_u32 v%d, v%d, 4, v%d' % (VW, T, VW))
        a('s_lshl_b32 s7, s%d, 17' % S_H)
        a('s_lshl_b32 s%d, s%d, 8' % (sOff, sW))
        a('s_add_u32 s7, s7, s%d' % sOff)
        a('v_add_u32 v%d, s7, v%d' % (VW, VW))
        self.y_addr(VY, T, sW)
        vm.wait_all()
        self.lds_signal(C_UK, T, T + 1)
        self.stamp(vm, 0, T)
        LU, LJ = a.uniq('S2U'), a.uniq('S2J')

        def stream(depth, slow=0):
            q0 = list(vm.q)
            for kb in range(4):
                for i in range(8):
                    if i & 3 == 0:
                        vm.wait_n(depth)
                    elif i & 1 == 0 and 8 * kb + i < slow:
                        vm.wait_n(0)
                    vm.issue('buffer_load_dwordx4 %s, v%d, %s, s%d offen offset:%d nt' % (
                        vr(40 + 32 * kb + 4 * i, 4), VW, srd(SRD_D), sOff, (i & 3) * 1024), ('w', kb))
                    if i == 3:
                        a('s_add_u32 s%d, s%d, 4096' % (sOff, sOff))
                    if i == 7:
                        a('s_add_u32 s%d, s%d, %d' % (sOff, sOff, 32768 - 4096))
            vm.wait_all()
            vm.q = q0
        a('s_mov_b32 s%d, 0' % sOff)
        if o.hold and o.pax != 3:
            self.lds_wait(C_PF if o.pax == 2 else C_QA, 4, T, T + 1, sleep=4)
        a('s_cmp_lt_u32 s%d, 4' % S_SLOT)
        a('s_cbranch_scc1 %s' % LU)
        if o.pf or o.pax:
            self.lds_wait(C_PA if o.pax == 3 and not o.pf else C_PF, 4, T, T + 1, sleep=8)
        for _ in range(o.xdl):
            a('s_sleep 36')
        stream(o.sdx, o.xsw)
        a('s_branch %s' % LJ)
        a.label(LU)
        if o.pax == 3:
            self.lds_wait(C_QA, 4, T, T + 1, sleep=4)
        for _ in range(o.udl):
            a('s_sleep 36')
        stream(o.sdu)
        a.label(LJ)
        vm.q = []
        for kb in range(4):
            self.perm_block(8 + 32 * kb, 40 + 32 * kb)
        OP, D0, T = 136, 152, 160
        self.stamp(vm, 1, T)
        if o.cut & 1:
            a('s_branch L_END')
        self.nonce_lds(T)
        LX, LM = a.uniq('S2X'), a.uniq('S2M')
        a('v_bfe_u32 v%d, v1, 2, 2' % VO)
        a('v_lshlrev_b32 v%d, 8, v%d' % (VO, VO))
        a('v_lshrrev_b32 v%d, 4, v1' % T)
        a('v_lshl_add_u32 v%d, v%d, 4, v%d' % (VO, T, VO))
        a('s_mov_b32 s%d, 4096' % sOff)
        a('s_cmp_ge_u32 s%d, 4' % S_SLOT)
        a('s_cbranch_scc1 %s' % LX)
        a('v_add_u32 v%d, 0x%x, v%d' % (VO, OBUF, VO))
        LN = a.uniq('U8')
        a('s_cmp_lg_u32 s%d, 8' % S_WAVE)
        a('s_cbranch_scc1 %s' % LN)
        a('v_and_b32 v5, 15, v1')
        a('v_lshl_add_u32 v5, v5, 2, v%d' % T)
        a('s_lshl_b32 s7, s%d, 4' % S_H)
        a('s_add_u32 s7, s7, 0x%x' % WS_MLB)
        a('v_lshl_add_u32 v5, v5, 9, s7')
        a('v_lshlrev_b32 v6, 4, v1')
        a('v_add_u32 v6, 0x%x, v6' % MLS)
        bufs = [OP, OP + 4, OP + 8][:o.upp]
        if o.tlb & 2:
            a('v_lshlrev_b32 v7, 15, v1')
            a('s_mov_b32 s7, 0x%x' % (WS_CTX + 0x7f80))
            a('buffer_load_dword v%d, v7, %s, s7 offen nt' % (OP + 12, srd(SRD_WS)))

        def mld(r):
            return 'buffer_load_dwordx4 %s, v5, %s, 0 offen sc1' % (vr(r, 4), srd(SRD_WS))
        self.poll(vm, [mld(OP)], OP, T, sleep=o.usl, anyok=True)
        a('s_setprio 3')
        a('ds_write_b128 v6, %s' % vr(OP, 4))
        self.lds_signal(C_OK2, T, T + 1)
        Lp, Lpd = a.uniq('U8P'), a.uniq('U8D')
        a('s_cbranch_vccz %s' % Lpd)
        for r in bufs:
            a(mld(r))
            a('s_sleep 4')
        a('s_mov_b32 s%d, %d' % (S_SPIN, o.spin))
        a.label(Lp)
        for r in bufs:
            a('s_waitcnt vmcnt(%d)' % (len(bufs) - 1))
            a('ds_write_b128 v6, %s' % vr(r, 4))
            self.bad(r, T)
            a('s_cbranch_vccz %s' % Lpd)
            a('s_waitcnt lgkmcnt(0)')
            a(mld(r))
        a('s_sub_u32 s%d, s%d, 1' % (S_SPIN, S_SPIN))
        a('s_cmp_lg_u32 s%d, 0' % S_SPIN)
        a('s_cbranch_scc1 %s' % Lp)
        a.label(Lpd)
        a('s_waitcnt vmcnt(0)')
        a.label(LN)
        a('s_setprio 3')
        a('s_barrier')
        a('s_barrier')
        for kb in range(4):
            a('ds_read_b128 %s, v%d offset:%d' % (vr(OP + 4 * kb, 4), VO, 64 * kb))
        a('s_waitcnt lgkmcnt(0)')
        a('s_branch %s' % LM)
        a.label(LX)
        if o.hj:
            a('v_bfe_u32 v5, v1, 2, 2')
            a('v_lshl_add_u32 v5, v5, 8, v%d' % VO)
            a('v_add_u32 v6, 1, v1')
            a('v_and_b32 v6, 1, v6')
            a('v_lshl_add_u32 v5, v6, 8, v5')
            a('v_add_u32 v5, 0x%x, v5' % OHB)
            a('v_and_b32 v6, 3, v1')
            a('v_cmp_ne_u32 s[%d:%d], 0, v6' % (S_MK, S_MK + 1))
            self.lds_wait(C_VH, 8, T, T + 1, sleep=4)
            for kb in range(4):
                a('ds_read_b128 %s, v5 offset:%d' % (vr(OP + 4 * kb, 4), 64 * kb))
            a('s_waitcnt lgkmcnt(0)')
            self.stamp(vm, 4, T)
        a('v_and_b32 v%d, 3, v1' % T)
        a('v_lshl_add_u32 v%d, v%d, 6, v%d' % (VO, T, VO))
        a('s_lshl_b32 s7, s%d, 11' % S_H)
        a('s_add_u32 s7, s7, 0x%x' % WS_OA)
        a('v_add_u32 v%d, s7, v%d' % (VO, VO))
        ld = ['buffer_load_dwordx4 %s, v%d, %s, 0 offen offset:%d sc1' % (vr(D0 + 4 * e, 4), VO, srd(SRD_WS), 1024 * e)
              for e in range(2)]
        self.poll(vm, ld[:1], D0, T, sleep=o.xsl, anyok=True)
        a('s_setprio 3')

        def mk(r):
            return (['buffer_load_dwordx4 %s, v%d, %s, 0 offen offset:%d sc1' % (vr(r + 4 * e, 4), VO, srd(SRD_WS), 1024 * e)
                     for e in range(2)], [r, r + 4])

        def spread(r):
            if o.hj:
                a('s_mov_b64 vcc, s[%d:%d]' % (S_MK, S_MK + 1))
            for kb in range(4):
                for k in range(4):
                    d, x = OP + 4 * kb + k, r + 4 * (k >> 1) + (k & 1)
                    if o.hj:
                        a('v_cndmask_b32_dpp v%d, v%d, v%d, vcc quad_perm:[%d,%d,%d,%d] row_mask:0xf bank_mask:0xf' % (
                            d, x, d, kb, kb, kb, kb))
                    else:
                        a('v_mov_b32_dpp v%d, v%d quad_perm:[%d,%d,%d,%d] row_mask:0xf bank_mask:0xf' % (d, x, kb, kb, kb, kb))
        if o.xpp:
            self.poll_pipe(vm, mk, [D0, D0 + 8], spread, gap=o.xpp)
        else:
            self.poll_sel(vm, ld, [D0, D0 + 4], T)
            spread(D0)
        a.label(LM)
        a('s_nop 1')
        T = 4
        self.stamp(vm, 2, T)

        def D(c):
            return 4 if c == 0 else 8 + 4 * (c - 1)
        for c in range(8):
            for kb in range(4):
                a('v_mfma_f32_16x16x32_bf16 %s, %s, %s, %s' % (
                    vr(D(c), 4), vr(OP + 4 * kb, 4), vr(8 + 32 * kb + 4 * c, 4), '0' if kb == 0 else vr(D(c), 4)))
        T = 48
        if o.hj:
            LN = a.uniq('S2A')
            a('s_cmp_lt_u32 s%d, 4' % S_SLOT)
            a('s_cbranch_scc1 %s' % LN)
            for k in (1, 2):
                for c in range(8):
                    a('v_add_f32 v%d, v%d, v%d' % (D(c), D(c), D(c) + k))
            a.label(LN)
            a('s_nop 7')
        Y = 40
        for e in range(2):
            self.set_tag(Y + 4 * e)
            for m in range(2):
                a('v_cvt_pk_bf16_f32 v%d, v%d, v%d' % (Y + 4 * e + m, D(4 * e + 2 * m), D(4 * e + 2 * m + 1)))
            a('buffer_store_dwordx4 %s, v%d, %s, %s offen sc1' % (
                vr(Y + 4 * e, 4), VY, srd(SRD_WS), 's%d' % sOff if e else '0'))
        self.stamp(vm, 3, T)
        if o.wbx:
            LN = a.uniq('WB')
            a('s_cmp_lg_u32 s%d, 8' % S_WAVE)
            a('s_cbranch_scc1 %s' % LN)
            a('s_cmp_lt_u32 s%d, %d' % (S_SLOT, 4 if o.wbx == 1 else 7))
            a('s_cbranch_scc1 %s' % LN)
            a('s_waitcnt vmcnt(0)')
            a('buffer_wbl2 sc1')
            if o.hs:
                a('s_waitcnt vmcnt(0)')
            a.label(LN)
        self.end()

    def build(self):
        a = self.a
        hdr = open(os.path.join(os.path.dirname(os.path.abspath(__file__)), '..', NAME + '.s.ref')).read()
        head = []
        for line in hdr.split('\n'):
            if line.startswith('; @launch'):
                if self.o.hs:
                    head.append('; @launch kernel=%s_kernel grid=(256,1,1) block=(768,1,1) lds=%d' % (NAME, LDS_BYTES))
                    head.append('; @launch kernel=hs_kernel grid=(1,1,1) block=(64,1,1) lds=0')
                else:
                    head.append('; @launch grid=(256,1,1) block=(768,1,1) lds=%d' % LDS_BYTES)
            elif line.startswith(';'):
                head.append(line)
            else:
                break
        a.raw('\n'.join(head))
        a.raw('.amdgcn_target "amdgcn-amd-amdhsa--gfx950"\n.text\n.globl %s_kernel\n.p2align 12\n.p2align 8\n'
              '.type %s_kernel,@function\n%s_kernel:' % (NAME, NAME, NAME))
        self.sec('ENTRY')
        self.entry()
        self.a_att()
        self.a_svc()
        self.w_role()
        from gen3_c import c_role
        c_role(self)
        self.sec('END')
        a.label('L_END')
        self.end()
        a.label('L_END0')
        a('s_endpgm')
        self.sec('TAIL')
        a.label('L_CODE_END')
        a.raw('''.section .rodata,"a"
.p2align 6
.amdhsa_kernel %s_kernel
  .amdhsa_next_free_vgpr 168
  .amdhsa_next_free_sgpr 102
  .amdhsa_accum_offset 168
  .amdhsa_group_segment_fixed_size 0
  .amdhsa_kernarg_size 112
  .amdhsa_user_sgpr_count 2
  .amdhsa_user_sgpr_kernarg_segment_ptr 1
  .amdhsa_system_sgpr_workgroup_id_x 1
  .amdhsa_float_denorm_mode_32 3
.end_amdhsa_kernel
''' % NAME)
        if self.o.hs:
            from hs import hs_kernel
            a.raw(hs_kernel(WS_HS, 256 * 12, self.o.hs))
        txt = a.text()
        if self.o.hnt:
            out = []
            for l in txt.split('\n'):
                if l.rstrip().endswith(' sc1') and 'buffer_' in l and 'wbl2' not in l:
                    if ('store' in l and self.o.hnt & 1) or ('load' in l and self.o.hnt & 2):
                        l = l.rstrip() + ' nt'
                out.append(l)
            txt = '\n'.join(out)
        return layout(txt) if self.o.lay else txt


ORD = os.environ.get('ORD', 'W2A,AA,CA').split(',')


def sizes_of(lines):
    import subprocess, tempfile, re
    txt = []
    for l in lines:
        txt.append(l)
        if l.startswith(';@SEC TAIL'):
            txt += ['LT_%s:' % p for p in ('AR', 'AR2', 'U1', 'W2R', 'CR', 'CR2')]
    with tempfile.TemporaryDirectory() as d:
        open(d + '/t.s', 'w').write('\n'.join(txt))
        subprocess.check_call(['clang', '-x', 'assembler', '-target', 'amdgcn-amd-amdhsa', '-mcpu=gfx950',
                               '-c', d + '/t.s', '-o', d + '/t.o'])
        dis = subprocess.check_output(['llvm-objdump', '-d', '--mcpu=gfx950', d + '/t.o']).decode()
    sz = [4 * len(m.group(1).split()) for m in re.finditer(r'// [0-9A-F]+: ((?:[0-9A-F]{8} ?)+)', dis)]
    out, k = [], 0
    for l in lines:
        if l.startswith('    ') and not l.strip().startswith(';'):
            out.append(sz[k])
            k += 1
        else:
            out.append(0)
    return out


def layout(text):
    lines = text.split('\n')
    sz = sizes_of(lines)
    secs, cur = {}, 'HEAD'
    for l, n in zip(lines, sz):
        if l.startswith(';@SEC '):
            cur = l.split()[1]
            continue
        secs.setdefault(cur, []).append((l, n))

    def size(n):
        return sum(x[1] for x in secs[n])

    def body(n):
        return [x[0] for x in secs[n]]

    def stub(p):
        return ['.p2align 12', 'LT_%s:' % p, '    s_branch LR_%s' % p]

    def split(n):
        out, pos, done = [], 4, False
        for l, k in secs[n]:
            if not done and k and pos + k + 4 > 4096:
                out += ['    s_branch LC_%s' % n] + stub(n + '2') + ['LC_%s:' % n]
                done, pos = True, 4
            out.append(l)
            pos += k
        assert done
        return out, pos
    out = body('HEAD')
    p0 = ['ENTRY'] + ORD + ['AB', 'W2B', 'CB', 'END']
    print('first bursts:', [(n, size(n)) for n in p0])
    for n in p0:
        out += body(n)
    ar, rest = split('AR')
    out += stub('AR') + ar + body('ASVC')
    out += ['.p2align 12'] + body('W0') + body('CSVC')
    if 'VH' in secs:
        out += ['.p2align 12'] + body('VH')
    out += stub('U1') + body('U1') + stub('W2R') + body('W2R')
    cr, crest = split('CR')
    out += stub('CR') + cr + body('TAIL')
    print('layout: page0 %d (+768 harness), AR2+ASVC %d, W0+CSVC %d, U1 %d, W2R %d, CR2 %d' % (
        sum(map(size, p0)), rest + size('ASVC'), size('W0') + size('CSVC'), size('U1'), size('W2R'), crest))
    return '\n'.join(out)


if __name__ == '__main__':
    import gen3
    opt = gen3.Opt()
    out = os.path.join(os.path.dirname(os.path.abspath(__file__)), '..', NAME + '.s')
    for arg in sys.argv[1:]:
        if arg.startswith('out='):
            out = arg[4:]
        else:
            k, v = arg.split('=')
            assert hasattr(opt, k), k
            setattr(opt, k, int(v))
    g = gen3.Gen(opt)
    txt = g.build()
    open(out, 'w').write(txt)
    print('wrote', out, len(txt), 'bytes; auto nops:', g.a.nops)
```
